```python
import torch

def _softmax(x, axis=-1):
    return torch.softmax(x, dim=axis)

def _gelu(x):
    return torch.nn.functional.gelu(x, approximate='tanh')

def _silu(x):
    return torch.nn.functional.silu(x)

def _sigmoid(x):
    return torch.sigmoid(x)

def _layernorm(x, axis=-1, eps=1e-05):
    m = x.mean(dim=axis, keepdim=True)
    v = x.var(dim=axis, keepdim=True, unbiased=False)
    return (x - m) / torch.sqrt(v + eps)

def _scatter_add(tgt, idx, src, axis=0):
    return tgt.clone().index_add_(axis, idx, src)

def _segment_sum(src, seg, n):
    out = torch.zeros((n,) + src.shape[1:], dtype=src.dtype)
    return out.index_add_(0, seg, src)

def _pad(x, pw):
    flat = tuple((v for pair in reversed(pw) for v in pair))
    return torch.nn.functional.pad(x, flat)
kernel_name = 'adaLN_cond__ssm_conv_s4__glu_gated_geglu__prompt'

def setup_inputs():

    _w = lambda a: (lambda t: t.to(torch.bfloat16) if t.is_floating_point() else t)(torch.as_tensor(a))

    def _A_setup():
        B, L, D, N = (1, 2048, 512, 128)
        A_re = -(lambda _x: torch.exp(torch.as_tensor(_x)))((lambda *s: torch.randn(*s, dtype=torch.bfloat16) * 3.2)(D, N))
        A_im = torch.pi * (lambda *s: torch.randn(*s, dtype=torch.bfloat16) * 0.1)(D, N)
        B_re = (lambda *s: torch.randn(*s, dtype=torch.bfloat16) * 0.1)(D, N)
        B_im = (lambda *s: torch.randn(*s, dtype=torch.bfloat16) * 0.1)(D, N)
        C_re = (lambda *s: torch.randn(*s, dtype=torch.bfloat16) * 0.1)(D, N)
        C_im = (lambda *s: torch.randn(*s, dtype=torch.bfloat16) * 0.1)(D, N)
        log_dt = (lambda *s: torch.randn(*s, dtype=torch.bfloat16) * 0.1)(D) * 0.5 - 4.0
        Dskip = (lambda *s: torch.randn(*s, dtype=torch.bfloat16) * 0.1)(D)
        return {'u': _w((lambda *s: torch.randn(*s, dtype=torch.bfloat16) * 0.05)(B, L, D)), 'A_re': _w(A_re), 'A_im': _w(A_im), 'B_re': _w(B_re), 'B_im': _w(B_im), 'C_re': _w(C_re), 'C_im': _w(C_im), 'log_dt': _w(log_dt), 'Dskip': _w(Dskip)}
    _A_in = _A_setup()

    def _B_setup():
        B, S, Dm, Df = (1, 2048, 512, 1792)
        return {'x': _w((lambda *s: torch.randn(*s, dtype=torch.bfloat16) * 0.05)(B, S, Dm)), 'w_gate': _w((lambda *s: torch.randn(*s, dtype=torch.bfloat16) * 1.6)(Dm, Df) * Dm ** (-0.5)), 'w_up': _w((lambda *s: torch.randn(*s, dtype=torch.bfloat16) * 1.6)(Dm, Df) * Dm ** (-0.5)), 'w_down': _w((lambda *s: torch.randn(*s, dtype=torch.bfloat16) * 1.6)(Df, Dm) * Df ** (-0.5))}
    _B_in = _B_setup()
    return {'A_u': _A_in['u'], 'A_A_re': _A_in['A_re'], 'A_A_im': _A_in['A_im'], 'A_B_re': _A_in['B_re'], 'A_B_im': _A_in['B_im'], 'A_C_re': _A_in['C_re'], 'A_C_im': _A_in['C_im'], 'A_log_dt': _A_in['log_dt'], 'A_Dskip': _A_in['Dskip'], 'B_x': _B_in['x'], 'B_w_gate': _B_in['w_gate'], 'B_w_up': _B_in['w_up'], 'B_w_down': _B_in['w_down'], 'c': _w((lambda *s: torch.randn(*s, dtype=torch.bfloat16) * 0.1)(1, 512) * 8.0), 'w_mod': _w((lambda *s: torch.randn(*s, dtype=torch.bfloat16) * 0.1)(512, 6 * 512) * 512 ** (-0.5) * 8.0)}

def reference(A_u, A_A_re, A_A_im, A_B_re, A_B_im, A_C_re, A_C_im, A_log_dt, A_Dskip, B_x, B_w_gate, B_w_up, B_w_down, c, w_mod):

    def _A_ref(u, A_re, A_im, B_re, B_im, C_re, C_im, log_dt, Dskip):
        Bsz, L, D = u.shape
        dt = torch.exp(log_dt)[:, None]
        A = A_re + 1j * A_im
        Bc = B_re + 1j * B_im
        Cc = C_re + 1j * C_im
        logdA = dt * A
        dB = dt * Bc
        l = (lambda x, dt: x.to(dt))(torch.arange(L), A_re.dtype)
        P = torch.exp(logdA[:, :, None] * l[None, None, :])
        K = torch.einsum('dn,dnl,dn->dl', Cc, P, dB).real
        L2 = 2 * L
        Kp = _pad(K, ((0, 0), (0, L)))
        up = (lambda x, *d: x.permute(*d))(u, 0, 2, 1)
        up = _pad(up, ((0, 0), (0, 0), (0, L)))
        Kf = (lambda x, axes=(-2, -1): torch.fft.rfft2(x.float(), dim=axes))(Kp[:, None, :], axes=(-2, -1))
        Uf = (lambda x, axes=(-2, -1): torch.fft.rfft2(x.float(), dim=axes))(up[:, :, None, :], axes=(-2, -1))
        Yf = Uf * Kf[None, :, :, :]
        y = (lambda x, s, axes=(-2, -1): torch.fft.irfft2(x, s=s, dim=axes).to(torch.bfloat16))(Yf, (1, L2), axes=(-2, -1))[:, :, 0, :L]
        y = (lambda x, *d: x.permute(*d))(y, 0, 2, 1) + u * Dskip[None, None, :]
        return y

    def _B_ref(x, w_gate, w_up, w_down):
        g = torch.einsum('bsd,df->bsf', x, w_gate)
        u = torch.einsum('bsd,df->bsf', x, w_up)
        h = _gelu(g) * u
        return torch.einsum('bsf,fd->bsd', h, w_down)
    x = A_u
    mod = (_silu(c) @ w_mod).reshape(c.shape[0], 6, 1, -1)
    sa, ca, ga, sb, cb, gb = (mod[:, 0].clone(), mod[:, 1].clone(), mod[:, 2].clone(), mod[:, 3].clone(), mod[:, 4].clone(), mod[:, 5].clone())
    h = _layernorm(x, axis=-1) * (1 + ca) + sa
    x = x + ga * _A_ref(h, A_A_re, A_A_im, A_B_re, A_B_im, A_C_re, A_C_im, A_log_dt, A_Dskip)
    h = _layernorm(x, axis=-1) * (1 + cb) + sb
    x = x + gb * _B_ref(h, B_w_gate, B_w_up, B_w_down)
    return x
```

```python
import re

TRANS = ('v_exp_f32', 'v_log_f32', 'v_rcp_f32', 'v_rsq_f32', 'v_sqrt_f32', 'v_sin_f32', 'v_cos_f32')


def regs_of(op):
    op = op.strip()
    op = op.replace('abs(', '').replace(')', '').replace('|', '').lstrip('-')
    m = re.fullmatch(r'([vsa])\[(\d+):(\d+)\]', op)
    if m:
        return {m.group(1) + str(i) for i in range(int(m.group(2)), int(m.group(3)) + 1)}
    m = re.fullmatch(r'([vsa])(\d+)', op)
    if m:
        return {op}
    if op in ('vcc', 'vcc_lo', 'vcc_hi'):
        return {'vcc'}
    if op in ('m0', 'exec', 'scc'):
        return {op}
    return set()


class Ins:
    def __init__(self, text):
        self.text = text
        t = text.split(';')[0].strip()
        self.label = t.endswith(':')
        self.directive = t.startswith('.')
        self.mn = ''
        self.rd = set()
        self.wr = set()
        self.srcC = set()
        self.srcAB = set()
        if self.label or self.directive or not t:
            return
        parts = t.split(None, 1)
        self.mn = mn = parts[0]
        rest = parts[1] if len(parts) > 1 else ''
        ops = []
        depth = 0
        cur = ''
        for ch in rest:
            if ch == '[':
                depth += 1
            if ch == ']':
                depth -= 1
            if ch == ',' and depth == 0:
                ops.append(cur.strip())
                cur = ''
            else:
                cur += ch
        if cur.strip():
            ops.append(cur.strip())
        mods = ''
        if ops:
            last = ops[-1].split(None, 1)
            ops[-1] = last[0]
            mods = last[1] if len(last) > 1 else ''
        self.ops = ops
        self.mods = mods
        self.valu = mn.startswith('v_') and not mn.startswith('v_mfma')
        self.mfma = mn.startswith('v_mfma')
        self.trans = any(mn.startswith(x) for x in TRANS)
        self.dpp = '_dpp' in mn or 'row_' in mods or 'quad_perm' in mods
        self.perml = mn.startswith('v_permlane')
        self.vmem = mn.startswith(('global_', 'buffer_'))
        self.ds = mn.startswith('ds_')
        self.salu = mn.startswith('s_')
        self.ldsdma = self.vmem and ('_lds_' in mn or re.search(r'\blds\b', mods) is not None)
        R = [regs_of(o) for o in ops]
        if self.mfma:
            self.wr = R[0]
            self.srcAB = R[1] | R[2]
            self.srcC = R[3]
            self.rd = self.srcAB | self.srcC
            if '32x32x16' in mn:
                self.passes = 8
            elif '16x16x32' in mn:
                self.passes = 4
            else:
                raise ValueError('unknown mfma ' + mn)
        elif self.valu:
            if mn.startswith('v_cmp'):
                self.wr = R[0]
                self.rd = set().union(*R[1:])
            elif self.perml:
                self.wr = R[0] | R[1]
                self.rd = R[0] | R[1]
            elif mn.startswith(('v_add_co', 'v_sub_co', 'v_addc_co')):
                self.wr = R[0] | R[1]
                self.rd = set().union(*R[2:])
            else:
                self.wr = R[0]
                self.rd = set().union(*R[1:]) if len(R) > 1 else set()
                if mn.startswith(('v_fmac', 'v_dot2c')) or self.dpp or 'd16' in mn:
                    self.rd |= R[0]
                if mn.startswith('v_cndmask') and len(ops) == 3:
                    self.rd |= {'vcc'}
        elif self.vmem:
            if 'store' in mn or 'atomic' in mn:
                self.rd = set().union(*R)
                self.store_wide = mn.endswith(('x3', 'x4'))
                self.data = R[1] if mn.startswith('global_') else R[0]
            elif self.ldsdma:
                self.rd = set().union(*R) | {'m0'}
            else:
                self.wr = R[0]
                self.rd = set().union(*R[1:])
        elif self.ds:
            if mn.startswith(('ds_read', 'ds_bpermute', 'ds_permute', 'ds_swizzle')):
                self.wr = R[0]
                self.rd = set().union(*R[1:])
            else:
                self.rd = set().union(*R)
        elif self.salu:
            if mn.startswith(('s_cmp', 's_cbranch', 's_branch', 's_waitcnt', 's_barrier', 's_nop', 's_endpgm', 's_setprio', 's_sleep')):
                self.rd = set().union(*R) if R else set()
            else:
                self.wr = R[0]
                self.rd = set().union(*R[1:]) if len(R) > 1 else set()

    def states(self):
        if self.label or self.directive or not self.mn:
            return 0
        if self.mn == 's_nop':
            return int(self.ops[0]) + 1
        return 1


def need(p, c):
    n = 0
    if not p.mn or not c.mn:
        return 0
    pv = {r for r in p.wr if r[0] in 'va' and r != 'vcc'}
    ps = {r for r in p.wr if r[0] == 's' or r == 'vcc'}
    if p.valu:
        if pv & c.rd:
            if c.mn.startswith(('v_readlane', 'v_readfirstlane')):
                n = max(n, 1)
            if c.valu and c.dpp:
                n = max(n, 2)
            if c.valu and c.perml:
                n = max(n, 2)
            if c.mfma:
                n = max(n, 2)
            if p.trans and c.valu and not c.trans:
                n = max(n, 1)
            if p.mn.startswith('v_dot') and c.mn != p.mn:
                n = max(n, 3)
        if ps & c.rd:
            if c.valu or c.mfma:
                n = max(n, 4 if c.mn.startswith(('v_readlane', 'v_writelane')) else 2)
            if c.vmem:
                n = max(n, 5)
            if c.salu:
                n = max(n, 2)
    if p.mfma:
        far = {4: 8, 8: 12}[p.passes]
        if c.mfma:
            if p.wr & c.srcAB:
                n = max(n, far)
            if p.wr & c.srcC:
                if not (p.wr == c.srcC and p.passes == c.passes):
                    n = max(n, far - 2)
            elif p.wr & c.wr:
                n = max(n, far)
        else:
            if p.wr & (c.rd | c.wr):
                n = max(n, far)
            if c.valu and (p.srcC & c.wr):
                n = max(n, {4: 3, 8: 7}[p.passes])
    if p.salu and 'm0' in p.wr and getattr(c, 'ldsdma', False):
        n = max(n, 1)
    if p.vmem and getattr(p, 'store_wide', False) and (p.data & c.wr):
        n = max(n, 2)
    return n


def pad(lines):
    ins = [Ins(l) for l in lines]
    out = []

    def deficit(hist, c):
        d = 0
        dist = 0
        for p in reversed(hist):
            if dist > 24:
                break
            k = need(p, c)
            if k > dist:
                d = max(d, k - dist)
            dist += p.states()
        return d

    for c in ins:
        d = deficit(out, c) if c.mn else 0
        while d > 0:
            k = min(d, 16)
            out.append(Ins('  s_nop %d' % (k - 1)))
            d -= k
        out.append(c)
    changed = True
    while changed:
        changed = False
        labels = {i.text.split(';')[0].strip()[:-1]: k for k, i in enumerate(out) if i.label}
        for k, i in enumerate(out):
            if i.mn.startswith(('s_cbranch', 's_branch')):
                tgt = labels[i.ops[0]]
                hist = list(out[max(0, k - 40):k + 1])
                worst = 0
                base = len(hist)
                for c in out[tgt:tgt + 30]:
                    if c.mn:
                        dist = sum(x.states() for x in hist[base:])
                        dd = 0
                        for p in reversed(hist[:base]):
                            kk = need(p, c)
                            if kk > dist:
                                dd = max(dd, kk - dist)
                            dist += p.states()
                            if dist > 24:
                                break
                        worst = max(worst, dd)
                        if c.mn.startswith(('s_branch', 's_endpgm')):
                            break
                    hist.append(c)
                if worst > 0:
                    out.insert(k, Ins('  s_nop %d' % (worst - 1)))
                    changed = True
                    break
    return [i.text for i in out]


class Builder:
    def __init__(self):
        self.lines = []

    def __call__(self, s):
        for l in s.strip('\n').split('\n'):
            l = l.strip()
            if not l:
                continue
            if l.endswith(':'):
                self.lines.append(l)
            else:
                self.lines.append('  ' + l)

    def label(self, name):
        self.lines.append(name + ':')

    def text(self):
        return '\n'.join(pad(self.lines))


def vr(b, n=1):
    return 'v%d' % b if n == 1 else 'v[%d:%d]' % (b, b + n - 1)


def sr(b, n=1):
    return 's%d' % b if n == 1 else 's[%d:%d]' % (b, b + n - 1)


def fhex(x):
    import struct
    return '0x%08x' % struct.unpack('<I', struct.pack('<f', x))[0]
```

```python
import math
from asmlib import Builder, vr, sr, fhex
from gen import *

K1_CONV, K1_WF = 256, 224
K1_WGS = K1_CONV + K1_WF
KB = 256
HB = KB + 20480
K1_LDS = HB + 4 * 6528


def srd(b, d, base_lo, base_hi, nbytes):
    b('s_mov_b32 s%d, s%d' % (d, base_lo))
    b('s_and_b32 s%d, s%d, 0xffff' % (d + 1, base_hi))
    b('s_mov_b32 s%d, %d' % (d + 2, nbytes))
    b('s_mov_b32 s%d, 0x20000' % (d + 3))


def k1():
    b = Builder()
    b('s_cmp_ge_u32 s2, %d' % K1_WGS)
    b('s_cbranch_scc1 K1_END')
    b('s_load_dwordx2 s[4:5], s[0:1], %d' % KA['ws'])
    b('v_and_b32 v1, 63, v0')
    b('s_cmp_ge_u32 s2, %d' % K1_CONV)
    b('s_cbranch_scc1 K1_FOLD')
    b('s_load_dwordx2 s[8:9], s[0:1], %d' % KA['dsk'])
    b('s_and_b32 s6, s2, 7\ns_lshl_b32 s6, s6, 5\ns_lshr_b32 s7, s2, 3\ns_add_u32 s6, s6, s7\ns_lshl_b32 s6, s6, 1')
    b('v_lshrrev_b32 v2, 6, v0')
    b('v_readfirstlane_b32 s33, v2')
    b('v_lshrrev_b32 v2, 2, v0')
    b('v_lshlrev_b32 v2, 14, v2')
    b('v_and_b32 v3, 3, v0')
    b('v_lshl_add_u32 v2, v3, 4, v2')
    b('s_lshl_b32 s7, s6, 5')
    b('v_add_u32 v2, s7, v2')
    b('v_bfe_u32 v3, v0, 1, 1')
    b('v_add_u32 v37, s6, v3')
    b('v_lshlrev_b32 v38, 2, v37')
    b('v_add_u32 v39, %d, v38' % 2048)
    b('v_add_u32 v48, %d, v38' % (2048 + 8192))
    b('v_lshlrev_b32 v49, 1, v37')
    b('v_lshlrev_b32 v50, 4, v1')
    b('s_waitcnt lgkmcnt(0)')
    b(add64(10, 4, hex(WS_LNT)))
    b(add64(12, 4, hex(WS_LNT + 0x100000)))
    b(add64(14, 4, hex(WS_XT)))
    b(add64(16, 4, hex(WS_XT + 0x100000)))
    b('global_load_dwordx4 v[4:7], v2, s[10:11]')
    b('global_load_dwordx4 v[8:11], v2, s[12:13]')
    for q in range(4):
        if q:
            b(add64(18, 4, str(12288 * q)))
        base = 's[18:19]' if q else 's[4:5]'
        b('global_load_dword v%d, v39, %s offset:-2048' % (20 + q, base))
        b('global_load_dword v%d, v39, %s' % (24 + q, base))
        b('global_load_dword v%d, v39, %s offset:2048' % (28 + q, base))
        b('global_load_dword v%d, v48, %s' % (32 + q, base))
    b('s_mul_i32 s7, s6, 8704')
    b('s_add_u32 s7, s7, %d' % (WS_KC - KB))
    b(add64(20, 4, 's7'))
    srd(b, 24, 20, 21, 17408 + KB)
    b('s_lshl_b32 s34, s33, 10')
    b('s_add_u32 s34, s34, %d' % KB)
    for i in range(5):
        b('s_mov_b32 m0, s34')
        b('buffer_load_dwordx4 v50, s[24:27], s34 offen lds')
        if i < 4:
            b('s_add_u32 s34, s34, 4096')
    b('global_load_ushort v36, v49, s[8:9]')
    b('global_load_dwordx4 v[12:15], v2, s[14:15]')
    b('global_load_dwordx4 v[16:19], v2, s[16:17]')
    b('v_min_u32 v51, 254, v0')
    b('v_lshlrev_b32 v51, 3, v51')
    b('v_mov_b32 v52, 0\nv_mov_b32 v53, 0')
    for i in range(4):
        b('ds_write_b64 v51, v[52:53] offset:%d' % (HB + 6528 * i))
    b('v_mul_u32_u24 v51, 13056, v3')
    b('ds_write_b32 v51, v52 offset:%d' % (HB + 6528 + 2040))
    b('v_lshrrev_b32 v54, 4, v0')
    b('v_mul_u32_u24 v54, 136, v54')
    b('v_add_u32 v54, v54, v51')
    b('v_bfe_u32 v55, v0, 2, 2')
    b('v_lshl_add_u32 v54, v55, 5, v54')
    b('v_and_b32 v55, 1, v0')
    b('v_lshl_add_u32 v54, v55, 4, v54')
    b('v_and_b32 v55, 13, v0')
    b('v_cmp_eq_u32 vcc, 13, v55')
    b('v_cndmask_b32 v55, 0, 8, vcc')
    b('v_add_u32 v55, v55, v54')
    b('s_lshr_b32 s35, s33, 1')
    b('s_and_b32 s36, s33, 1')
    b('v_and_b32 v58, 1, v1')
    b('v_bfe_u32 v59, v1, 1, 4')
    b('v_lshrrev_b32 v60, 5, v1')
    b('s_mul_i32 s37, s35, 8704')
    b('s_lshl_b32 s38, s36, 10')
    b('s_sub_u32 s37, s37, s38')
    b('s_add_u32 s37, s37, %d' % (KB + 2 * 2092 - 2048 - 32))
    b('v_mul_u32_u24 v56, 4224, v58')
    b('v_lshl_add_u32 v56, v60, 4, v56')
    b('v_lshlrev_b32 v61, 3, v59')
    b('v_sub_u32 v56, v56, v61')
    b('v_add_u32 v56, s37, v56')
    b('s_mul_i32 s37, s35, 13056')
    b('s_mul_i32 s38, s36, %d' % (8 * 136))
    b('s_sub_u32 s37, s37, s38')
    b('s_add_u32 s37, s37, %d' % (HB + 15 * 136))
    b('v_mul_u32_u24 v57, 6528, v58')
    b('v_lshl_add_u32 v57, v60, 4, v57')
    b('v_mul_u32_u24 v61, 136, v59')
    b('v_add3_u32 v57, v57, v61, s37')
    b('s_mul_i32 s37, s33, 8704')
    b('v_mul_u32_u24 v62, 272, v59')
    b('v_lshl_add_u32 v62, v60, 5, v62')
    b('v_xor_b32 v61, 1, v58')
    b('v_lshl_add_u32 v62, v61, 3, v62')
    b('v_add_u32 v62, s37, v62')
    b('v_lshrrev_b32 v61, 2, v0')
    b('v_lshlrev_b32 v61, 4, v61')
    b('v_and_b32 v63, 1, v0')
    b('v_lshl_add_u32 v61, v63, 3, v61')
    b('v_lshrrev_b32 v63, 6, v61')
    b('v_lshl_add_u32 v63, v63, 2, v61')
    b('v_lshlrev_b32 v63, 2, v63')
    b('v_mul_u32_u24 v58, %d, v3' % (2 * 8704))
    b('v_add_u32 v63, v63, v58')
    b('v_lshrrev_b32 v2, 7, v61')
    b('v_lshlrev_b32 v2, 17, v2')
    b('v_lshl_add_u32 v2, v37, 8, v2')
    b('v_and_b32 v58, 127, v61')
    b('v_lshlrev_b32 v58, 1, v58')
    b('v_and_b32 v59, 3, v37')
    b('v_lshlrev_b32 v59, 6, v59')
    b('v_xor_b32 v58, v58, v59')
    b('v_bfe_u32 v59, v37, 3, 1')
    b('v_lshlrev_b32 v59, 5, v59')
    b('v_xor_b32 v58, v58, v59')
    b('v_add_u32 v2, v2, v58')
    for i in range(32):
        b('v_mov_b32 v%d, 0' % (64 + i))
    b('s_waitcnt vmcnt(8)')
    for s in range(4):
        b(pk('add', 20 + 4 * s, [('p', 20 + 4 * s), ('p', 22 + 4 * s)]))
    for s in range(4):
        b('v_add_f32 v%d, v%d, v%d' % (20 + s, 20 + 4 * s, 21 + 4 * s))
    E(b, rnd_pair(20, 24) + rnd_pair(22, 25))
    b('v_add_f32 v21, 1.0, v21')
    E(b, rnd_bf16(21))
    b(add64(18, 4, hex(WS_GB)))
    b('global_store_dword v38, v23, s[18:19]')
    for i in range(2):
        for k in range(4):
            E(b, unpack(96 + 2 * k, 4 + 4 * i + k))
        for k in range(4):
            r = 96 + 2 * k
            if EXACT['h']:
                b(pk('mul', r, [('p', r), ('b', 21)]))
                E(b, rnd_pair(r, 104 + (k & 1)))
                b(pk('add', r, [('p', r), ('b', 20)]))
            else:
                b(pk('fma', r, [('p', r), ('b', 21), ('b', 20)]))
        for k in range(4):
            b('v_cvt_pk_bf16_f32 v%d, v%d, v%d' % (40 + 4 * i + k, 96 + 2 * k, 97 + 2 * k))
        o = HB + 2040 + 2176 * i
        h = 40 + 4 * i
        b('ds_write_b64 v54, %s offset:%d' % (vr(h, 2), o))
        b('ds_write_b64 v54, %s offset:%d' % (vr(h + 2, 2), o + 8))
        b('ds_write_b32 v54, v%d offset:%d' % (h, o + 6528 + 4))
        b('ds_write2_b32 v54, v%d, v%d offset0:2 offset1:3' % (h + 1, h + 2) if False else
          'ds_write_b32 v54, v%d offset:%d' % (h + 1, o + 6528 + 8))
        b('ds_write_b32 v54, v%d offset:%d' % (h + 2, o + 6528 + 12))
        b('ds_write_b32 v55, v%d offset:%d' % (h + 3, o + 6528 + 16))
    b('s_waitcnt vmcnt(4) lgkmcnt(0)')
    b('s_barrier')

    FB = 96

    def reads(sig):
        f = FB + 16 * (sig & 3)
        oa = (5 - sig) * 32
        ob = (136 + 2 * (48 - 16 * sig)) if sig < 4 else 2 * (48 - 16 * (sig - 4))
        return ['ds_read_b64 %s, v56 offset:%d' % (vr(f, 2), oa + 2048),
                'ds_read_b64 %s, v56 offset:%d' % (vr(f + 2, 2), oa + 2056),
                'ds_read_b64 %s, v57 offset:%d' % (vr(f + 12, 2), ob + 2176),
                'ds_read_b64 %s, v57 offset:%d' % (vr(f + 14, 2), ob + 2184),
                'ds_read_b64 %s, v57 offset:%d' % (vr(f + 8, 2), ob),
                'ds_read_b64 %s, v57 offset:%d' % (vr(f + 10, 2), ob + 8),
                'ds_read_b64 %s, v56 offset:%d' % (vr(f + 4, 2), oa),
                'ds_read_b64 %s, v56 offset:%d' % (vr(f + 6, 2), oa + 8)]
    E(b, reads(4) + reads(5))
    b('s_mov_b32 s37, 8')
    b.label('K1_LOOP')
    b('v_subrev_u32 v56, 128, v56')
    b('v_subrev_u32 v57, 136, v57')
    for s in range(4):
        f = FB + 16 * s
        r = reads(s + 2)
        b('s_waitcnt lgkmcnt(8)')
        b('v_mfma_f32_32x32x16_bf16 v[80:95], %s, %s, v[80:95]' % (vr(f, 4), vr(f + 12, 4)))
        E(b, r[0:3])
        b('v_mfma_f32_32x32x16_bf16 v[64:79], %s, %s, v[64:79]' % (vr(f, 4), vr(f + 8, 4)))
        E(b, r[3:6])
        b('v_mfma_f32_32x32x16_bf16 v[80:95], %s, %s, v[80:95]' % (vr(f + 4, 4), vr(f + 8, 4)))
        E(b, r[6:8])
    b('s_sub_u32 s37, s37, 1')
    b('s_cmp_lg_u32 s37, 0')
    b('s_cbranch_scc1 K1_LOOP')
    b('s_waitcnt lgkmcnt(0)')
    b('s_barrier')
    for nt in range(2):
        for rho in range(0, 16, 2):
            b('ds_write_b64 v62, %s offset:%d' % (vr(64 + 16 * nt + rho, 2), 4352 * nt + 64 * (rho >> 2) + 16 * ((rho >> 1) & 1)))
    b(add64(10, 4, hex(WS_X1T)))
    b(add64(12, 4, hex(WS_X1T + 0x100000)))
    b('s_waitcnt vmcnt(0) lgkmcnt(0)')
    b('s_barrier')
    for i in range(2):
        for part in range(2):
            for k in range(2):
                b('ds_read_b128 %s, v63 offset:%d' % (vr(64 + 16 * i + 8 * part + 4 * k, 4), 4352 * i + 8704 * part + 16 * k))
    b('v_lshlrev_b32 v36, 16, v36')
    for i in range(2):
        HF_, XF_ = 96, 104
        for k in range(4):
            E(b, unpack(HF_ + 2 * k, 40 + 4 * i + k))
            E(b, unpack(XF_ + 2 * k, 12 + 4 * i + k))
        if EXACT['x1']:
            for k in range(4):
                b(pk('mul', HF_ + 2 * k, [('p', HF_ + 2 * k), ('b', 36)]))
                E(b, rnd_pair(HF_ + 2 * k, 112 + (k & 1)))
        b('s_waitcnt lgkmcnt(%d)' % (4 - 4 * i))
        Y = 64 + 16 * i
        for k in range(4):
            y = Y + 2 * k
            b(pk('add', y, [('p', y), ('p', y + 8)]))
            if EXACT['x1']:
                E(b, rnd_pair(y, 112 + (k & 1)))
                b(pk('add', y, [('p', y), ('p', HF_ + 2 * k)]))
                E(b, rnd_pair(y, 112 + (k & 1)))
                b(pk('mul', y, [('p', y), ('b', 22)]))
                E(b, rnd_pair(y, 112 + (k & 1)))
                b(pk('add', y, [('p', y), ('p', XF_ + 2 * k)]))
            else:
                b(pk('fma', y, [('p', HF_ + 2 * k), ('b', 36), ('p', y)]))
                b(pk('fma', y, [('p', y), ('b', 22), ('p', XF_ + 2 * k)]))
            b('v_cvt_pk_bf16_f32 v%d, v%d, v%d' % (116 + 4 * i + k, y, y + 1))
        b('global_store_dwordx4 v2, %s, s[%d:%d]' % (vr(116 + 4 * i, 4), 10 + 2 * i, 11 + 2 * i))
    b('s_endpgm')

    b.label('K1_FOLD')
    b('s_load_dwordx4 s[8:11], s[0:1], %d' % KA['wg'])
    b('s_sub_u32 s6, s2, %d' % K1_CONV)
    b('s_and_b32 s12, s6, 3')
    b('s_bfe_u32 s13, s6, 0x10002')
    b('s_lshr_b32 s14, s6, 3')
    b('v_lshrrev_b32 v3, 3, v0')
    b('v_and_b32 v52, 7, v0')
    b('s_lshl_b32 s15, s12, 7')
    b('v_lshl_add_u32 v53, v3, 2, s15')
    b('v_mul_u32_u24 v2, 3584, v53')
    b('v_lshl_add_u32 v2, v52, 4, v2')
    b('s_lshl_b32 s15, s14, 7')
    b('v_add_u32 v2, s15, v2')
    b('v_add_u32 v54, %d, v2' % (2 * 3584))
    b('v_lshlrev_b32 v53, 2, v53')
    b('v_add_u32 v53, 7168, v53')
    b('s_waitcnt lgkmcnt(0)')
    b('s_cmp_eq_u32 s13, 0')
    b('s_cselect_b32 s8, s8, s10')
    b('s_cselect_b32 s9, s9, s11')
    b('global_load_dwordx4 v[4:7], v2, s[8:9]')
    b('global_load_dwordx4 v[8:11], v2, s[8:9] offset:3584')
    b('global_load_dwordx4 v[12:15], v54, s[8:9]')
    b('global_load_dwordx4 v[16:19], v54, s[8:9] offset:3584')
    for q in range(4):
        if q:
            b(add64(18, 4, str(12288 * q)))
        base = 's[18:19]' if q else 's[4:5]'
        b('global_load_dwordx4 %s, v53, %s offset:1024' % (vr(20 + 4 * q, 4), base))
        b('global_load_dwordx4 %s, v53, %s offset:-1024' % (vr(36 + 4 * q, 4), base))
    b('v_lshrrev_b32 v54, 1, v52')
    b('v_mul_u32_u24 v54, 4112, v54')
    b('v_lshrrev_b32 v55, 1, v3')
    b('v_lshl_add_u32 v54, v55, 8, v54')
    b('v_and_b32 v55, 1, v52')
    b('v_lshl_add_u32 v54, v55, 6, v54')
    b('v_and_b32 v55, 1, v3')
    b('v_lshl_add_u32 v54, v55, 3, v54')
    b('v_lshlrev_b32 v55, 9, v3')
    b('v_lshl_add_u32 v55, v52, 5, v55')
    b('v_lshrrev_b32 v2, 4, v0')
    b('v_lshlrev_b32 v2, 9, v2')
    b('v_and_b32 v56, 15, v0')
    b('v_lshl_add_u32 v2, v56, 4, v2')
    b('s_lshl_b32 s15, s14, 17')
    b('s_lshl_b32 s16, s12, 13')
    b('s_add_u32 s15, s15, s16')
    b('s_lshl_b32 s16, s13, 8')
    b('s_add_u32 s15, s15, s16')
    b('s_add_u32 s15, s15, %s' % hex(WS_WF))
    b(add64(20, 4, 's15'))
    b('v_lshlrev_b32 v57, 4, v0')
    b('s_waitcnt vmcnt(0)')
    for base in (20, 36):
        for k in (0, 2):
            b(pk('add', base + k, [('p', base + k), ('p', base + 4 + k)]))
            b(pk('add', base + 8 + k, [('p', base + 8 + k), ('p', base + 12 + k)]))
        for k in (0, 2):
            b(pk('add', base + k, [('p', base + k), ('p', base + 8 + k)]))
        E(b, rnd_pair(base, 58) + rnd_pair(base + 2, 59))
    b(pk('add', 20, [('p', 20), ('k', '1.0')]))
    b(pk('add', 22, [('p', 22), ('k', '1.0')]))
    E(b, rnd_pair(20, 58) + rnd_pair(22, 59))
    SC, CS, BI = 60, 92, 100
    for i in range(4):
        for k in range(4):
            E(b, unpack(24 + 2 * k, 4 + 4 * i + k))
        for k in range(4):
            b(pk('mul', SC + 8 * i + 2 * k, [('p', 24 + 2 * k), ('b', 20 + i)]))
            if i == 0:
                b(pk('mul', BI + 2 * k, [('p', 24 + 2 * k), ('b', 36 + i)]))
            else:
                b(pk('fma', BI + 2 * k, [('p', 24 + 2 * k), ('b', 36 + i), ('p', BI + 2 * k)]))
    for k in range(4):
        b(pk('add', CS + 2 * k, [('p', SC + 2 * k), ('p', SC + 8 + 2 * k)]))
        b(pk('add', 24 + 2 * k, [('p', SC + 16 + 2 * k), ('p', SC + 24 + 2 * k)]))
    for k in range(4):
        b(pk('add', CS + 2 * k, [('p', CS + 2 * k), ('p', 24 + 2 * k)]))
    for j in range(8):
        t = 4 + 2 * (j & 1)
        b('v_cvt_pk_bf16_f32 v%d, v%d, v%d' % (t, SC + j, SC + 8 + j))
        b('v_cvt_pk_bf16_f32 v%d, v%d, v%d' % (t + 1, SC + 16 + j, SC + 24 + j))
        b('ds_write_b64 v54, %s offset:%d' % (vr(t, 2), 128 * (j >> 2) + 16 * (j & 3)))
    PS = 16448
    b('ds_write_b128 v55, %s offset:%d' % (vr(CS, 4), PS))
    b('ds_write_b128 v55, %s offset:%d' % (vr(CS + 4, 4), PS + 16))
    b('ds_write_b128 v55, %s offset:%d' % (vr(BI, 4), PS + 256))
    b('ds_write_b128 v55, %s offset:%d' % (vr(BI + 4, 4), PS + 272))
    b('v_readfirstlane_b32 s22, v0')
    b('s_waitcnt lgkmcnt(0)')
    b('s_barrier')
    for i in range(4):
        b('ds_read_b128 %s, v57 offset:%d' % (vr(4 + 4 * i, 4), 4112 * i))
    for i in range(4):
        b('s_waitcnt lgkmcnt(%d)' % (3 - i))
        b('global_store_dwordx4 v2, %s, s[20:21]' % vr(4 + 4 * i, 4))
        if i < 3:
            b('s_add_u32 s20, s20, 32768\ns_addc_u32 s21, s21, 0')
    b('s_cmp_ge_u32 s22, 128')
    b('s_cbranch_scc1 K1_END')
    b('v_lshlrev_b32 v3, 2, v0')
    for k in range(32):
        b('ds_read_b32 v%d, v3 offset:%d' % (24 + k, PS + 512 * k))
    b('v_bfe_u32 v2, v0, 3, 3')
    b('v_lshlrev_b32 v2, 4, v2')
    b('v_and_b32 v3, 7, v0')
    b('v_add_u32 v2, v2, v3')
    b('v_lshrrev_b32 v3, 6, v0')
    b('v_mul_u32_u24 v3, 3584, v3')
    b('v_add_lshl_u32 v2, v2, v3, 2')
    b('s_lshl_b32 s15, s14, 9')
    b('s_lshl_b32 s16, s13, 5')
    b('s_add_u32 s15, s15, s16')
    b('s_mul_i32 s16, s12, %d' % (2 * 3584 * 4))
    b('s_add_u32 s15, s15, s16')
    b('s_add_u32 s15, s15, %s' % hex(WS_CB))
    b(add64(20, 4, 's15'))
    b('s_waitcnt lgkmcnt(0)')
    for w in (16, 8, 4, 2):
        for k in range(0, w, 2):
            b(pk('add', 24 + k, [('p', 24 + k), ('p', 24 + w + k)]))
    b('v_add_f32 v24, v24, v25')
    b('global_store_dword v2, v24, s[20:21]')
    b.label('K1_END')
    b('s_endpgm')
    return b.text(), 160, 48


K2_WGS = 256
ST = 131072
CBL = ST + 2048
K2_LDS = CBL + 7 * 32 * 8
PF = 3


def k2():
    b = Builder()
    b('s_cmp_ge_u32 s2, %d' % K2_WGS)
    b('s_cbranch_scc1 K2_END')
    b('s_load_dwordx2 s[4:5], s[0:1], %d' % KA['ws'])
    b('v_and_b32 v1, 63, v0')
    b('v_lshrrev_b32 v2, 6, v0')
    b('v_readfirstlane_b32 s33, v2')
    b('s_and_b32 s6, s2, 7')
    b('s_lshr_b32 s7, s2, 3')
    b('s_lshr_b32 s8, s6, 1')
    b('s_lshl_b32 s8, s8, 2')
    b('s_lshr_b32 s9, s7, 3')
    b('s_add_u32 s8, s8, s9')
    b('s_and_b32 s9, s6, 1')
    b('s_lshl_b32 s9, s9, 3')
    b('s_and_b32 s7, s7, 7')
    b('s_add_u32 s9, s9, s7')
    b('s_mul_i32 s9, s9, 7')
    b('v_lshlrev_b32 v2, 4, v1')
    b('s_lshl_b32 s10, s8, 17')
    b('s_add_u32 s10, s10, %s' % hex(WS_X1T))
    b('s_add_u32 s11, s9, s33')
    b('s_lshl_b32 s12, s11, 15')
    b('s_add_u32 s12, s12, %s' % hex(WS_WF))
    b('s_lshl_b32 s34, s33, 11')
    b('s_waitcnt lgkmcnt(0)')
    b(add64(14, 4, 's10'))
    srd(b, 16, 14, 15, 131072)
    b(add64(14, 4, 's12'))
    srd(b, 20, 14, 15, 32768)
    b('s_cmp_eq_u32 s33, 7')
    b('s_cbranch_scc1 K2_STATS')

    W = 128

    def dma(c):
        return ['s_add_u32 s35, s34, %d' % (16384 * c), 's_mov_b32 m0, s35',
                'buffer_load_dwordx4 v2, s[16:19], s35 offen lds',
                'buffer_load_dwordx4 v2, s[16:19], s35 offen offset:1024 lds']

    def wload(c):
        return ['s_movk_i32 s36, %d' % (4096 * c)] + \
               ['buffer_load_dwordx4 %s, v2, s[20:23], s36 offen offset:%d' % (vr(W + 16 * c + 4 * k, 4), 1024 * k) for k in range(4)]
    for c in range(PF):
        E(b, dma(c) + wload(c))
    b('v_lshrrev_b32 v8, 4, v1')
    b('v_bfe_u32 v9, v1, 2, 2')
    b('v_and_b32 v10, 3, v1')
    b('v_lshrrev_b32 v11, 1, v8')
    b('v_lshl_add_u32 v12, v11, 3, v9')
    b('v_lshlrev_b32 v12, 8, v12')
    b('v_lshl_add_u32 v12, v10, 3, v12')
    b('v_xor_b32 v13, v8, v11')
    b('v_and_b32 v13, 1, v13')
    b('v_lshl_add_u32 v12, v13, 5, v12')
    b('v_lshl_add_u32 v4, v9, 6, v12')
    for tt in range(1, 4):
        b('v_xor_b32 v%d, %d, v4' % (4 + tt, 64 * tt))
    XB = 16
    ACC = 64

    def xreads(ks):
        f = XB + 16 * (ks & 1)
        o = (ks & 15) * 4096
        r = []
        for tt in range(4):
            r.append('ds_read_b64_tr_b16 %s, v%d offset:%d' % (vr(f + 4 * tt, 2), 4 + tt, o))
            r.append('ds_read_b64_tr_b16 %s, v%d offset:%d' % (vr(f + 4 * tt + 2, 2), 4 + tt, o + 1024))
        return r
    b('s_waitcnt vmcnt(%d)' % (6 * (PF - 1)))
    b('s_barrier')
    E(b, xreads(0))
    for ks in range(32):
        c = ks >> 2
        if ks & 3 == 3 and ks < 31:
            left = min(PF - 1, 7 - (c + 1))
            b('s_waitcnt vmcnt(%d)' % (6 * left))
            b('s_barrier')
        if ks == 15:
            for tt in range(4):
                b('v_add_u32 v%d, 0x10000, v%d' % (4 + tt, 4 + tt))
        extra = []
        if c + PF < 8:
            if ks & 3 == 0:
                extra = dma(c + PF)
            elif ks & 3 == 1:
                extra = wload(c + PF)
        if ks < 31:
            E(b, xreads(ks + 1))
            b('s_waitcnt lgkmcnt(8)')
        else:
            b('s_waitcnt lgkmcnt(0)')
        f = XB + 16 * (ks & 1)
        for tt in range(4):
            a = vr(ACC + 16 * tt, 16)
            b('v_mfma_f32_32x32x16_bf16 %s, %s, %s, %s' % (a, vr(W + 4 * ks, 4), vr(f + 4 * tt, 4), a if ks else '0'))
            n = (len(extra) + 3 - tt) // 4 if tt < 3 else len(extra)
            n = min(len(extra), 2)
            E(b, extra[:n])
            extra = extra[n:]
        E(b, extra)
    b('s_barrier')
    b('v_and_b32 v8, 31, v1')
    b('s_mul_i32 s35, s33, 256')
    b('s_add_u32 s35, s35, %d' % CBL)
    b('v_lshl_add_u32 v9, v8, 3, s35')
    b('s_mov_b32 s35, %d' % ST)
    b('v_lshl_add_u32 v8, v8, 4, s35')
    b('ds_read_b64 v[16:17], v9')
    for tt in range(4):
        b('ds_read_b128 %s, v8 offset:%d' % (vr(20 + 4 * tt, 4), 512 * tt))
    b('v_mov_b32 v18, 0\nv_mov_b32 v19, 0')
    b('v_cmp_gt_u32 vcc, 32, v1')
    b('s_lshl_b32 s12, s8, 2')
    b('s_mul_i32 s12, s12, 112')
    b('s_add_u32 s12, s12, s11')
    b('s_lshl_b32 s12, s12, 10')
    b('s_add_u32 s12, s12, %s' % hex(WS_HF))
    b(add64(14, 4, 's12'))
    b('s_waitcnt lgkmcnt(0)')
    b('v_cndmask_b32 v16, 0, v16, vcc')
    b('v_cndmask_b32 v17, 0, v17, vcc')
    K0c = -2.0 * math.sqrt(2.0 / math.pi) * LOG2E
    for tt in range(4):
        s = 20 + 4 * tt
        b('v_mov_b32 v%d, v%d' % (40 + 4 * tt, s + 2))
        b('v_and_b32 v%d, 0xffff0000, v%d' % (41 + 4 * tt, s + 1))
        b('v_mov_b32 v%d, 0' % (s + 2))
        b('v_mov_b32 v%d, 0' % (s + 3))
    for tt in range(4):
        a = vr(ACC + 16 * tt, 16)
        b('v_mfma_f32_32x32x16_bf16 %s, v[16:19], %s, %s' % (a, vr(20 + 4 * tt, 4), a))
    for tt in range(4):
        c = 40 + 4 * tt
        b('v_mul_f32 v%d, v%d, v%d' % (c + 1, c + 1, c + 1))
        b('v_mul_f32 v%d, v%d, v%d' % (c + 2, c, c))
        b('v_mul_f32 v%d, %s, v%d' % (c, fhex(K0c), c))
        b('v_mul_f32 v%d, v%d, v%d' % (c + 2, c + 2, c))
        b('v_mul_f32 v%d, %s, v%d' % (c + 2, fhex(0.044715), c + 2))
    T = 128
    for tt in range(4):
        c = 40 + 4 * tt
        g = ACC + 16 * tt
        t = T + 16 * (tt & 1)
        for k in range(4):
            b(pk('mul', t + 2 * k, [('p', g + 2 * k), ('p', g + 2 * k)]))
        for k in range(4):
            b(pk('fma', t + 2 * k, [('p', t + 2 * k), ('b', c + 2), ('b', c)]))
        for k in range(4):
            b(pk('mul', t + 2 * k, [('p', t + 2 * k), ('p', g + 2 * k)]))
        for k in range(8):
            b('v_exp_f32 v%d, v%d' % (t + k, t + k))
            if k < 4:
                b(pk('mul', g + 2 * k, [('p', g + 2 * k), ('p', g + 8 + 2 * k)]))
        for k in range(4):
            b(pk('fma', t + 2 * k, [('p', t + 2 * k), ('b', c + 1), ('b', c + 1)]))
        for k in range(8):
            b('v_rcp_f32 v%d, v%d' % (t + k, t + k))
        for k in range(4):
            b(pk('mul', g + 2 * k, [('p', g + 2 * k), ('p', t + 2 * k)]))
        for k in range(4):
            b('v_cvt_pk_bf16_f32 v%d, v%d, v%d' % (t + 8 + k, g + 2 * k, g + 2 * k + 1))
        b('global_store_dwordx4 v2, %s, s[14:15]' % vr(t + 8, 4))
        if tt < 3:
            b('s_add_u32 s14, s14, %d\ns_addc_u32 s15, s15, 0' % 114688)
    b('s_endpgm')

    b.label('K2_STATS')
    for c in range(PF):
        E(b, dma(c))
    b('s_lshl_b32 s12, s9, 7')
    b('s_add_u32 s12, s12, %s' % hex(WS_CB))
    b(add64(14, 4, 's12'))
    b('v_min_u32 v3, 55, v1')
    b('v_lshlrev_b32 v3, 4, v3')
    for q in range(4):
        for w in range(2):
            if q or w:
                b('s_add_u32 s14, s14, %d\ns_addc_u32 s15, s15, 0' % (3584 * 4))
            b('global_load_dwordx4 %s, v3, s[14:15]' % vr(160 + 16 * w + 4 * q, 4))
    b('v_lshrrev_b32 v12, 4, v1')
    b('v_bfe_u32 v13, v1, 2, 2')
    b('v_and_b32 v14, 3, v1')
    b('v_lshl_add_u32 v15, v12, 3, v13')
    b('v_lshlrev_b32 v15, 8, v15')
    b('v_lshl_add_u32 v15, v14, 3, v15')
    b('v_and_b32 v14, 1, v12')
    b('v_lshl_add_u32 v14, v13, 1, v14')
    b('v_lshl_add_u32 v4, v14, 5, v15')
    for tt in range(1, 8):
        b('v_xor_b32 v%d, %d, v4' % (4 + tt, 32 * tt))
    for i in range(4):
        b('v_mov_b32 v%d, 0x3f803f80' % (56 + i))
    SB = 16

    def sreads(u):
        kk, hh = u >> 1, u & 1
        f = SB + 16 * (u & 1)
        o = (kk & 7) * 8192
        r = []
        for j in range(4):
            r.append('ds_read_b64_tr_b16 %s, v%d offset:%d' % (vr(f + 4 * j, 2), 4 + 4 * hh + j, o))
            r.append('ds_read_b64_tr_b16 %s, v%d offset:%d' % (vr(f + 4 * j + 2, 2), 4 + 4 * hh + j, o + 1024))
        return r
    b('s_waitcnt vmcnt(%d)' % (2 * (PF - 1) + 8))
    b('s_barrier')
    E(b, sreads(0))
    for u in range(32):
        c = u >> 2
        if u & 3 == 3 and u < 31:
            left = min(PF - 1, 7 - (c + 1))
            extra8 = 8 if c + 1 < PF else 0
            b('s_waitcnt vmcnt(%d)' % (2 * left + (8 if c + 1 < PF - 0 and False else 0)))
            b('s_barrier')
        if u == 15:
            for tt in range(8):
                b('v_add_u32 v%d, 0x10000, v%d' % (4 + tt, 4 + tt))
        if c + PF < 8 and u & 3 == 0:
            E(b, dma(c + PF))
        if u < 31:
            E(b, sreads(u + 1))
            b('s_waitcnt lgkmcnt(8)')
        else:
            b('s_waitcnt lgkmcnt(0)')
        f = SB + 16 * (u & 1)
        for j in range(4):
            tt = 4 * (u & 1) + j
            aq, as_ = vr(64 + 8 * tt, 4), vr(68 + 8 * tt, 4)
            first = u < 2
            b('v_mfma_f32_16x16x32_bf16 %s, %s, %s, %s' % (aq, vr(f + 4 * j, 4), vr(f + 4 * j, 4), '0' if first else aq))
            b('v_mfma_f32_16x16x32_bf16 %s, v[56:59], %s, %s' % (as_, vr(f + 4 * j, 4), '0' if first else as_))
    b('s_waitcnt vmcnt(0)')
    for w in range(2):
        p = 160 + 16 * w
        for k in (0, 2):
            b(pk('add', p + k, [('p', p + k), ('p', p + 4 + k)]))
            b(pk('add', p + 8 + k, [('p', p + 8 + k), ('p', p + 12 + k)]))
        for k in (0, 2):
            b(pk('add', p + k, [('p', p + k), ('p', p + 8 + k)]))
    b('v_min_u32 v3, 55, v1')
    b('v_lshrrev_b32 v12, 3, v3')
    b('v_lshlrev_b32 v12, 5, v12')
    b('v_bfe_u32 v13, v3, 2, 1')
    b('v_lshl_add_u32 v12, v13, 2, v12')
    b('v_bfe_u32 v13, v3, 1, 1')
    b('v_lshl_add_u32 v12, v13, 4, v12')
    b('v_and_b32 v13, 1, v3')
    b('v_lshl_add_u32 v12, v13, 3, v12')
    b('v_lshlrev_b32 v12, 3, v12')
    b('v_add_u32 v12, %d, v12' % CBL)
    for j in range(4):
        for w in range(2):
            x = 160 + 16 * w + j
            t = 16 + 2 * j + w
            b('v_cvt_pk_bf16_f32 v%d, v%d, v%d' % (t, x, x))
            b('v_and_b32 v%d, 0xffff0000, v%d' % (x + 4, t))
            b('v_sub_f32 v%d, v%d, v%d' % (x, x, x + 4))
            b('v_cvt_pk_bf16_f32 v%d, v%d, v%d' % (t, x + 4, x))
    b('ds_write_b128 v12, v[16:19]')
    b('ds_write_b128 v12, v[20:23] offset:16')
    b('v_and_b32 v13, 3, v1')
    b('v_cmp_eq_u32 s[40:41], 1, v13')
    b('v_cmp_eq_u32 s[42:43], 2, v13')
    b('v_cmp_eq_u32 s[44:45], 3, v13')
    b('v_bfe_u32 v13, v1, 2, 2')
    b('v_lshrrev_b32 v14, 4, v1')
    b('v_cmp_eq_u32 vcc, v13, v14')
    b('v_and_b32 v13, 15, v1')
    b('v_lshlrev_b32 v13, 4, v13')
    b('v_add_u32 v13, %d, v13' % ST)
    b('v_mov_b32 v14, %s' % fhex(1.0 / 512))
    Q = [64 + 8 * tt for tt in range(8)]
    for q in Q:
        b('v_cndmask_b32 v%d, v%d, v%d, s[40:41]' % (q, q, q + 1))
    for q in Q:
        b('v_cndmask_b32 v%d, v%d, v%d, s[42:43]' % (q, q, q + 2))
    for q in Q:
        b('v_cndmask_b32 v%d, v%d, v%d, s[44:45]' % (q, q, q + 3))
    for q in Q:
        b('v_mul_f32 v%d, v%d, v14' % (q + 4, q + 4))
        b('v_mul_f32 v%d, v%d, v14' % (q, q))
    for q in Q:
        b('v_fma_f32 v%d, -v%d, v%d, v%d' % (q, q + 4, q + 4, q))
    for q in Q:
        b('v_max_f32 v%d, 0, v%d' % (q, q))
    for q in Q:
        E(b, rnd_bf16(q))
    for q in Q:
        b('v_add_f32 v%d, %s, v%d' % (q, fhex(1e-5), q))
    for q in Q:
        E(b, rnd_bf16(q))
    for q in Q:
        b('v_sqrt_f32 v%d, v%d' % (q, q))
    for q in Q:
        b('v_cvt_pk_bf16_f32 v%d, v%d, v%d' % (q + 1, q, q))
        b('v_cvt_pk_bf16_f32 v%d, -v%d, -v%d' % (q, q + 4, q + 4))
    for q in Q:
        b('v_lshlrev_b32 v%d, 16, v%d' % (q + 2, q + 1))
    for q in Q:
        b('v_rcp_f32 v%d, v%d' % (q + 2, q + 2))
    b('s_and_saveexec_b64 s[40:41], vcc')
    for tt, q in enumerate(Q):
        b('ds_write_b128 v13, %s offset:%d' % (vr(q, 4), 256 * tt))
    b('s_mov_b64 exec, s[40:41]')
    b('s_waitcnt lgkmcnt(0)')
    b('s_barrier')
    b.label('K2_END')
    b('s_endpgm')
    return b.text(), 256, 48


K3_WGS = 256
K3_LDS = 4 * 3 * 4096
DEPTH = 11


def k3():
    b = Builder()
    b('s_cmp_ge_u32 s2, %d' % K3_WGS)
    b('s_cbranch_scc1 K3_END')
    b('s_load_dwordx2 s[4:5], s[0:1], %d' % KA['ws'])
    b('s_load_dwordx2 s[6:7], s[0:1], %d' % KA['out'])
    b('v_and_b32 v1, 63, v0')
    b('v_lshrrev_b32 v2, 6, v0')
    b('v_readfirstlane_b32 s33, v2')
    b('s_and_b32 s8, s2, 7')
    b('s_lshr_b32 s9, s2, 3')
    b('s_lshr_b32 s10, s8, 1')
    b('s_lshl_b32 s10, s10, 3')
    b('s_lshr_b32 s11, s9, 2')
    b('s_add_u32 s10, s10, s11')
    b('s_and_b32 s11, s8, 1')
    b('s_lshl_b32 s11, s11, 2')
    b('s_and_b32 s9, s9, 3')
    b('s_add_u32 s11, s11, s9')
    b('v_lshlrev_b32 v2, 4, v1')
    b('v_add_u32 v3, %d, v2' % 114688)
    b('s_mul_i32 s12, s33, %d' % (28 * 1024))
    b('s_mul_i32 s13, s10, %d' % (2 * 114688))
    b('s_add_u32 s13, s13, s12')
    b('s_add_u32 s13, s13, %s' % hex(WS_HF))
    b('s_mul_i32 s14, s11, %d' % (2 * 114688))
    b('s_add_u32 s14, s14, s12')
    b('s_add_u32 s14, s14, %s' % hex(WS_WD))
    b('s_waitcnt lgkmcnt(0)')
    b(add64(16, 4, 's13'))
    srd(b, 20, 16, 17, 114688 + 28 * 1024)
    b(add64(16, 4, 's14'))
    srd(b, 24, 16, 17, 114688 + 28 * 1024)
    FB = 80
    ACC = 16

    def loads(ks):
        f = FB + 16 * (ks % DEPTH)
        r = []
        if ks & 3 == 0:
            r.append('s_movk_i32 s34, %d' % (1024 * ks))
        o = 1024 * (ks & 3)
        r += ['buffer_load_dwordx4 %s, v2, s[24:27], s34 offen offset:%d' % (vr(f, 4), o),
              'buffer_load_dwordx4 %s, v2, s[20:23], s34 offen offset:%d' % (vr(f + 8, 4), o),
              'buffer_load_dwordx4 %s, v3, s[24:27], s34 offen offset:%d' % (vr(f + 4, 4), o),
              'buffer_load_dwordx4 %s, v3, s[20:23], s34 offen offset:%d' % (vr(f + 12, 4), o)]
        return r
    for ks in range(DEPTH):
        E(b, loads(ks))
    for ks in range(28):
        f = FB + 16 * (ks % DEPTH)
        left = min(DEPTH - 1, 27 - ks)
        b('s_waitcnt vmcnt(%d)' % (4 * left))
        for dt in range(2):
            for tt in range(2):
                a = vr(ACC + 16 * (2 * tt + dt), 16)
                b('v_mfma_f32_32x32x16_bf16 %s, %s, %s, %s' % (a, vr(f + 4 * dt, 4), vr(f + 8 + 4 * tt, 4), a if ks else '0'))
        if ks + DEPTH < 28:
            E(b, loads(ks + DEPTH))
    b('s_and_b32 s35, s33, 1')
    b('s_lshr_b32 s36, s33, 1')
    b('s_lshl_b32 s37, s11, 6')
    b('s_lshl_b32 s38, s35, 5')
    b('s_add_u32 s37, s37, s38')
    b('s_lshl_b32 s38, s10, 6')
    b('s_lshl_b32 s39, s36, 5')
    b('s_add_u32 s38, s38, s39')
    b('v_lshrrev_b32 v4, 5, v1')
    b('v_and_b32 v5, 31, v1')
    b('s_lshr_b32 s39, s38, 7')
    b('s_lshl_b32 s39, s39, 17')
    b('s_lshl_b32 s40, s37, 8')
    b('s_add_u32 s39, s39, s40')
    b('s_add_u32 s39, s39, %s' % hex(WS_X1T))
    b(add64(16, 4, 's39'))
    b('s_and_b32 s40, s38, 127')
    b('v_add_lshl_u32 v6, v5, s40, 1')
    b('v_lshl_add_u32 v6, v4, 10, v6')
    R = FB
    for j in range(4):
        b('v_xor_b32 v%d, %d, v6' % (8 + j, 64 * j))
        b('v_xor_b32 v%d, %d, v6' % (12 + j, 64 * j + 32))
    b('s_add_u32 s18, s16, 4096\ns_addc_u32 s19, s17, 0')
    for q in range(4):
        for j in range(4):
            b('global_load_ushort v%d, v%d, s[%d:%d] offset:%d' % (R + 4 * q + j, (12 if q & 1 else 8) + j, 16 + 2 * (q >> 1), 17 + 2 * (q >> 1), 2048 * (q & 1) + 256 * j))
    b('s_lshl_b32 s40, s37, 2')
    b('s_add_u32 s40, s40, %s' % hex(WS_GB))
    b(add64(28, 4, 's40'))
    b('v_lshlrev_b32 v7, 4, v4')
    for q in range(4):
        b('global_load_dwordx4 %s, v7, s[28:29] offset:%d' % (vr(R + 16 + 4 * q, 4), 32 * q))
    for d in range(4):
        b('s_sub_u32 s41, s33, %d' % (d + 1))
        b('s_and_b32 s41, s41, 3')
        b('s_cmp_eq_u32 s41, 3')
        b('s_cbranch_scc1 K3_SK%d' % d)
        b('s_add_u32 s41, s41, %d' % (3 * d))
        b('s_lshl_b32 s41, s41, 12')
        b('v_add_u32 v6, s41, v2')
        for q in range(4):
            b('ds_write_b128 v6, %s offset:%d' % (vr(ACC + 16 * d + 4 * q, 4), 1024 * q))
        b('s_branch K3_SJ%d' % d)
        b.label('K3_SK%d' % d)
        for q in range(16):
            b('v_mov_b32 v%d, v%d' % (R + 32 + q, ACC + 16 * d + q))
        b.label('K3_SJ%d' % d)
    b('s_mul_i32 s41, s33, %d' % (3 * 4096))
    b('v_add_u32 v6, s41, v2')
    b('s_lshl_b32 s38, s38, 10')
    b('s_lshl_b32 s37, s37, 1')
    b('s_add_u32 s38, s38, s37')
    b(add64(6, 6, 's38'))
    b('v_lshlrev_b32 v5, 10, v5')
    b('v_lshl_add_u32 v5, v4, 4, v5')
    b('s_waitcnt lgkmcnt(0)')
    b('s_barrier')
    for s in range(3):
        for q in range(4):
            b('ds_read_b128 %s, v6 offset:%d' % (vr(ACC + 16 * s + 4 * q, 4), 4096 * s + 1024 * q))
    O = R + 32
    for s in range(3):
        b('s_waitcnt lgkmcnt(%d)' % (8 - 4 * s))
        for k in range(0, 16, 2):
            b(pk('add', O + k, [('p', O + k), ('p', ACC + 16 * s + k)]))
    b('s_waitcnt vmcnt(0)')
    for k in range(16):
        b('v_lshlrev_b32 v%d, 16, v%d' % (R + k, R + k))
    for k in range(0, 16, 2):
        if EXACT['out']:
            E(b, rnd_pair(O + k, 8 + ((k >> 1) & 1)))
            b(pk('mul', O + k, [('p', O + k), ('p', R + 16 + k)]))
            E(b, rnd_pair(O + k, 8 + ((k >> 1) & 1)))
            b(pk('add', O + k, [('p', O + k), ('p', R + k)]))
        else:
            b(pk('fma', O + k, [('p', O + k), ('p', R + 16 + k), ('p', R + k)]))
    for k in range(8):
        b('v_cvt_pk_bf16_f32 v%d, v%d, v%d' % (ACC + k, O + 2 * k, O + 2 * k + 1))
    for p in range(2):
        b('v_permlane32_swap_b32 v%d, v%d' % (ACC + 4 * p, ACC + 4 * p + 2))
        b('v_permlane32_swap_b32 v%d, v%d' % (ACC + 4 * p + 1, ACC + 4 * p + 3))
        b('global_store_dwordx4 v5, %s, s[6:7] offset:%d' % (vr(ACC + 4 * p, 4), 32 * p))
    b.label('K3_END')
    b('s_endpgm')
    return b.text(), 256, 48


def kernels():
    return [('conv_kernel', k1, K1_WGS, 256, K1_LDS),
            ('gemm1_kernel', k2, K2_WGS, 512, K2_LDS),
            ('gemm2_kernel', k3, K3_WGS, 256, K3_LDS)]
```

```python
import math
import sys
from asmlib import Builder, vr, sr, fhex

NAME = 'adaLN_cond__ssm_conv_s4__glu_gated_geglu__prompt'

WS_MODP = 0x0
WS_GB = 0x10000
WS_CB = 0x11000
WS_LNT = 0x100000
WS_XT = 0x300000
WS_KC = 0x500000
WS_X1T = 0xA00000
WS_WF = 0xC00000
WS_WD = 0x1000000
WS_HF = 0x1200000

LOG2E = 1.4426950408889634
EXACT = dict(ln=True, h=True, x1=True, out=True)

KA = dict(u=0, are=8, aim=16, bre=24, bim=32, cre=40, cim=48, ldt=56, dsk=64, bx=72, wg=80, wu=88, wd=96, c=104, wm=112,
          out=120, dbg=128, ws=136)


def pk(op, d, srcs, neg_lo=None, neg_hi=None):
    ops, sl, sh = [], [], []
    for kind, r in srcs:
        if kind == 'p':
            assert r % 2 == 0
            ops.append(vr(r, 2)); sl.append(0); sh.append(1)
        elif kind == 'x':
            ops.append(vr(r, 2)); sl.append(1); sh.append(0)
        elif kind == 'b':
            ops.append(vr(r & ~1, 2)); sl.append(r & 1); sh.append(r & 1)
        else:
            ops.append(r); sl.append(0); sh.append(0)
    assert d % 2 == 0
    s = 'v_pk_%s_f32 %s, %s op_sel:[%s] op_sel_hi:[%s]' % (op, vr(d, 2), ', '.join(ops), ','.join(map(str, sl)), ','.join(map(str, sh)))
    if neg_lo:
        s += ' neg_lo:[%s]' % ','.join(map(str, neg_lo))
    if neg_hi:
        s += ' neg_hi:[%s]' % ','.join(map(str, neg_hi))
    return s


def cmul(d, a, b):
    return [pk('mul', d, [('b', a), ('p', b)]),
            pk('fma', d, [('b', a + 1), ('x', b), ('p', d)], neg_lo=[0, 1, 0])]


def weave(*seqs):
    out = []
    seqs = [list(s) for s in seqs]
    while any(seqs):
        for s in seqs:
            if s:
                out.append(s.pop(0))
    return out


def wave_reduce(op, regs):
    out = []
    for m in ('row_ror:8', 'row_ror:4', 'row_ror:2', 'row_ror:1'):
        for r in regs:
            out.append('v_%s_f32_dpp v%d, v%d, v%d %s row_mask:0xf bank_mask:0xf' % (op, r, r, r, m))
    for m, rm in (('row_bcast:15', '0xa'), ('row_bcast:31', '0xc')):
        for r in regs:
            out.append('v_%s_f32_dpp v%d, v%d, v%d %s row_mask:%s bank_mask:0xf' % (op, r, r, r, m, rm))
    return out


def rnd_bf16(r, t=None):
    return ['v_cvt_pk_bf16_f32 v%d, v%d, v%d' % (r, r, r), 'v_lshlrev_b32 v%d, 16, v%d' % (r, r)]


def rnd_pair(a, t):
    return ['v_cvt_pk_bf16_f32 v%d, v%d, v%d' % (t, a, a + 1),
            'v_lshlrev_b32 v%d, 16, v%d' % (a, t),
            'v_and_b32 v%d, 0xffff0000, v%d' % (a + 1, t)]


def unpack(dst, src):
    return ['v_lshlrev_b32 v%d, 16, v%d' % (dst, src), 'v_and_b32 v%d, 0xffff0000, v%d' % (dst + 1, src)]


def add64(d, b, off):
    return 's_add_u32 s%d, s%d, %s\ns_addc_u32 s%d, s%d, 0' % (d, b, off, d + 1, b + 1)


def E(b, seq):
    for s in seq:
        b(s)


K0_KGEN, K0_LN, K0_MOD, K0_WDR = 256, 128, 192, 112
K0_WGS = K0_KGEN + K0_LN + K0_MOD + K0_WDR
TBL_STRIDE = 13312
K0_WBUF = 2 * TBL_STRIDE
K0_LDS = K0_WBUF + 4 * 4352


def transpose_write_addr(b, va, lane, wave_v, t):
    b('v_lshlrev_b32 v%d, 8, v%d' % (t, lane))
    b('v_lshl_add_u32 v%d, v%d, 3, v%d' % (t, wave_v, t))
    b('v_and_b32 v%d, 7, v%d' % (va, lane))
    b('v_lshlrev_b32 v%d, 4, v%d' % (va, va))
    b('v_xor_b32 v%d, v%d, v%d' % (va, va, t))
    for j in range(1, 4):
        b('v_xor_b32 v%d, %d, v%d' % (va + j, 32 * j, va))


def k0():
    b = Builder()
    b('s_cmp_ge_u32 s2, %d' % K0_WGS)
    b('s_cbranch_scc1 K0_END')
    b('s_load_dwordx2 s[4:5], s[0:1], %d' % KA['ws'])
    b('v_and_b32 v1, 63, v0')
    b('s_cmp_ge_u32 s2, %d' % K0_KGEN)
    b('s_cbranch_scc1 K0_NOTK')
    b('s_load_dwordx4 s[8:11], s[0:1], %d' % KA['are'])
    b('s_load_dwordx4 s[12:15], s[0:1], %d' % KA['bre'])
    b('s_load_dwordx4 s[16:19], s[0:1], %d' % KA['cre'])
    b('s_load_dwordx2 s[20:21], s[0:1], %d' % KA['ldt'])
    b('s_and_b32 s6, s2, 7\ns_lshl_b32 s6, s6, 5\ns_lshr_b32 s7, s2, 3\ns_add_u32 s6, s6, s7\ns_lshl_b32 s6, s6, 1')
    b('s_lshl_b32 s7, s6, 8')
    b('v_lshl_add_u32 v2, v0, 1, s7')
    b('v_lshrrev_b32 v3, 7, v0')
    b('v_add_lshl_u32 v11, v3, s6, 1')
    b('s_waitcnt lgkmcnt(0)')
    for i in range(6):
        b('global_load_ushort v%d, v2, s[%d:%d]' % (4 + i, 8 + 2 * i, 9 + 2 * i))
    b('global_load_ushort v10, v11, s[20:21]')
    b('v_and_b32 v76, 127, v0')
    b('v_mul_u32_u24 v77, %d, v3' % TBL_STRIDE)
    b('v_lshl_add_u32 v78, v76, 4, v77')
    for i in range(4):
        b('v_mov_b32 v%d, 0' % (80 + i))
    for i in range(5):
        b('ds_write_b128 v78, v[80:83] offset:%d' % (2048 * i))
    G = 124
    b('v_lshlrev_b32 v79, 4, v76')
    b('v_sub_u32 v79, 2047, v79')
    b('v_cvt_f32_i32 v%d, v79' % G)
    b('v_lshrrev_b32 v84, 2, v77')
    b('v_add_u32 v84, 2, v84')
    for j in range(1, 18):
        b('v_add_f32 v%d, %s, v%d' % (G + j, fhex(-float(j)), G))
    for j in range(0, 18, 2):
        E(b, rnd_pair(G + j, 85))
    for j in range(17):
        b('v_cvt_i32_f32 v%d, v%d' % (G + j, G + j))
    for j in range(17):
        b('v_ashrrev_i32 v85, 4, v%d' % (G + j))
        b('v_add3_u32 v%d, v%d, v85, v84' % (G + j, G + j))
        b('v_lshlrev_b32 v%d, 2, v%d' % (G + j, G + j))
    b('v_and_b32 v85, 15, v1')
    b('v_lshrrev_b32 v86, 4, v1')
    b('v_mad_u32_u24 v85, v85, 17, v84')
    b('v_lshl_add_u32 v120, v86, 2, v85')
    b('v_mul_u32_u24 v87, 272, v86')
    b('v_lshlrev_b32 v88, 1, v86')
    b('v_add_u32 v88, 272, v88')
    b('v_max_u32 v87, v87, v88')
    b('v_add_u32 v121, v87, v85')
    b('v_lshrrev_b32 v87, 1, v86')
    b('v_add_u32 v87, 1, v87')
    b('v_mul_u32_u24 v87, 1088, v87')
    b('v_and_b32 v88, 1, v86')
    b('v_lshl_add_u32 v87, v88, 3, v87')
    b('v_add_u32 v122, v87, v85')
    for i in range(3):
        b('v_lshlrev_b32 v%d, 2, v%d' % (120 + i, 120 + i))
    b('v_lshrrev_b32 v87, 6, v0')
    b('v_mul_u32_u24 v87, 4352, v87')
    b('v_add_u32 v87, %d, v87' % K0_WBUF)
    b('v_lshl_add_u32 v74, v1, 2, v87')
    b('v_and_b32 v88, 15, v1')
    b('v_mul_u32_u24 v88, 272, v88')
    b('v_lshl_add_u32 v88, v86, 4, v88')
    b('v_add_u32 v75, v88, v87')
    b('v_add_u32 v2, s6, v3')
    b('v_mul_u32_u24 v2, 8704, v2')
    b('v_lshl_add_u32 v3, v76, 4, v2')
    b('v_lshl_add_u32 v2, v76, 5, v2')
    b('v_mov_b32 v11, v76')
    b(add64(26, 4, hex(WS_KC)))
    for i in range(12):
        b('v_mov_b32 v%d, 0' % (108 + i))
    b('s_waitcnt vmcnt(0)')
    for i in range(4, 11):
        b('v_lshlrev_b32 v%d, 16, v%d' % (i, i))
    b('v_mul_f32 v10, %s, v10' % fhex(LOG2E))
    b('v_exp_f32 v10, v10')
    E(b, rnd_bf16(10))
    b(pk('mul', 12, [('p', 4), ('b', 10)]))
    b(pk('mul', 6, [('p', 6), ('b', 10)]))
    b('v_mul_f32 v12, %s, v12' % fhex(LOG2E))
    b('v_mul_f32 v13, %s, v13' % fhex(1.0 / (2 * math.pi)))
    E(b, cmul(14, 8, 6))

    def zpow(d, p, ta, tb):
        s = []
        if p == 1:
            s += ['v_exp_f32 v%d, v12' % ta, 'v_fract_f32 v%d, v13' % tb]
        else:
            s += ['v_mul_f32 v%d, %s, v12' % (ta, fhex(float(p))), 'v_mul_f32 v%d, %s, v13' % (tb, fhex(float(p))),
                  'v_exp_f32 v%d, v%d' % (ta, ta), 'v_fract_f32 v%d, v%d' % (tb, tb)]
        s += ['v_cos_f32 v%d, v%d' % (d, tb), 'v_sin_f32 v%d, v%d' % (d + 1, tb), pk('mul', d, [('p', d), ('b', ta)])]
        return s
    Z1, Z16, ZB, US, VA, VB = 16, 18, 20, 36, 68, 70
    mx = ['v_max_f32 v72, abs(v14), abs(v15)'] + wave_reduce('max', [72]) + ['v_frexp_exp_i32_f32 v72, v72', 'v_readlane_b32 s22, v72, 63']
    zs = zpow(Z16, 16, 4, 5) + zpow(Z1, 1, 6, 7) + zpow(ZB, 256, 8, 9)
    seq = []
    while mx or zs:
        if mx:
            seq.append(mx.pop(0))
        seq += zs[:2]
        zs = zs[2:]
    E(b, seq)
    b('s_sub_i32 s23, 13, s22')
    b('s_sub_i32 s24, s22, 21')
    b('v_ldexp_f32 v%d, v14, s23' % VA)
    b('v_ldexp_f32 v%d, v15, s23' % (VA + 1))

    tq = [72, 73]

    def emit_row(src, row, neg=False):
        t = tq[row & 1]
        return ['v_cvt_pk_f16_f32 v%d, v%d, %sv%d' % (t, src, '-' if neg else '', src + 1),
                'ds_write_b32 v74, v%d offset:%d' % (t, row * 272)]

    def read_frags(d):
        return ['ds_read_b128 %s, v75 offset:%d' % (vr(d + 4 * j, 4), 64 * j) for j in range(4)]
    VF, UF, DA = 76, 92, 108
    cv = []
    cur, nxt = VA, VB
    for i in range(16):
        cv += emit_row(cur, i, True)
        if i < 15:
            cv += cmul(nxt, cur, Z16)
            cur, nxt = nxt, cur
    cu = ['v_mov_b32 v%d, 0x43800000' % US, 'v_mov_b32 v%d, 0' % (US + 1), pk('mul', US + 2, [('p', Z1), ('b', US)])]
    for i in range(2, 16):
        cu += cmul(US + 2 * i, US + 2 * (i - 1), Z1)
    E(b, weave(cv, cu))
    E(b, read_frags(VF))
    r0 = []
    for i in range(16):
        r0 += emit_row(US + 2 * i, i)
    cz = []
    for m in range(1, 8):
        cz += cmul(ZB + 2 * m, ZB + 2 * (m - 1), ZB)
    E(b, weave(r0, cz))
    E(b, read_frags(UF))

    def mf(tile):
        return ['v_mfma_f32_16x16x32_f16 %s, %s, %s, %s' % (vr(DA + 4 * tile, 4), vr(UF + 4 * j, 4), vr(VF + 4 * j, 4), vr(DA + 4 * tile, 4)) for j in range(4)]
    t1 = []
    for g, (zi, uo) in enumerate(((0, 0), (0, 2), (1, 0), (2, 0))):
        for rho in range(4):
            d = VA if (rho & 1) == 0 else VB
            t1 += cmul(d, ZB + 2 * zi, US + 2 * (4 * rho + uo))
            t1 += emit_row(d, 4 * g + rho)
    E(b, t1)
    b('s_waitcnt lgkmcnt(15)')
    E(b, mf(0))
    UF2 = 36 + 2
    UF1 = 142
    E(b, ['ds_read_b128 %s, v75 offset:%d' % (vr(UF1 + 4 * j, 4), 64 * j) for j in range(4)])
    t2 = []
    for rho in range(4):
        d = VA if (rho & 1) == 0 else VB
        t2 += [pk('mul', d, [('p', ZB + 2 * (3 + rho)), ('b', US)])] + emit_row(d, rho)
    for rho in range(4):
        d = VA if (rho & 1) == 0 else VB
        t2 += cmul(d, ZB + 2 * (3 + rho), US + 16) + emit_row(d, 4 + rho)
    t2 += [pk('mul', VA, [('p', ZB + 14), ('b', US)])] + emit_row(VA, 8)
    E(b, t2)
    E(b, read_frags(UF))
    b('s_waitcnt lgkmcnt(13)')
    E(b, ['v_mfma_f32_16x16x32_f16 %s, %s, %s, %s' % (vr(DA + 4, 4), vr(UF1 + 4 * j, 4), vr(VF + 4 * j, 4), vr(DA + 4, 4)) for j in range(4)])
    b('s_waitcnt lgkmcnt(0)')
    E(b, mf(2))
    b('s_barrier')
    for t, step in ((0, 4), (1, 16), (2, 1088)):
        for rho in range(4):
            b('v_ldexp_f32 v%d, v%d, s24' % (DA + 4 * t + rho, DA + 4 * t + rho))
        for rho in range(4):
            b('ds_add_f32 v%d, v%d offset:%d' % (120 + t, DA + 4 * t + rho, step * rho))
    b('s_waitcnt lgkmcnt(0)')
    b('s_barrier')
    for j in range(17):
        b('ds_read_b32 v%d, v%d' % (G + j, G + j))
    for i in range(4):
        b('v_mov_b32 v%d, 0' % (80 + i))
    b('v_cmp_gt_u32 vcc, 8, v11')
    b('s_and_saveexec_b64 s[28:29], vcc')
    b('s_cbranch_execz K0_NOZ')
    b('s_add_u32 s30, s26, 4096\ns_addc_u32 s31, s27, 0')
    b('global_store_dwordx4 v3, v[80:83], s[30:31]')
    b('s_add_u32 s30, s26, %d\ns_addc_u32 s31, s27, 0' % (4096 + 4224))
    b('global_store_dwordx4 v3, v[80:83], s[30:31]')
    b.label('K0_NOZ')
    b('s_mov_b64 exec, s[28:29]')
    b('s_add_u32 s30, s26, 4224\ns_addc_u32 s31, s27, 0')
    b('s_waitcnt lgkmcnt(0)')
    for m in range(8):
        b('v_cvt_pk_bf16_f32 v%d, v%d, v%d' % (36 + m, G + 2 * m, G + 2 * m + 1))
        b('v_cvt_pk_bf16_f32 v%d, v%d, v%d' % (44 + m, G + 2 * m + 1, G + 2 * m + 2))
    b('global_store_dwordx4 v2, v[44:47], s[26:27]')
    b('global_store_dwordx4 v2, v[48:51], s[26:27] offset:16')
    b('global_store_dwordx4 v2, v[36:39], s[30:31]')
    b('global_store_dwordx4 v2, v[40:43], s[30:31] offset:16')
    b('s_endpgm')

    b.label('K0_NOTK')
    b('s_cmp_ge_u32 s2, %d' % (K0_KGEN + K0_LN))
    b('s_cbranch_scc1 K0_NOTLN')
    b('s_load_dwordx2 s[8:9], s[0:1], %d' % KA['u'])
    b('s_sub_u32 s6, s2, %d' % K0_KGEN)
    b('s_lshl_b32 s6, s6, 14')
    b('v_lshrrev_b32 v3, 6, v0')
    b('v_lshlrev_b32 v2, 12, v3')
    b('v_lshl_add_u32 v2, v1, 4, v2')
    b('v_add_u32 v2, s6, v2')
    b('s_waitcnt lgkmcnt(0)')
    for i in range(4):
        b('global_load_dwordx4 %s, v2, s[8:9] offset:%d' % (vr(4 + 4 * i, 4), 1024 * i))
    WA = 60
    transpose_write_addr(b, WA, 1, 3, 64)
    b('v_lshrrev_b32 v64, 4, v0')
    b('v_and_b32 v64, 7, v64')
    b('v_xor_b32 v64, v64, v0')
    b('v_lshlrev_b32 v64, 4, v64')
    b('v_lshlrev_b32 v65, 4, v0')
    b('v_add_u32 v65, s6, v65')
    b(add64(10, 4, hex(WS_LNT)))
    b(add64(12, 4, hex(WS_XT)))
    b('s_mov_b32 s14, 0x05040100\ns_mov_b32 s15, 0x07060302')
    b('v_mov_b32 v66, %s' % fhex(1.0 / 512))
    XF = 20
    for i in range(4):
        b('s_waitcnt vmcnt(%d)' % (3 - i))
        for k in range(4):
            E(b, unpack(XF + 8 * i + 2 * k, 4 + 4 * i + k))
    T = 68
    for i in range(4):
        b(pk('add', T + 4 * i, [('p', XF + 8 * i), ('p', XF + 8 * i + 2)]))
        b(pk('add', T + 4 * i + 2, [('p', XF + 8 * i + 4), ('p', XF + 8 * i + 6)]))
    for i in range(4):
        b(pk('add', T + 4 * i, [('p', T + 4 * i), ('p', T + 4 * i + 2)]))
    xs = []
    for j in range(8):
        sel = 's15' if j & 1 else 's14'
        xs.append('v_perm_b32 v%d, v%d, v%d, %s' % (84 + 2 * (j & 1), 8 + (j >> 1), 4 + (j >> 1), sel))
        xs.append('v_perm_b32 v%d, v%d, v%d, %s' % (85 + 2 * (j & 1), 16 + (j >> 1), 12 + (j >> 1), sel))
        xs.append('ds_write_b64 v%d, %s offset:%d' % (WA + (j & 3), vr(84 + 2 * (j & 1), 2), 16384 + 128 * (j >> 2)))
    red = ['v_add_f32 v%d, v%d, v%d' % (52 + i, T + 4 * i, T + 4 * i + 1) for i in range(4)] + wave_reduce('add', [52, 53, 54, 55])
    E(b, weave(red, xs))
    for i in range(4):
        b('v_readlane_b32 s%d, v%d, 63' % (16 + i, 52 + i))
    for i in range(4):
        b('v_mul_f32 v%d, s%d, v66' % (52 + i, 16 + i))
    for k in range(4):
        for i in range(4):
            b(pk('add', T + 4 * i + 2, [('p', XF + 8 * i + 2 * k), ('b', 52 + i)], neg_lo=[0, 1], neg_hi=[0, 1]))
        for i in range(4):
            if k == 0:
                b(pk('mul', T + 4 * i, [('p', T + 4 * i + 2), ('p', T + 4 * i + 2)]))
            else:
                b(pk('fma', T + 4 * i, [('p', T + 4 * i + 2), ('p', T + 4 * i + 2), ('p', T + 4 * i)]))
    red = ['v_add_f32 v%d, v%d, v%d' % (56 + i, T + 4 * i, T + 4 * i + 1) for i in range(4)] + wave_reduce('add', [56, 57, 58, 59])
    cen = rnd_pair(52, 84) + rnd_pair(54, 85)
    for i in range(4):
        for k in range(4):
            r = XF + 8 * i + 2 * k
            cen.append(pk('add', r, [('p', r), ('b', 52 + i)], neg_lo=[0, 1], neg_hi=[0, 1]))
            if EXACT['ln']:
                cen += rnd_pair(r, 84 + (k & 1))
    E(b, weave(red, cen))
    for i in range(4):
        b('v_readlane_b32 s%d, v%d, 63' % (16 + i, 56 + i))
    for i in range(4):
        b('v_mul_f32 v%d, s%d, v66' % (56 + i, 16 + i))
    E(b, rnd_pair(56, 84) + rnd_pair(58, 85))
    for i in range(4):
        b('v_add_f32 v%d, %s, v%d' % (56 + i, fhex(1e-5), 56 + i))
    E(b, rnd_pair(56, 84) + rnd_pair(58, 85))
    for i in range(4):
        b('v_sqrt_f32 v%d, v%d' % (56 + i, 56 + i))
    E(b, rnd_pair(56, 84) + rnd_pair(58, 85))
    for i in range(4):
        b('v_rcp_f32 v%d, v%d' % (56 + i, 56 + i))
    for k in range(4):
        for i in range(4):
            r = XF + 8 * i + 2 * k
            b(pk('mul', r, [('p', r), ('b', 56 + i)]))
        for j in (2 * k, 2 * k + 1):
            t = 84 + 2 * (j & 1)
            b('v_cvt_pk_bf16_f32 v%d, v%d, v%d' % (t, XF + j, XF + 8 + j))
            b('v_cvt_pk_bf16_f32 v%d, v%d, v%d' % (t + 1, XF + 16 + j, XF + 24 + j))
            b('ds_write_b64 v%d, %s offset:%d' % (WA + (j & 3), vr(t, 2), 128 * (j >> 2)))
    b('s_waitcnt lgkmcnt(0)')
    b('s_barrier')
    for i in range(8):
        b('ds_read_b128 %s, v64 offset:%d' % (vr(4 + 4 * i, 4), 4096 * ((i + 4) & 7)))
    b('v_add_u32 v66, 0x2000, v65')
    for i in range(8):
        b('s_waitcnt lgkmcnt(%d)' % (7 - i))
        base = 12 if i < 4 else 10
        k = i & 3
        b('global_store_dwordx4 v%d, %s, s[%d:%d] offset:%d' % (65 if k < 2 else 66, vr(4 + 4 * i, 4), base, base + 1, 0) if (k & 1) == 0 else
          'global_store_dwordx4 v%d, %s, s[%d:%d] offset:%d' % (67 if k < 2 else 3, vr(4 + 4 * i, 4), base, base + 1, 0))
        if i == 0:
            b('v_add_u32 v67, 0x1000, v65')
            b('v_add_u32 v3, 0x3000, v65')
    b('s_endpgm')

    b.label('K0_NOTLN')
    b('s_cmp_ge_u32 s2, %d' % (K0_KGEN + K0_LN + K0_MOD))
    b('s_cbranch_scc1 K0_WDR')
    b('s_load_dwordx4 s[8:11], s[0:1], %d' % KA['c'])
    b('s_sub_u32 s6, s2, %d' % (K0_KGEN + K0_LN))
    b('s_and_b32 s7, s6, 3')
    b('s_lshr_b32 s6, s6, 2')
    b('v_lshrrev_b32 v2, 3, v0')
    b('s_lshl_b32 s12, s7, 7')
    b('v_add_u32 v2, s12, v2')
    b('v_mul_u32_u24 v3, 6144, v2')
    b('v_and_b32 v4, 7, v0')
    b('v_lshl_add_u32 v3, v4, 4, v3')
    b('s_lshl_b32 s12, s6, 7')
    b('v_add_u32 v3, s12, v3')
    b('v_lshlrev_b32 v2, 1, v2')
    b('s_waitcnt lgkmcnt(0)')
    for i in range(4):
        b('global_load_ushort v%d, v2, s[8:9] offset:%d' % (4 + i, 64 * i))
    for i in range(4):
        b('global_load_dwordx4 %s, v3, s[10:11]' % vr(8 + 4 * i, 4))
        if i < 3:
            b('v_add_u32 v3, %d, v3' % (32 * 6144))
    b('s_waitcnt vmcnt(4)')
    for i in range(4):
        b('v_lshlrev_b32 v%d, 16, v%d' % (4 + i, 4 + i))
    for i in range(4):
        b('v_mul_f32 v%d, %s, v%d' % (24 + i, fhex(-LOG2E), 4 + i))
    for i in range(4):
        b('v_exp_f32 v%d, v%d' % (24 + i, 24 + i))
    for i in range(4):
        b('v_add_f32 v%d, 1.0, v%d' % (24 + i, 24 + i))
    for i in range(4):
        b('v_rcp_f32 v%d, v%d' % (24 + i, 24 + i))
    for i in range(4):
        b('v_mul_f32 v%d, v%d, v%d' % (4 + i, 4 + i, 24 + i))
    E(b, rnd_pair(4, 24) + rnd_pair(6, 25))
    for i in range(4):
        b('s_waitcnt vmcnt(%d)' % (3 - i))
        for k in range(4):
            E(b, unpack(24 + 2 * k, 8 + 4 * i + k))
        for k in range(4):
            if i == 0:
                b(pk('mul', 32 + 2 * k, [('p', 24 + 2 * k), ('b', 4 + i)]))
            else:
                b(pk('fma', 32 + 2 * k, [('p', 24 + 2 * k), ('b', 4 + i), ('p', 32 + 2 * k)]))
    b('v_lshlrev_b32 v2, 5, v0')
    b('ds_write_b128 v2, v[32:35]')
    b('ds_write_b128 v2, v[36:39] offset:16')
    b('v_readfirstlane_b32 s12, v0')
    b('s_waitcnt lgkmcnt(0)')
    b('s_barrier')
    b('s_cmp_ge_u32 s12, 64')
    b('s_cbranch_scc1 K0_END')
    b('v_lshlrev_b32 v2, 2, v0')
    for k in range(32):
        b('ds_read_b32 v%d, v2 offset:%d' % (4 + k, 256 * k))
    b('s_mul_i32 s7, s7, %d' % (3072 * 4))
    b('s_lshl_b32 s6, s6, 8')
    b('s_add_u32 s6, s6, s7')
    b('v_add_u32 v2, s6, v2')
    b('s_waitcnt lgkmcnt(0)')
    for w in (16, 8, 4, 2):
        for k in range(0, w, 2):
            b(pk('add', 4 + k, [('p', 4 + k), ('p', 4 + w + k)]))
    b('v_add_f32 v4, v4, v5')
    b('global_store_dword v2, v4, s[4:5]')
    b('s_endpgm')

    b.label('K0_WDR')
    b('s_load_dwordx2 s[8:9], s[0:1], %d' % KA['wd'])
    b('s_sub_u32 s6, s2, %d' % (K0_KGEN + K0_LN + K0_MOD))
    b('s_lshl_b32 s7, s6, 14')
    b('v_lshrrev_b32 v3, 6, v0')
    b('v_lshlrev_b32 v2, 12, v3')
    b('v_lshl_add_u32 v2, v1, 4, v2')
    b('v_add_u32 v2, s7, v2')
    b('s_waitcnt lgkmcnt(0)')
    for i in range(4):
        b('global_load_dwordx4 %s, v2, s[8:9] offset:%d' % (vr(4 + 4 * i, 4), 1024 * i))
    transpose_write_addr(b, WA, 1, 3, 64)
    b('v_and_b32 v64, 31, v1')
    b('v_lshl_add_u32 v64, v3, 5, v64')
    b('v_lshrrev_b32 v65, 3, v64')
    b('v_and_b32 v65, 7, v65')
    b('v_lshrrev_b32 v66, 5, v1')
    b('v_lshl_add_u32 v64, v64, 1, v66')
    b('v_xor_b32 v64, v64, v65')
    b('v_lshlrev_b32 v64, 4, v64')
    b('v_mul_u32_u24 v65, %d, v3' % 114688)
    b('v_lshl_add_u32 v65, v1, 4, v65')
    b('s_lshl_b32 s6, s6, 10')
    b('s_add_u32 s6, s6, %s' % hex(WS_WD))
    b(add64(10, 4, 's6'))
    b('s_mov_b32 s14, 0x05040100\ns_mov_b32 s15, 0x07060302')
    b('s_waitcnt vmcnt(0)')
    for j in range(8):
        sel = 's15' if j & 1 else 's14'
        b('v_perm_b32 v%d, v%d, v%d, %s' % (84 + 2 * (j & 1), 8 + (j >> 1), 4 + (j >> 1), sel))
        b('v_perm_b32 v%d, v%d, v%d, %s' % (85 + 2 * (j & 1), 16 + (j >> 1), 12 + (j >> 1), sel))
        b('ds_write_b64 v%d, %s offset:%d' % (WA + (j & 3), vr(84 + 2 * (j & 1), 2), 128 * (j >> 2)))
    b('s_waitcnt lgkmcnt(0)')
    b('s_barrier')
    for i in range(4):
        b('ds_read_b128 %s, v64 offset:%d' % (vr(4 + 4 * i, 4), 4096 * i))
    for i in range(4):
        b('s_waitcnt lgkmcnt(%d)' % (3 - i))
        b('global_store_dwordx4 v65, %s, s[10:11]' % vr(4 + 4 * i, 4))
        if i < 3:
            b('s_add_u32 s10, s10, %d\ns_addc_u32 s11, s11, 0' % (4 * 114688))
    b.label('K0_END')
    b('s_endpgm')
    return b.text(), 160, 40


def build(kernels):
    head = open('cdna_kernels/%s.s.ref' % NAME).read().split('\n')
    out = [l for l in head if l.startswith(';') and '@launch' not in l and 'Override launch' not in l and 'grid=ceil' not in l]
    for name, fn, grid, block, lds in kernels:
        out.append('; @launch kernel=%s grid=(%d,1,1) block=(%d,1,1) lds=%d' % (name, grid, block, lds))
    out.append('.amdgcn_target "amdgcn-amd-amdhsa--gfx950"')
    out.append('.text')
    desc = []
    for name, fn, grid, block, lds in kernels:
        text, nv, ns = fn()
        out.append('.globl %s\n.p2align 8\n.type %s,@function\n%s:' % (name, name, name))
        out.append(text)
        desc.append('.p2align 6\n.amdhsa_kernel %s\n  .amdhsa_next_free_vgpr %d\n  .amdhsa_next_free_sgpr %d\n  .amdhsa_accum_offset %d\n'
                    '  .amdhsa_group_segment_fixed_size 0\n  .amdhsa_kernarg_size 144\n  .amdhsa_user_sgpr_count 2\n'
                    '  .amdhsa_user_sgpr_kernarg_segment_ptr 1\n  .amdhsa_system_sgpr_workgroup_id_x 1\n.end_amdhsa_kernel'
                    % (name, nv, ns, (min(nv, 256) + 3) // 4 * 4))
    out.append('.section .rodata,"a"')
    out += desc
    return '\n'.join(out) + '\n'


if __name__ == '__main__':
    import gen_rest
    ks = [('prep_kernel', k0, K0_WGS, 256, K0_LDS)] + gen_rest.kernels()
    n = int(sys.argv[2]) if len(sys.argv) > 2 else len(ks)
    open(sys.argv[1], 'w').write(build(ks[:n]))
```

```python
import math
from asmlib import Builder, vr, sr, fhex
from gen import *

K1_CONV, K1_WF = 256, 224
K1_WGS = K1_CONV + K1_WF
KB = 256
HB = KB + 20480
K1_LDS = HB + 4 * 6528


def srd(b, d, base_lo, base_hi, nbytes):
    b('s_mov_b32 s%d, s%d' % (d, base_lo))
    b('s_and_b32 s%d, s%d, 0xffff' % (d + 1, base_hi))
    b('s_mov_b32 s%d, %d' % (d + 2, nbytes))
    b('s_mov_b32 s%d, 0x20000' % (d + 3))


def k1():
    b = Builder()
    b('s_cmp_ge_u32 s2, %d' % K1_WGS)
    b('s_cbranch_scc1 K1_END')
    b('s_load_dwordx2 s[4:5], s[0:1], %d' % KA['ws'])
    stamp_init(b)
    b('v_and_b32 v1, 63, v0')
    b('s_cmp_ge_u32 s2, %d' % K1_CONV)
    b('s_cbranch_scc1 K1_FOLD')
    b('s_load_dwordx2 s[8:9], s[0:1], %d' % KA['dsk'])
    b('s_and_b32 s6, s2, 7\ns_lshl_b32 s6, s6, 5\ns_lshr_b32 s7, s2, 3\ns_add_u32 s6, s6, s7\ns_lshl_b32 s6, s6, 1')
    b('v_lshrrev_b32 v2, 6, v0')
    b('v_readfirstlane_b32 s33, v2')
    b('v_lshrrev_b32 v2, 2, v0')
    b('v_lshlrev_b32 v2, 14, v2')
    b('v_and_b32 v3, 3, v0')
    b('v_lshl_add_u32 v2, v3, 4, v2')
    b('s_lshl_b32 s7, s6, 5')
    b('v_add_u32 v2, s7, v2')
    b('v_bfe_u32 v3, v0, 1, 1')
    b('v_add_u32 v37, s6, v3')
    b('v_lshlrev_b32 v38, 2, v37')
    b('v_add_u32 v39, %d, v38' % 2048)
    b('v_add_u32 v48, %d, v38' % (2048 + 8192))
    b('v_lshlrev_b32 v49, 1, v37')
    b('v_lshlrev_b32 v50, 4, v1')
    b('s_waitcnt lgkmcnt(0)')
    b(add64(10, 4, hex(WS_LNT)))
    b(add64(12, 4, hex(WS_LNT + 0x100000)))
    b(add64(14, 4, hex(WS_XT)))
    b(add64(16, 4, hex(WS_XT + 0x100000)))
    b('global_load_dwordx4 v[4:7], v2, s[10:11]')
    b('global_load_dwordx4 v[8:11], v2, s[12:13]')
    for q in range(4):
        if q:
            b(add64(18, 4, str(12288 * q)))
        base = 's[18:19]' if q else 's[4:5]'
        b('global_load_dword v%d, v39, %s offset:-2048' % (20 + q, base))
        b('global_load_dword v%d, v39, %s' % (24 + q, base))
        b('global_load_dword v%d, v39, %s offset:2048' % (28 + q, base))
        b('global_load_dword v%d, v48, %s' % (32 + q, base))
    b('s_mul_i32 s7, s6, 8704')
    b('s_add_u32 s7, s7, %d' % (WS_KC - KB))
    b(add64(20, 4, 's7'))
    srd(b, 24, 20, 21, 17408 + KB)
    b('s_lshl_b32 s34, s33, 10')
    b('s_add_u32 s34, s34, %d' % KB)
    for i in range(5):
        b('s_mov_b32 m0, s34')
        b('buffer_load_dwordx4 v50, s[24:27], s34 offen lds')
        if i < 4:
            b('s_add_u32 s34, s34, 4096')
    b('global_load_ushort v36, v49, s[8:9]')
    b('global_load_dwordx4 v[12:15], v2, s[14:15]')
    b('global_load_dwordx4 v[16:19], v2, s[16:17]')
    b('v_min_u32 v51, 254, v0')
    b('v_lshlrev_b32 v51, 3, v51')
    b('v_mov_b32 v52, 0\nv_mov_b32 v53, 0')
    for i in range(4):
        b('ds_write_b64 v51, v[52:53] offset:%d' % (HB + 6528 * i))
    b('v_mul_u32_u24 v51, 13056, v3')
    b('ds_write_b32 v51, v52 offset:%d' % (HB + 6528 + 2040))
    b('v_lshrrev_b32 v54, 4, v0')
    b('v_mul_u32_u24 v54, 136, v54')
    b('v_add_u32 v54, v54, v51')
    b('v_bfe_u32 v55, v0, 2, 2')
    b('v_lshl_add_u32 v54, v55, 5, v54')
    b('v_and_b32 v55, 1, v0')
    b('v_lshl_add_u32 v54, v55, 4, v54')
    b('v_and_b32 v55, 13, v0')
    b('v_cmp_eq_u32 vcc, 13, v55')
    b('v_cndmask_b32 v55, 0, 8, vcc')
    b('v_add_u32 v55, v55, v54')
    b('s_lshr_b32 s35, s33, 1')
    b('s_and_b32 s36, s33, 1')
    b('v_and_b32 v58, 1, v1')
    b('v_bfe_u32 v59, v1, 1, 4')
    b('v_lshrrev_b32 v60, 5, v1')
    b('s_mul_i32 s37, s35, 8704')
    b('s_lshl_b32 s38, s36, 10')
    b('s_sub_u32 s37, s37, s38')
    b('s_add_u32 s37, s37, %d' % (KB + 2 * 2092 - 2048 - 32))
    b('v_mul_u32_u24 v56, 4224, v58')
    b('v_lshl_add_u32 v56, v60, 4, v56')
    b('v_lshlrev_b32 v61, 3, v59')
    b('v_sub_u32 v56, v56, v61')
    b('v_add_u32 v56, s37, v56')
    b('s_mul_i32 s37, s35, 13056')
    b('s_mul_i32 s38, s36, %d' % (8 * 136))
    b('s_sub_u32 s37, s37, s38')
    b('s_add_u32 s37, s37, %d' % (HB + 15 * 136))
    b('v_mul_u32_u24 v57, 6528, v58')
    b('v_lshl_add_u32 v57, v60, 4, v57')
    b('v_mul_u32_u24 v61, 136, v59')
    b('v_add3_u32 v57, v57, v61, s37')
    b('s_mul_i32 s37, s33, 8704')
    b('v_mul_u32_u24 v62, 272, v59')
    b('v_lshl_add_u32 v62, v60, 5, v62')
    b('v_xor_b32 v61, 1, v58')
    b('v_lshl_add_u32 v62, v61, 3, v62')
    b('v_add_u32 v62, s37, v62')
    b('v_lshrrev_b32 v61, 2, v0')
    b('v_lshlrev_b32 v61, 4, v61')
    b('v_and_b32 v63, 1, v0')
    b('v_lshl_add_u32 v61, v63, 3, v61')
    b('v_lshrrev_b32 v63, 6, v61')
    b('v_lshl_add_u32 v63, v63, 2, v61')
    b('v_lshlrev_b32 v63, 2, v63')
    b('v_mul_u32_u24 v58, %d, v3' % (2 * 8704))
    b('v_add_u32 v63, v63, v58')
    b('v_lshrrev_b32 v2, 7, v61')
    b('v_lshlrev_b32 v2, 17, v2')
    b('v_lshl_add_u32 v2, v37, 8, v2')
    b('v_and_b32 v58, 127, v61')
    b('v_lshlrev_b32 v58, 1, v58')
    b('v_and_b32 v59, 3, v37')
    b('v_lshlrev_b32 v59, 6, v59')
    b('v_xor_b32 v58, v58, v59')
    b('v_bfe_u32 v59, v37, 3, 1')
    b('v_lshlrev_b32 v59, 5, v59')
    b('v_xor_b32 v58, v58, v59')
    b('v_add_u32 v2, v2, v58')
    for i in range(32):
        b('v_mov_b32 v%d, 0' % (64 + i))
    stamp(b, 1)
    b('s_waitcnt vmcnt(8)')
    stamp(b, 2)
    for s in range(4):
        b(pk('add', 20 + 4 * s, [('p', 20 + 4 * s), ('p', 22 + 4 * s)]))
    for s in range(4):
        b('v_add_f32 v%d, v%d, v%d' % (20 + s, 20 + 4 * s, 21 + 4 * s))
    E(b, rnd_pair(20, 24) + rnd_pair(22, 25))
    b('v_add_f32 v21, 1.0, v21')
    E(b, rnd_bf16(21))
    b(add64(18, 4, hex(WS_GB)))
    b('global_store_dword v38, v23, s[18:19]')
    for i in range(2):
        for k in range(4):
            E(b, unpack(96 + 2 * k, 4 + 4 * i + k))
        for k in range(4):
            r = 96 + 2 * k
            if EXACT['h']:
                b(pk('mul', r, [('p', r), ('b', 21)]))
                E(b, rnd_pair(r, 104 + (k & 1)))
                b(pk('add', r, [('p', r), ('b', 20)]))
            else:
                b(pk('fma', r, [('p', r), ('b', 21), ('b', 20)]))
        for k in range(4):
            b('v_cvt_pk_bf16_f32 v%d, v%d, v%d' % (40 + 4 * i + k, 96 + 2 * k, 97 + 2 * k))
        o = HB + 2040 + 2176 * i
        h = 40 + 4 * i
        b('ds_write_b64 v54, %s offset:%d' % (vr(h, 2), o))
        b('ds_write_b64 v54, %s offset:%d' % (vr(h + 2, 2), o + 8))
        b('ds_write_b32 v54, v%d offset:%d' % (h, o + 6528 + 4))
        b('ds_write2_b32 v54, v%d, v%d offset0:2 offset1:3' % (h + 1, h + 2) if False else
          'ds_write_b32 v54, v%d offset:%d' % (h + 1, o + 6528 + 8))
        b('ds_write_b32 v54, v%d offset:%d' % (h + 2, o + 6528 + 12))
        b('ds_write_b32 v55, v%d offset:%d' % (h + 3, o + 6528 + 16))
    stamp(b, 3)
    b('s_waitcnt vmcnt(4) lgkmcnt(0)')
    b('s_barrier')

    FB = 96

    def reads(sig):
        f = FB + 16 * (sig & 3)
        oa = (5 - sig) * 32
        ob = (136 + 2 * (48 - 16 * sig)) if sig < 4 else 2 * (48 - 16 * (sig - 4))
        return ['ds_read_b64 %s, v56 offset:%d' % (vr(f, 2), oa + 2048),
                'ds_read_b64 %s, v56 offset:%d' % (vr(f + 2, 2), oa + 2056),
                'ds_read_b64 %s, v57 offset:%d' % (vr(f + 12, 2), ob + 2176),
                'ds_read_b64 %s, v57 offset:%d' % (vr(f + 14, 2), ob + 2184),
                'ds_read_b64 %s, v57 offset:%d' % (vr(f + 8, 2), ob),
                'ds_read_b64 %s, v57 offset:%d' % (vr(f + 10, 2), ob + 8),
                'ds_read_b64 %s, v56 offset:%d' % (vr(f + 4, 2), oa),
                'ds_read_b64 %s, v56 offset:%d' % (vr(f + 6, 2), oa + 8)]
    stamp(b, 4)
    E(b, reads(4) + reads(5))
    b('s_mov_b32 s37, 8')
    b.label('K1_LOOP')
    b('v_subrev_u32 v56, 128, v56')
    b('v_subrev_u32 v57, 136, v57')
    for s in range(4):
        f = FB + 16 * s
        r = reads(s + 2)
        b('s_waitcnt lgkmcnt(8)')
        b('v_mfma_f32_32x32x16_bf16 v[80:95], %s, %s, v[80:95]' % (vr(f, 4), vr(f + 12, 4)))
        E(b, r[0:3])
        b('v_mfma_f32_32x32x16_bf16 v[64:79], %s, %s, v[64:79]' % (vr(f, 4), vr(f + 8, 4)))
        E(b, r[3:6])
        b('v_mfma_f32_32x32x16_bf16 v[80:95], %s, %s, v[80:95]' % (vr(f + 4, 4), vr(f + 8, 4)))
        E(b, r[6:8])
    b('s_sub_u32 s37, s37, 1')
    b('s_cmp_lg_u32 s37, 0')
    b('s_cbranch_scc1 K1_LOOP')
    stamp(b, 5)
    b('s_waitcnt lgkmcnt(0)')
    b('s_barrier')
    for nt in range(2):
        for rho in range(0, 16, 2):
            b('ds_write_b64 v62, %s offset:%d' % (vr(64 + 16 * nt + rho, 2), 4352 * nt + 64 * (rho >> 2) + 16 * ((rho >> 1) & 1)))
    b(add64(10, 4, hex(WS_X1T)))
    b(add64(12, 4, hex(WS_X1T + 0x100000)))
    b('s_waitcnt vmcnt(0) lgkmcnt(0)')
    b('s_barrier')
    for i in range(2):
        for part in range(2):
            for k in range(2):
                b('ds_read_b128 %s, v63 offset:%d' % (vr(64 + 16 * i + 8 * part + 4 * k, 4), 4352 * i + 8704 * part + 16 * k))
    stamp(b, 6)
    b('v_lshlrev_b32 v36, 16, v36')
    for i in range(2):
        HF_, XF_ = 96, 104
        for k in range(4):
            E(b, unpack(HF_ + 2 * k, 40 + 4 * i + k))
            E(b, unpack(XF_ + 2 * k, 12 + 4 * i + k))
        if EXACT['x1']:
            for k in range(4):
                b(pk('mul', HF_ + 2 * k, [('p', HF_ + 2 * k), ('b', 36)]))
                E(b, rnd_pair(HF_ + 2 * k, 112 + (k & 1)))
        b('s_waitcnt lgkmcnt(%d)' % (4 - 4 * i))
        Y = 64 + 16 * i
        for k in range(4):
            y = Y + 2 * k
            b(pk('add', y, [('p', y), ('p', y + 8)]))
            if EXACT['x1']:
                E(b, rnd_pair(y, 112 + (k & 1)))
                b(pk('add', y, [('p', y), ('p', HF_ + 2 * k)]))
                E(b, rnd_pair(y, 112 + (k & 1)))
                b(pk('mul', y, [('p', y), ('b', 22)]))
                E(b, rnd_pair(y, 112 + (k & 1)))
                b(pk('add', y, [('p', y), ('p', XF_ + 2 * k)]))
            else:
                b(pk('fma', y, [('p', HF_ + 2 * k), ('b', 36), ('p', y)]))
                b(pk('fma', y, [('p', y), ('b', 22), ('p', XF_ + 2 * k)]))
            b('v_cvt_pk_bf16_f32 v%d, v%d, v%d' % (116 + 4 * i + k, y, y + 1))
        b('global_store_dwordx4 v2, %s, s[%d:%d]' % (vr(116 + 4 * i, 4), 10 + 2 * i, 11 + 2 * i))
    stamp_end(b, 1)
    b('s_endpgm')

    b.label('K1_FOLD')
    b('s_load_dwordx4 s[8:11], s[0:1], %d' % KA['wg'])
    b('s_sub_u32 s6, s2, %d' % K1_CONV)
    b('s_and_b32 s12, s6, 3')
    b('s_bfe_u32 s13, s6, 0x10002')
    b('s_lshr_b32 s14, s6, 3')
    b('v_lshrrev_b32 v3, 3, v0')
    b('v_and_b32 v52, 7, v0')
    b('s_lshl_b32 s15, s12, 7')
    b('v_lshl_add_u32 v53, v3, 2, s15')
    b('v_mul_u32_u24 v2, 3584, v53')
    b('v_lshl_add_u32 v2, v52, 4, v2')
    b('s_lshl_b32 s15, s14, 7')
    b('v_add_u32 v2, s15, v2')
    b('v_add_u32 v54, %d, v2' % (2 * 3584))
    b('v_lshlrev_b32 v53, 2, v53')
    b('v_add_u32 v53, 7168, v53')
    b('s_waitcnt lgkmcnt(0)')
    b('s_cmp_eq_u32 s13, 0')
    b('s_cselect_b32 s8, s8, s10')
    b('s_cselect_b32 s9, s9, s11')
    b('global_load_dwordx4 v[4:7], v2, s[8:9]')
    b('global_load_dwordx4 v[8:11], v2, s[8:9] offset:3584')
    b('global_load_dwordx4 v[12:15], v54, s[8:9]')
    b('global_load_dwordx4 v[16:19], v54, s[8:9] offset:3584')
    for q in range(4):
        if q:
            b(add64(18, 4, str(12288 * q)))
        base = 's[18:19]' if q else 's[4:5]'
        b('global_load_dwordx4 %s, v53, %s offset:1024' % (vr(20 + 4 * q, 4), base))
        b('global_load_dwordx4 %s, v53, %s offset:-1024' % (vr(36 + 4 * q, 4), base))
    b('v_lshrrev_b32 v54, 1, v52')
    b('v_mul_u32_u24 v54, 4112, v54')
    b('v_lshrrev_b32 v55, 1, v3')
    b('v_lshl_add_u32 v54, v55, 8, v54')
    b('v_and_b32 v55, 1, v52')
    b('v_lshl_add_u32 v54, v55, 6, v54')
    b('v_and_b32 v55, 1, v3')
    b('v_lshl_add_u32 v54, v55, 3, v54')
    b('v_lshlrev_b32 v55, 9, v3')
    b('v_lshl_add_u32 v55, v52, 5, v55')
    b('v_lshrrev_b32 v2, 4, v0')
    b('v_lshlrev_b32 v2, 9, v2')
    b('v_and_b32 v56, 15, v0')
    b('v_lshl_add_u32 v2, v56, 4, v2')
    b('s_lshl_b32 s15, s14, 17')
    b('s_lshl_b32 s16, s12, 13')
    b('s_add_u32 s15, s15, s16')
    b('s_lshl_b32 s16, s13, 8')
    b('s_add_u32 s15, s15, s16')
    b('s_add_u32 s15, s15, %s' % hex(WS_WF))
    b(add64(20, 4, 's15'))
    b('v_lshlrev_b32 v57, 4, v0')
    stamp(b, 1)
    b('s_waitcnt vmcnt(0)')
    stamp(b, 2)
    for base in (20, 36):
        for k in (0, 2):
            b(pk('add', base + k, [('p', base + k), ('p', base + 4 + k)]))
            b(pk('add', base + 8 + k, [('p', base + 8 + k), ('p', base + 12 + k)]))
        for k in (0, 2):
            b(pk('add', base + k, [('p', base + k), ('p', base + 8 + k)]))
        E(b, rnd_pair(base, 58) + rnd_pair(base + 2, 59))
    b(pk('add', 20, [('p', 20), ('k', '1.0')]))
    b(pk('add', 22, [('p', 22), ('k', '1.0')]))
    E(b, rnd_pair(20, 58) + rnd_pair(22, 59))
    SC, CS, BI = 60, 92, 100
    for i in range(4):
        for k in range(4):
            E(b, unpack(24 + 2 * k, 4 + 4 * i + k))
        for k in range(4):
            b(pk('mul', SC + 8 * i + 2 * k, [('p', 24 + 2 * k), ('b', 20 + i)]))
            if i == 0:
                b(pk('mul', BI + 2 * k, [('p', 24 + 2 * k), ('b', 36 + i)]))
            else:
                b(pk('fma', BI + 2 * k, [('p', 24 + 2 * k), ('b', 36 + i), ('p', BI + 2 * k)]))
    for k in range(4):
        b(pk('add', CS + 2 * k, [('p', SC + 2 * k), ('p', SC + 8 + 2 * k)]))
        b(pk('add', 24 + 2 * k, [('p', SC + 16 + 2 * k), ('p', SC + 24 + 2 * k)]))
    for k in range(4):
        b(pk('add', CS + 2 * k, [('p', CS + 2 * k), ('p', 24 + 2 * k)]))
    for j in range(8):
        t = 4 + 2 * (j & 1)
        b('v_cvt_pk_bf16_f32 v%d, v%d, v%d' % (t, SC + j, SC + 8 + j))
        b('v_cvt_pk_bf16_f32 v%d, v%d, v%d' % (t + 1, SC + 16 + j, SC + 24 + j))
        b('ds_write_b64 v54, %s offset:%d' % (vr(t, 2), 128 * (j >> 2) + 16 * (j & 3)))
    PS = 16448
    b('ds_write_b128 v55, %s offset:%d' % (vr(CS, 4), PS))
    b('ds_write_b128 v55, %s offset:%d' % (vr(CS + 4, 4), PS + 16))
    b('ds_write_b128 v55, %s offset:%d' % (vr(BI, 4), PS + 256))
    b('ds_write_b128 v55, %s offset:%d' % (vr(BI + 4, 4), PS + 272))
    stamp(b, 3)
    b('v_readfirstlane_b32 s22, v0')
    b('s_waitcnt lgkmcnt(0)')
    b('s_barrier')
    for i in range(4):
        b('ds_read_b128 %s, v57 offset:%d' % (vr(4 + 4 * i, 4), 4112 * i))
    for i in range(4):
        b('s_waitcnt lgkmcnt(%d)' % (3 - i))
        b('global_store_dwordx4 v2, %s, s[20:21]' % vr(4 + 4 * i, 4))
        if i < 3:
            b('s_add_u32 s20, s20, 32768\ns_addc_u32 s21, s21, 0')
    b('s_cmp_ge_u32 s22, 128')
    b('s_cbranch_scc1 K1_FIN')
    b('v_lshlrev_b32 v3, 2, v0')
    for k in range(32):
        b('ds_read_b32 v%d, v3 offset:%d' % (24 + k, PS + 512 * k))
    b('v_bfe_u32 v2, v0, 3, 3')
    b('v_lshlrev_b32 v2, 4, v2')
    b('v_and_b32 v3, 7, v0')
    b('v_add_u32 v2, v2, v3')
    b('v_lshrrev_b32 v3, 6, v0')
    b('v_mul_u32_u24 v3, 3584, v3')
    b('v_add_lshl_u32 v2, v2, v3, 2')
    b('s_lshl_b32 s15, s14, 9')
    b('s_lshl_b32 s16, s13, 5')
    b('s_add_u32 s15, s15, s16')
    b('s_mul_i32 s16, s12, %d' % (2 * 3584 * 4))
    b('s_add_u32 s15, s15, s16')
    b('s_add_u32 s15, s15, %s' % hex(WS_CB))
    b(add64(20, 4, 's15'))
    b('s_waitcnt lgkmcnt(0)')
    for w in (16, 8, 4, 2):
        for k in range(0, w, 2):
            b(pk('add', 24 + k, [('p', 24 + k), ('p', 24 + w + k)]))
    b('v_add_f32 v24, v24, v25')
    b('global_store_dword v2, v24, s[20:21]')
    b.label('K1_FIN')
    stamp_end(b, 1)
    b.label('K1_END')
    b('s_endpgm')
    return b.text(), 160, NSG


K2_WGS = 256
ST = 131072
CBL = ST + 2048
K2_LDS = CBL + 7 * 32 * 8
PF = 3


def k2():
    b = Builder()
    b('s_cmp_ge_u32 s2, %d' % K2_WGS)
    b('s_cbranch_scc1 K2_END')
    b('s_load_dwordx2 s[4:5], s[0:1], %d' % KA['ws'])
    stamp_init(b)
    b('v_and_b32 v1, 63, v0')
    b('v_lshrrev_b32 v2, 6, v0')
    b('v_readfirstlane_b32 s33, v2')
    b('s_and_b32 s6, s2, 7')
    b('s_lshr_b32 s7, s2, 3')
    b('s_lshr_b32 s8, s6, 1')
    b('s_lshl_b32 s8, s8, 2')
    b('s_lshr_b32 s9, s7, 3')
    b('s_add_u32 s8, s8, s9')
    b('s_and_b32 s9, s6, 1')
    b('s_lshl_b32 s9, s9, 3')
    b('s_and_b32 s7, s7, 7')
    b('s_add_u32 s9, s9, s7')
    b('s_mul_i32 s9, s9, 7')
    b('v_lshlrev_b32 v2, 4, v1')
    b('s_lshl_b32 s10, s8, 17')
    b('s_add_u32 s10, s10, %s' % hex(WS_X1T))
    b('s_add_u32 s11, s9, s33')
    b('s_lshl_b32 s12, s11, 15')
    b('s_add_u32 s12, s12, %s' % hex(WS_WF))
    b('s_lshl_b32 s34, s33, 11')
    b('s_waitcnt lgkmcnt(0)')
    b(add64(14, 4, 's10'))
    srd(b, 16, 14, 15, 131072)
    b(add64(14, 4, 's12'))
    srd(b, 20, 14, 15, 32768)
    b('s_cmp_eq_u32 s33, 7')
    b('s_cbranch_scc1 K2_STATS')

    W = 128

    def dma(c):
        return ['s_add_u32 s35, s34, %d' % (16384 * c), 's_mov_b32 m0, s35',
                'buffer_load_dwordx4 v2, s[16:19], s35 offen lds',
                'buffer_load_dwordx4 v2, s[16:19], s35 offen offset:1024 lds']

    def wload(c):
        return ['s_movk_i32 s36, %d' % (4096 * c)] + \
               ['buffer_load_dwordx4 %s, v2, s[20:23], s36 offen offset:%d' % (vr(W + 16 * c + 4 * k, 4), 1024 * k) for k in range(4)]
    for c in range(PF):
        E(b, dma(c) + wload(c))
    b('v_lshrrev_b32 v8, 4, v1')
    b('v_bfe_u32 v9, v1, 2, 2')
    b('v_and_b32 v10, 3, v1')
    b('v_lshrrev_b32 v11, 1, v8')
    b('v_lshl_add_u32 v12, v11, 3, v9')
    b('v_lshlrev_b32 v12, 8, v12')
    b('v_lshl_add_u32 v12, v10, 3, v12')
    b('v_xor_b32 v13, v8, v11')
    b('v_and_b32 v13, 1, v13')
    b('v_lshl_add_u32 v12, v13, 5, v12')
    b('v_lshl_add_u32 v4, v9, 6, v12')
    for tt in range(1, 4):
        b('v_xor_b32 v%d, %d, v4' % (4 + tt, 64 * tt))
    XB = 16
    ACC = 64

    def xreads(ks):
        f = XB + 16 * (ks & 1)
        o = (ks & 15) * 4096
        r = []
        for tt in range(4):
            r.append('ds_read_b64_tr_b16 %s, v%d offset:%d' % (vr(f + 4 * tt, 2), 4 + tt, o))
            r.append('ds_read_b64_tr_b16 %s, v%d offset:%d' % (vr(f + 4 * tt + 2, 2), 4 + tt, o + 1024))
        return r
    stamp(b, 1)
    b('s_waitcnt vmcnt(%d)' % (6 * (PF - 1)))
    b('s_barrier')
    stamp(b, 2)
    E(b, xreads(0))
    for ks in range(32):
        c = ks >> 2
        if ks & 3 == 3 and ks < 31:
            left = min(PF - 1, 7 - (c + 1))
            b('s_waitcnt vmcnt(%d)' % (6 * left))
            b('s_barrier')
        if ks == 15:
            stamp(b, 3)
            for tt in range(4):
                b('v_add_u32 v%d, 0x10000, v%d' % (4 + tt, 4 + tt))
        extra = []
        if c + PF < 8:
            if ks & 3 == 0:
                extra = dma(c + PF)
            elif ks & 3 == 1:
                extra = wload(c + PF)
        if ks < 31:
            E(b, xreads(ks + 1))
            b('s_waitcnt lgkmcnt(8)')
        else:
            b('s_waitcnt lgkmcnt(0)')
        f = XB + 16 * (ks & 1)
        for tt in range(4):
            a = vr(ACC + 16 * tt, 16)
            b('v_mfma_f32_32x32x16_bf16 %s, %s, %s, %s' % (a, vr(W + 4 * ks, 4), vr(f + 4 * tt, 4), a if ks else '0'))
            n = (len(extra) + 3 - tt) // 4 if tt < 3 else len(extra)
            n = min(len(extra), 2)
            E(b, extra[:n])
            extra = extra[n:]
        E(b, extra)
    stamp(b, 4)
    b('s_barrier')
    stamp(b, 5)
    b('v_and_b32 v8, 31, v1')
    b('s_mul_i32 s35, s33, 256')
    b('s_add_u32 s35, s35, %d' % CBL)
    b('v_lshl_add_u32 v9, v8, 3, s35')
    b('s_mov_b32 s35, %d' % ST)
    b('v_lshl_add_u32 v8, v8, 4, s35')
    b('ds_read_b64 v[16:17], v9')
    for tt in range(4):
        b('ds_read_b128 %s, v8 offset:%d' % (vr(20 + 4 * tt, 4), 512 * tt))
    b('v_mov_b32 v18, 0\nv_mov_b32 v19, 0')
    b('v_cmp_gt_u32 vcc, 32, v1')
    b('s_lshl_b32 s12, s8, 2')
    b('s_mul_i32 s12, s12, 112')
    b('s_add_u32 s12, s12, s11')
    b('s_lshl_b32 s12, s12, 10')
    b('s_add_u32 s12, s12, %s' % hex(WS_HF))
    b(add64(14, 4, 's12'))
    b('s_waitcnt lgkmcnt(0)')
    b('v_cndmask_b32 v16, 0, v16, vcc')
    b('v_cndmask_b32 v17, 0, v17, vcc')
    K0c = -2.0 * math.sqrt(2.0 / math.pi) * LOG2E
    for tt in range(4):
        s = 20 + 4 * tt
        b('v_mov_b32 v%d, v%d' % (40 + 4 * tt, s + 2))
        b('v_and_b32 v%d, 0xffff0000, v%d' % (41 + 4 * tt, s + 1))
        b('v_mov_b32 v%d, 0' % (s + 2))
        b('v_mov_b32 v%d, 0' % (s + 3))
    for tt in range(4):
        a = vr(ACC + 16 * tt, 16)
        b('v_mfma_f32_32x32x16_bf16 %s, v[16:19], %s, %s' % (a, vr(20 + 4 * tt, 4), a))
    for tt in range(4):
        c = 40 + 4 * tt
        b('v_mul_f32 v%d, v%d, v%d' % (c + 1, c + 1, c + 1))
        b('v_mul_f32 v%d, v%d, v%d' % (c + 2, c, c))
        b('v_mul_f32 v%d, %s, v%d' % (c, fhex(K0c), c))
        b('v_mul_f32 v%d, v%d, v%d' % (c + 2, c + 2, c))
        b('v_mul_f32 v%d, %s, v%d' % (c + 2, fhex(0.044715), c + 2))
    T = 128
    stamp(b, 6)
    for tt in range(4):
        c = 40 + 4 * tt
        g = ACC + 16 * tt
        t = T + 16 * (tt & 1)
        for k in range(4):
            b(pk('mul', t + 2 * k, [('p', g + 2 * k), ('p', g + 2 * k)]))
        for k in range(4):
            b(pk('fma', t + 2 * k, [('p', t + 2 * k), ('b', c + 2), ('b', c)]))
        for k in range(4):
            b(pk('mul', t + 2 * k, [('p', t + 2 * k), ('p', g + 2 * k)]))
        for k in range(8):
            b('v_exp_f32 v%d, v%d' % (t + k, t + k))
            if k < 4:
                b(pk('mul', g + 2 * k, [('p', g + 2 * k), ('p', g + 8 + 2 * k)]))
        for k in range(4):
            b(pk('fma', t + 2 * k, [('p', t + 2 * k), ('b', c + 1), ('b', c + 1)]))
        for k in range(8):
            b('v_rcp_f32 v%d, v%d' % (t + k, t + k))
        for k in range(4):
            b(pk('mul', g + 2 * k, [('p', g + 2 * k), ('p', t + 2 * k)]))
        for k in range(4):
            b('v_cvt_pk_bf16_f32 v%d, v%d, v%d' % (t + 8 + k, g + 2 * k, g + 2 * k + 1))
        b('global_store_dwordx4 v2, %s, s[14:15]' % vr(t + 8, 4))
        if tt < 3:
            b('s_add_u32 s14, s14, %d\ns_addc_u32 s15, s15, 0' % 114688)
    stamp_end(b, 2)
    b('s_endpgm')

    b.label('K2_STATS')
    for c in range(PF):
        E(b, dma(c))
    b('s_lshl_b32 s12, s9, 7')
    b('s_add_u32 s12, s12, %s' % hex(WS_CB))
    b(add64(14, 4, 's12'))
    b('v_min_u32 v3, 55, v1')
    b('v_lshlrev_b32 v3, 4, v3')
    for q in range(4):
        for w in range(2):
            if q or w:
                b('s_add_u32 s14, s14, %d\ns_addc_u32 s15, s15, 0' % (3584 * 4))
            b('global_load_dwordx4 %s, v3, s[14:15]' % vr(160 + 16 * w + 4 * q, 4))
    b('v_lshrrev_b32 v12, 4, v1')
    b('v_bfe_u32 v13, v1, 2, 2')
    b('v_and_b32 v14, 3, v1')
    b('v_lshl_add_u32 v15, v12, 3, v13')
    b('v_lshlrev_b32 v15, 8, v15')
    b('v_lshl_add_u32 v15, v14, 3, v15')
    b('v_and_b32 v14, 1, v12')
    b('v_lshl_add_u32 v14, v13, 1, v14')
    b('v_lshl_add_u32 v4, v14, 5, v15')
    for tt in range(1, 8):
        b('v_xor_b32 v%d, %d, v4' % (4 + tt, 32 * tt))
    for i in range(4):
        b('v_mov_b32 v%d, 0x3f803f80' % (56 + i))
    SB = 16

    def sreads(u):
        kk, hh = u >> 1, u & 1
        f = SB + 16 * (u & 1)
        o = (kk & 7) * 8192
        r = []
        for j in range(4):
            r.append('ds_read_b64_tr_b16 %s, v%d offset:%d' % (vr(f + 4 * j, 2), 4 + 4 * hh + j, o))
            r.append('ds_read_b64_tr_b16 %s, v%d offset:%d' % (vr(f + 4 * j + 2, 2), 4 + 4 * hh + j, o + 1024))
        return r
    stamp(b, 1)
    b('s_waitcnt vmcnt(%d)' % (2 * (PF - 1) + 8))
    b('s_barrier')
    stamp(b, 2)
    E(b, sreads(0))
    for u in range(32):
        c = u >> 2
        if u & 3 == 3 and u < 31:
            left = min(PF - 1, 7 - (c + 1))
            extra8 = 8 if c + 1 < PF else 0
            b('s_waitcnt vmcnt(%d)' % (2 * left + (8 if c + 1 < PF - 0 and False else 0)))
            b('s_barrier')
        if u == 15:
            for tt in range(8):
                b('v_add_u32 v%d, 0x10000, v%d' % (4 + tt, 4 + tt))
        if c + PF < 8 and u & 3 == 0:
            E(b, dma(c + PF))
        if u < 31:
            E(b, sreads(u + 1))
            b('s_waitcnt lgkmcnt(8)')
        else:
            b('s_waitcnt lgkmcnt(0)')
        f = SB + 16 * (u & 1)
        for j in range(4):
            tt = 4 * (u & 1) + j
            aq, as_ = vr(64 + 8 * tt, 4), vr(68 + 8 * tt, 4)
            first = u < 2
            b('v_mfma_f32_16x16x32_bf16 %s, %s, %s, %s' % (aq, vr(f + 4 * j, 4), vr(f + 4 * j, 4), '0' if first else aq))
            b('v_mfma_f32_16x16x32_bf16 %s, v[56:59], %s, %s' % (as_, vr(f + 4 * j, 4), '0' if first else as_))
    stamp(b, 4)
    b('s_waitcnt vmcnt(0)')
    for w in range(2):
        p = 160 + 16 * w
        for k in (0, 2):
            b(pk('add', p + k, [('p', p + k), ('p', p + 4 + k)]))
            b(pk('add', p + 8 + k, [('p', p + 8 + k), ('p', p + 12 + k)]))
        for k in (0, 2):
            b(pk('add', p + k, [('p', p + k), ('p', p + 8 + k)]))
    b('v_min_u32 v3, 55, v1')
    b('v_lshrrev_b32 v12, 3, v3')
    b('v_lshlrev_b32 v12, 5, v12')
    b('v_bfe_u32 v13, v3, 2, 1')
    b('v_lshl_add_u32 v12, v13, 2, v12')
    b('v_bfe_u32 v13, v3, 1, 1')
    b('v_lshl_add_u32 v12, v13, 4, v12')
    b('v_and_b32 v13, 1, v3')
    b('v_lshl_add_u32 v12, v13, 3, v12')
    b('v_lshlrev_b32 v12, 3, v12')
    b('v_add_u32 v12, %d, v12' % CBL)
    for j in range(4):
        for w in range(2):
            x = 160 + 16 * w + j
            t = 16 + 2 * j + w
            b('v_cvt_pk_bf16_f32 v%d, v%d, v%d' % (t, x, x))
            b('v_and_b32 v%d, 0xffff0000, v%d' % (x + 4, t))
            b('v_sub_f32 v%d, v%d, v%d' % (x, x, x + 4))
            b('v_cvt_pk_bf16_f32 v%d, v%d, v%d' % (t, x + 4, x))
    b('ds_write_b128 v12, v[16:19]')
    b('ds_write_b128 v12, v[20:23] offset:16')
    b('v_and_b32 v13, 3, v1')
    b('v_cmp_eq_u32 s[40:41], 1, v13')
    b('v_cmp_eq_u32 s[42:43], 2, v13')
    b('v_cmp_eq_u32 s[44:45], 3, v13')
    b('v_bfe_u32 v13, v1, 2, 2')
    b('v_lshrrev_b32 v14, 4, v1')
    b('v_cmp_eq_u32 vcc, v13, v14')
    b('v_and_b32 v13, 15, v1')
    b('v_lshlrev_b32 v13, 4, v13')
    b('v_add_u32 v13, %d, v13' % ST)
    b('v_mov_b32 v14, %s' % fhex(1.0 / 512))
    Q = [64 + 8 * tt for tt in range(8)]
    for q in Q:
        b('v_cndmask_b32 v%d, v%d, v%d, s[40:41]' % (q, q, q + 1))
    for q in Q:
        b('v_cndmask_b32 v%d, v%d, v%d, s[42:43]' % (q, q, q + 2))
    for q in Q:
        b('v_cndmask_b32 v%d, v%d, v%d, s[44:45]' % (q, q, q + 3))
    for q in Q:
        b('v_mul_f32 v%d, v%d, v14' % (q + 4, q + 4))
        b('v_mul_f32 v%d, v%d, v14' % (q, q))
    for q in Q:
        b('v_fma_f32 v%d, -v%d, v%d, v%d' % (q, q + 4, q + 4, q))
    for q in Q:
        b('v_max_f32 v%d, 0, v%d' % (q, q))
    for q in Q:
        E(b, rnd_bf16(q))
    for q in Q:
        b('v_add_f32 v%d, %s, v%d' % (q, fhex(1e-5), q))
    for q in Q:
        E(b, rnd_bf16(q))
    for q in Q:
        b('v_sqrt_f32 v%d, v%d' % (q, q))
    for q in Q:
        b('v_cvt_pk_bf16_f32 v%d, v%d, v%d' % (q + 1, q, q))
        b('v_cvt_pk_bf16_f32 v%d, -v%d, -v%d' % (q, q + 4, q + 4))
    for q in Q:
        b('v_lshlrev_b32 v%d, 16, v%d' % (q + 2, q + 1))
    for q in Q:
        b('v_rcp_f32 v%d, v%d' % (q + 2, q + 2))
    b('s_and_saveexec_b64 s[40:41], vcc')
    for tt, q in enumerate(Q):
        b('ds_write_b128 v13, %s offset:%d' % (vr(q, 4), 256 * tt))
    b('s_mov_b64 exec, s[40:41]')
    stamp(b, 5)
    b('s_waitcnt lgkmcnt(0)')
    b('s_barrier')
    b.label('K2_FIN')
    stamp_end(b, 2)
    b.label('K2_END')
    b('s_endpgm')
    return b.text(), 256, NSG


K3_WGS = 256
K3_LDS = 4 * 3 * 4096
DEPTH = 11


def k3():
    b = Builder()
    b('s_cmp_ge_u32 s2, %d' % K3_WGS)
    b('s_cbranch_scc1 K3_END')
    b('s_load_dwordx2 s[4:5], s[0:1], %d' % KA['ws'])
    b('s_load_dwordx2 s[6:7], s[0:1], %d' % KA['out'])
    stamp_init(b)
    b('v_and_b32 v1, 63, v0')
    b('v_lshrrev_b32 v2, 6, v0')
    b('v_readfirstlane_b32 s33, v2')
    b('s_and_b32 s8, s2, 7')
    b('s_lshr_b32 s9, s2, 3')
    b('s_lshr_b32 s10, s8, 1')
    b('s_lshl_b32 s10, s10, 3')
    b('s_lshr_b32 s11, s9, 2')
    b('s_add_u32 s10, s10, s11')
    b('s_and_b32 s11, s8, 1')
    b('s_lshl_b32 s11, s11, 2')
    b('s_and_b32 s9, s9, 3')
    b('s_add_u32 s11, s11, s9')
    b('v_lshlrev_b32 v2, 4, v1')
    b('v_add_u32 v3, %d, v2' % 114688)
    b('s_mul_i32 s12, s33, %d' % (28 * 1024))
    b('s_mul_i32 s13, s10, %d' % (2 * 114688))
    b('s_add_u32 s13, s13, s12')
    b('s_add_u32 s13, s13, %s' % hex(WS_HF))
    b('s_mul_i32 s14, s11, %d' % (2 * 114688))
    b('s_add_u32 s14, s14, s12')
    b('s_add_u32 s14, s14, %s' % hex(WS_WD))
    b('s_waitcnt lgkmcnt(0)')
    b(add64(16, 4, 's13'))
    srd(b, 20, 16, 17, 114688 + 28 * 1024)
    b(add64(16, 4, 's14'))
    srd(b, 24, 16, 17, 114688 + 28 * 1024)
    FB = 80
    ACC = 16

    def loads(ks):
        f = FB + 16 * (ks % DEPTH)
        r = []
        if ks & 3 == 0:
            r.append('s_movk_i32 s34, %d' % (1024 * ks))
        o = 1024 * (ks & 3)
        r += ['buffer_load_dwordx4 %s, v2, s[24:27], s34 offen offset:%d' % (vr(f, 4), o),
              'buffer_load_dwordx4 %s, v2, s[20:23], s34 offen offset:%d' % (vr(f + 8, 4), o),
              'buffer_load_dwordx4 %s, v3, s[24:27], s34 offen offset:%d' % (vr(f + 4, 4), o),
              'buffer_load_dwordx4 %s, v3, s[20:23], s34 offen offset:%d' % (vr(f + 12, 4), o)]
        return r
    for ks in range(DEPTH):
        E(b, loads(ks))
    stamp(b, 1)
    for ks in range(28):
        f = FB + 16 * (ks % DEPTH)
        left = min(DEPTH - 1, 27 - ks)
        b('s_waitcnt vmcnt(%d)' % (4 * left))
        if ks == 0:
            stamp(b, 2)
        if ks == 14:
            stamp(b, 3)
        for dt in range(2):
            for tt in range(2):
                a = vr(ACC + 16 * (2 * tt + dt), 16)
                b('v_mfma_f32_32x32x16_bf16 %s, %s, %s, %s' % (a, vr(f + 4 * dt, 4), vr(f + 8 + 4 * tt, 4), a if ks else '0'))
        if ks + DEPTH < 28:
            E(b, loads(ks + DEPTH))
    stamp(b, 4)
    b('s_and_b32 s35, s33, 1')
    b('s_lshr_b32 s36, s33, 1')
    b('s_lshl_b32 s37, s11, 6')
    b('s_lshl_b32 s38, s35, 5')
    b('s_add_u32 s37, s37, s38')
    b('s_lshl_b32 s38, s10, 6')
    b('s_lshl_b32 s39, s36, 5')
    b('s_add_u32 s38, s38, s39')
    b('v_lshrrev_b32 v4, 5, v1')
    b('v_and_b32 v5, 31, v1')
    b('s_lshr_b32 s39, s38, 7')
    b('s_lshl_b32 s39, s39, 17')
    b('s_lshl_b32 s40, s37, 8')
    b('s_add_u32 s39, s39, s40')
    b('s_add_u32 s39, s39, %s' % hex(WS_X1T))
    b(add64(16, 4, 's39'))
    b('s_and_b32 s40, s38, 127')
    b('v_add_lshl_u32 v6, v5, s40, 1')
    b('v_lshl_add_u32 v6, v4, 10, v6')
    R = FB
    for j in range(4):
        b('v_xor_b32 v%d, %d, v6' % (8 + j, 64 * j))
        b('v_xor_b32 v%d, %d, v6' % (12 + j, 64 * j + 32))
    b('s_add_u32 s18, s16, 4096\ns_addc_u32 s19, s17, 0')
    for q in range(4):
        for j in range(4):
            b('global_load_ushort v%d, v%d, s[%d:%d] offset:%d' % (R + 4 * q + j, (12 if q & 1 else 8) + j, 16 + 2 * (q >> 1), 17 + 2 * (q >> 1), 2048 * (q & 1) + 256 * j))
    b('s_lshl_b32 s40, s37, 2')
    b('s_add_u32 s40, s40, %s' % hex(WS_GB))
    b(add64(28, 4, 's40'))
    b('v_lshlrev_b32 v7, 4, v4')
    for q in range(4):
        b('global_load_dwordx4 %s, v7, s[28:29] offset:%d' % (vr(R + 16 + 4 * q, 4), 32 * q))
    for d in range(4):
        b('s_sub_u32 s41, s33, %d' % (d + 1))
        b('s_and_b32 s41, s41, 3')
        b('s_cmp_eq_u32 s41, 3')
        b('s_cbranch_scc1 K3_SK%d' % d)
        b('s_add_u32 s41, s41, %d' % (3 * d))
        b('s_lshl_b32 s41, s41, 12')
        b('v_add_u32 v6, s41, v2')
        for q in range(4):
            b('ds_write_b128 v6, %s offset:%d' % (vr(ACC + 16 * d + 4 * q, 4), 1024 * q))
        b('s_branch K3_SJ%d' % d)
        b.label('K3_SK%d' % d)
        for q in range(16):
            b('v_mov_b32 v%d, v%d' % (R + 32 + q, ACC + 16 * d + q))
        b.label('K3_SJ%d' % d)
    b('s_mul_i32 s41, s33, %d' % (3 * 4096))
    b('v_add_u32 v6, s41, v2')
    b('s_lshl_b32 s38, s38, 10')
    b('s_lshl_b32 s37, s37, 1')
    b('s_add_u32 s38, s38, s37')
    b(add64(6, 6, 's38'))
    b('v_lshlrev_b32 v5, 10, v5')
    b('v_lshl_add_u32 v5, v4, 4, v5')
    b('s_waitcnt lgkmcnt(0)')
    b('s_barrier')
    stamp(b, 5)
    for s in range(3):
        for q in range(4):
            b('ds_read_b128 %s, v6 offset:%d' % (vr(ACC + 16 * s + 4 * q, 4), 4096 * s + 1024 * q))
    O = R + 32
    for s in range(3):
        b('s_waitcnt lgkmcnt(%d)' % (8 - 4 * s))
        for k in range(0, 16, 2):
            b(pk('add', O + k, [('p', O + k), ('p', ACC + 16 * s + k)]))
    b('s_waitcnt vmcnt(0)')
    stamp(b, 6)
    for k in range(16):
        b('v_lshlrev_b32 v%d, 16, v%d' % (R + k, R + k))
    for k in range(0, 16, 2):
        if EXACT['out']:
            E(b, rnd_pair(O + k, 8 + ((k >> 1) & 1)))
            b(pk('mul', O + k, [('p', O + k), ('p', R + 16 + k)]))
            E(b, rnd_pair(O + k, 8 + ((k >> 1) & 1)))
            b(pk('add', O + k, [('p', O + k), ('p', R + k)]))
        else:
            b(pk('fma', O + k, [('p', O + k), ('p', R + 16 + k), ('p', R + k)]))
    for k in range(8):
        b('v_cvt_pk_bf16_f32 v%d, v%d, v%d' % (ACC + k, O + 2 * k, O + 2 * k + 1))
    for p in range(2):
        b('v_permlane32_swap_b32 v%d, v%d' % (ACC + 4 * p, ACC + 4 * p + 2))
        b('v_permlane32_swap_b32 v%d, v%d' % (ACC + 4 * p + 1, ACC + 4 * p + 3))
        b('global_store_dwordx4 v5, %s, s[6:7] offset:%d' % (vr(ACC + 4 * p, 4), 32 * p))
    b.label('K3_FIN')
    stamp_end(b, 3)
    b.label('K3_END')
    b('s_endpgm')
    return b.text(), 256, NSG


def kernels():
    return [('conv_kernel', k1, K1_WGS, 256, K1_LDS),
            ('gemm1_kernel', k2, K2_WGS, 512, K2_LDS),
            ('gemm2_kernel', k3, K3_WGS, 256, K3_LDS)]
```

```python
import math
import sys
from asmlib import Builder, vr, sr, fhex

NAME = 'adaLN_cond__ssm_conv_s4__glu_gated_geglu__prompt'

WS_MODP = 0x0
WS_GB = 0x10000
WS_CB = 0x11000
WS_LNT = 0x100000
WS_XT = 0x300000
WS_KC = 0x500000
WS_X1T = 0xA00000
WS_WF = 0xC00000
WS_WD = 0x1000000
WS_HF = 0x1200000

LOG2E = 1.4426950408889634
EXACT = dict(ln=True, h=True, x1=True, out=True)

KA = dict(u=0, are=8, aim=16, bre=24, bim=32, cre=40, cim=48, ldt=56, dsk=64, bx=72, wg=80, wu=88, wd=96, c=104, wm=112,
          out=120, dbg=128, ws=136)


def pk(op, d, srcs, neg_lo=None, neg_hi=None):
    ops, sl, sh = [], [], []
    for kind, r in srcs:
        if kind == 'p':
            assert r % 2 == 0
            ops.append(vr(r, 2)); sl.append(0); sh.append(1)
        elif kind == 'x':
            ops.append(vr(r, 2)); sl.append(1); sh.append(0)
        elif kind == 'b':
            ops.append(vr(r & ~1, 2)); sl.append(r & 1); sh.append(r & 1)
        else:
            ops.append(r); sl.append(0); sh.append(0)
    assert d % 2 == 0
    s = 'v_pk_%s_f32 %s, %s op_sel:[%s] op_sel_hi:[%s]' % (op, vr(d, 2), ', '.join(ops), ','.join(map(str, sl)), ','.join(map(str, sh)))
    if neg_lo:
        s += ' neg_lo:[%s]' % ','.join(map(str, neg_lo))
    if neg_hi:
        s += ' neg_hi:[%s]' % ','.join(map(str, neg_hi))
    return s


def cmul(d, a, b):
    return [pk('mul', d, [('b', a), ('p', b)]),
            pk('fma', d, [('b', a + 1), ('x', b), ('p', d)], neg_lo=[0, 1, 0])]


def weave(*seqs):
    out = []
    seqs = [list(s) for s in seqs]
    while any(seqs):
        for s in seqs:
            if s:
                out.append(s.pop(0))
    return out


def wave_reduce(op, regs):
    out = []
    for m in ('row_ror:8', 'row_ror:4', 'row_ror:2', 'row_ror:1'):
        for r in regs:
            out.append('v_%s_f32_dpp v%d, v%d, v%d %s row_mask:0xf bank_mask:0xf' % (op, r, r, r, m))
    for m, rm in (('row_bcast:15', '0xa'), ('row_bcast:31', '0xc')):
        for r in regs:
            out.append('v_%s_f32_dpp v%d, v%d, v%d %s row_mask:%s bank_mask:0xf' % (op, r, r, r, m, rm))
    return out


def rnd_bf16(r, t=None):
    return ['v_cvt_pk_bf16_f32 v%d, v%d, v%d' % (r, r, r), 'v_lshlrev_b32 v%d, 16, v%d' % (r, r)]


def rnd_pair(a, t):
    return ['v_cvt_pk_bf16_f32 v%d, v%d, v%d' % (t, a, a + 1),
            'v_lshlrev_b32 v%d, 16, v%d' % (a, t),
            'v_and_b32 v%d, 0xffff0000, v%d' % (a + 1, t)]


def unpack(dst, src):
    return ['v_lshlrev_b32 v%d, 16, v%d' % (dst, src), 'v_and_b32 v%d, 0xffff0000, v%d' % (dst + 1, src)]


def add64(d, b, off):
    return 's_add_u32 s%d, s%d, %s\ns_addc_u32 s%d, s%d, 0' % (d, b, off, d + 1, b + 1)


import os
STAMPS = bool(os.environ.get('STAMPS'))
WS_STAMP = 0x2000000
NSG = 96 if STAMPS else 48


def stamp(b, i):
    if STAMPS:
        b('s_memrealtime s[%d:%d]' % (64 + 2 * i, 65 + 2 * i))


def stamp_init(b):
    if STAMPS:
        for i in range(16):
            b('s_mov_b32 s%d, 0' % (64 + i))
        b('v_lshrrev_b32 v1, 6, v0')
        b('s_nop 1')
        b('v_readfirstlane_b32 s62, v1')
        stamp(b, 0)


def stamp_end(b, kern):
    if STAMPS:
        b('s_waitcnt vmcnt(0)')
        stamp(b, 7)
        b('s_lshl_b32 s60, s2, 3')
        b('s_add_u32 s60, s60, s62')
        b('s_lshl_b32 s60, s60, 6')
        b('s_add_u32 s60, s60, %d' % (WS_STAMP + kern * 1024 * 8 * 64))
        b('s_add_u32 s60, s4, s60')
        b('s_addc_u32 s61, s5, 0')
        b('s_mov_b64 exec, 1')
        b('v_mov_b32 v0, 0')
        b('s_waitcnt lgkmcnt(0)')
        for i in range(16):
            b('v_mov_b32 v%d, s%d' % (4 + i, 64 + i))
        for i in range(4):
            b('global_store_dwordx4 v0, %s, s[60:61] offset:%d' % (vr(4 + 4 * i, 4), 16 * i))


def E(b, seq):
    for s in seq:
        b(s)


K0_KGEN, K0_LN, K0_MOD, K0_WDR = 256, 128, 192, 112
K0_WGS = K0_KGEN + K0_LN + K0_MOD + K0_WDR
TBL_STRIDE = 13312
K0_WBUF = 2 * TBL_STRIDE
K0_LDS = K0_WBUF + 4 * 4352


def transpose_write_addr(b, va, lane, wave_v, t):
    b('v_lshlrev_b32 v%d, 8, v%d' % (t, lane))
    b('v_lshl_add_u32 v%d, v%d, 3, v%d' % (t, wave_v, t))
    b('v_and_b32 v%d, 7, v%d' % (va, lane))
    b('v_lshlrev_b32 v%d, 4, v%d' % (va, va))
    b('v_xor_b32 v%d, v%d, v%d' % (va, va, t))
    for j in range(1, 4):
        b('v_xor_b32 v%d, %d, v%d' % (va + j, 32 * j, va))


def k0():
    b = Builder()
    b('s_cmp_ge_u32 s2, %d' % K0_WGS)
    b('s_cbranch_scc1 K0_END')
    b('s_load_dwordx2 s[4:5], s[0:1], %d' % KA['ws'])
    stamp_init(b)
    b('v_and_b32 v1, 63, v0')
    b('s_cmp_ge_u32 s2, %d' % K0_KGEN)
    b('s_cbranch_scc1 K0_NOTK')
    b('s_load_dwordx4 s[8:11], s[0:1], %d' % KA['are'])
    b('s_load_dwordx4 s[12:15], s[0:1], %d' % KA['bre'])
    b('s_load_dwordx4 s[16:19], s[0:1], %d' % KA['cre'])
    b('s_load_dwordx2 s[20:21], s[0:1], %d' % KA['ldt'])
    b('s_and_b32 s6, s2, 7\ns_lshl_b32 s6, s6, 5\ns_lshr_b32 s7, s2, 3\ns_add_u32 s6, s6, s7\ns_lshl_b32 s6, s6, 1')
    b('s_lshl_b32 s7, s6, 8')
    b('v_lshl_add_u32 v2, v0, 1, s7')
    b('v_lshrrev_b32 v3, 7, v0')
    b('v_add_lshl_u32 v11, v3, s6, 1')
    b('s_waitcnt lgkmcnt(0)')
    for i in range(6):
        b('global_load_ushort v%d, v2, s[%d:%d]' % (4 + i, 8 + 2 * i, 9 + 2 * i))
    b('global_load_ushort v10, v11, s[20:21]')
    b('v_and_b32 v76, 127, v0')
    b('v_mul_u32_u24 v77, %d, v3' % TBL_STRIDE)
    b('v_lshl_add_u32 v78, v76, 4, v77')
    for i in range(4):
        b('v_mov_b32 v%d, 0' % (80 + i))
    for i in range(5):
        b('ds_write_b128 v78, v[80:83] offset:%d' % (2048 * i))
    G = 124
    b('v_lshlrev_b32 v79, 4, v76')
    b('v_sub_u32 v79, 2047, v79')
    b('v_cvt_f32_i32 v%d, v79' % G)
    b('v_lshrrev_b32 v84, 2, v77')
    b('v_add_u32 v84, 2, v84')
    for j in range(1, 18):
        b('v_add_f32 v%d, %s, v%d' % (G + j, fhex(-float(j)), G))
    for j in range(0, 18, 2):
        E(b, rnd_pair(G + j, 85))
    for j in range(17):
        b('v_cvt_i32_f32 v%d, v%d' % (G + j, G + j))
    for j in range(17):
        b('v_ashrrev_i32 v85, 4, v%d' % (G + j))
        b('v_add3_u32 v%d, v%d, v85, v84' % (G + j, G + j))
        b('v_lshlrev_b32 v%d, 2, v%d' % (G + j, G + j))
    b('v_and_b32 v85, 15, v1')
    b('v_lshrrev_b32 v86, 4, v1')
    b('v_mad_u32_u24 v85, v85, 17, v84')
    b('v_lshl_add_u32 v120, v86, 2, v85')
    b('v_mul_u32_u24 v87, 272, v86')
    b('v_lshlrev_b32 v88, 1, v86')
    b('v_add_u32 v88, 272, v88')
    b('v_max_u32 v87, v87, v88')
    b('v_add_u32 v121, v87, v85')
    b('v_lshrrev_b32 v87, 1, v86')
    b('v_add_u32 v87, 1, v87')
    b('v_mul_u32_u24 v87, 1088, v87')
    b('v_and_b32 v88, 1, v86')
    b('v_lshl_add_u32 v87, v88, 3, v87')
    b('v_add_u32 v122, v87, v85')
    for i in range(3):
        b('v_lshlrev_b32 v%d, 2, v%d' % (120 + i, 120 + i))
    b('v_lshrrev_b32 v87, 6, v0')
    b('v_mul_u32_u24 v87, 4352, v87')
    b('v_add_u32 v87, %d, v87' % K0_WBUF)
    b('v_lshl_add_u32 v74, v1, 2, v87')
    b('v_and_b32 v88, 15, v1')
    b('v_mul_u32_u24 v88, 272, v88')
    b('v_lshl_add_u32 v88, v86, 4, v88')
    b('v_add_u32 v75, v88, v87')
    b('v_add_u32 v2, s6, v3')
    b('v_mul_u32_u24 v2, 8704, v2')
    b('v_lshl_add_u32 v3, v76, 4, v2')
    b('v_lshl_add_u32 v2, v76, 5, v2')
    b('v_mov_b32 v11, v76')
    b(add64(26, 4, hex(WS_KC)))
    for i in range(12):
        b('v_mov_b32 v%d, 0' % (108 + i))
    stamp(b, 1)
    b('s_waitcnt vmcnt(0)')
    stamp(b, 2)
    for i in range(4, 11):
        b('v_lshlrev_b32 v%d, 16, v%d' % (i, i))
    b('v_mul_f32 v10, %s, v10' % fhex(LOG2E))
    b('v_exp_f32 v10, v10')
    E(b, rnd_bf16(10))
    b(pk('mul', 12, [('p', 4), ('b', 10)]))
    b(pk('mul', 6, [('p', 6), ('b', 10)]))
    b('v_mul_f32 v12, %s, v12' % fhex(LOG2E))
    b('v_mul_f32 v13, %s, v13' % fhex(1.0 / (2 * math.pi)))
    E(b, cmul(14, 8, 6))

    def zpow(d, p, ta, tb):
        s = []
        if p == 1:
            s += ['v_exp_f32 v%d, v12' % ta, 'v_fract_f32 v%d, v13' % tb]
        else:
            s += ['v_mul_f32 v%d, %s, v12' % (ta, fhex(float(p))), 'v_mul_f32 v%d, %s, v13' % (tb, fhex(float(p))),
                  'v_exp_f32 v%d, v%d' % (ta, ta), 'v_fract_f32 v%d, v%d' % (tb, tb)]
        s += ['v_cos_f32 v%d, v%d' % (d, tb), 'v_sin_f32 v%d, v%d' % (d + 1, tb), pk('mul', d, [('p', d), ('b', ta)])]
        return s
    Z1, Z16, ZB, US, VA, VB = 16, 18, 20, 36, 68, 70
    mx = ['v_max_f32 v72, abs(v14), abs(v15)'] + wave_reduce('max', [72]) + ['v_frexp_exp_i32_f32 v72, v72', 'v_readlane_b32 s22, v72, 63']
    zs = zpow(Z16, 16, 4, 5) + zpow(Z1, 1, 6, 7) + zpow(ZB, 256, 8, 9)
    seq = []
    while mx or zs:
        if mx:
            seq.append(mx.pop(0))
        seq += zs[:2]
        zs = zs[2:]
    E(b, seq)
    b('s_sub_i32 s23, 13, s22')
    b('s_sub_i32 s24, s22, 21')
    b('v_ldexp_f32 v%d, v14, s23' % VA)
    b('v_ldexp_f32 v%d, v15, s23' % (VA + 1))

    tq = [72, 73]

    def emit_row(src, row, neg=False):
        t = tq[row & 1]
        return ['v_cvt_pk_f16_f32 v%d, v%d, %sv%d' % (t, src, '-' if neg else '', src + 1),
                'ds_write_b32 v74, v%d offset:%d' % (t, row * 272)]

    def read_frags(d):
        return ['ds_read_b128 %s, v75 offset:%d' % (vr(d + 4 * j, 4), 64 * j) for j in range(4)]
    VF, UF, DA = 76, 92, 108
    cv = []
    cur, nxt = VA, VB
    for i in range(16):
        cv += emit_row(cur, i, True)
        if i < 15:
            cv += cmul(nxt, cur, Z16)
            cur, nxt = nxt, cur
    cu = ['v_mov_b32 v%d, 0x43800000' % US, 'v_mov_b32 v%d, 0' % (US + 1), pk('mul', US + 2, [('p', Z1), ('b', US)])]
    for i in range(2, 16):
        cu += cmul(US + 2 * i, US + 2 * (i - 1), Z1)
    E(b, weave(cv, cu))
    E(b, read_frags(VF))
    r0 = []
    for i in range(16):
        r0 += emit_row(US + 2 * i, i)
    cz = []
    for m in range(1, 8):
        cz += cmul(ZB + 2 * m, ZB + 2 * (m - 1), ZB)
    E(b, weave(r0, cz))
    E(b, read_frags(UF))

    def mf(tile):
        return ['v_mfma_f32_16x16x32_f16 %s, %s, %s, %s' % (vr(DA + 4 * tile, 4), vr(UF + 4 * j, 4), vr(VF + 4 * j, 4), vr(DA + 4 * tile, 4)) for j in range(4)]
    t1 = []
    for g, (zi, uo) in enumerate(((0, 0), (0, 2), (1, 0), (2, 0))):
        for rho in range(4):
            d = VA if (rho & 1) == 0 else VB
            t1 += cmul(d, ZB + 2 * zi, US + 2 * (4 * rho + uo))
            t1 += emit_row(d, 4 * g + rho)
    E(b, t1)
    b('s_waitcnt lgkmcnt(15)')
    E(b, mf(0))
    UF2 = 36 + 2
    UF1 = 142
    E(b, ['ds_read_b128 %s, v75 offset:%d' % (vr(UF1 + 4 * j, 4), 64 * j) for j in range(4)])
    t2 = []
    for rho in range(4):
        d = VA if (rho & 1) == 0 else VB
        t2 += [pk('mul', d, [('p', ZB + 2 * (3 + rho)), ('b', US)])] + emit_row(d, rho)
    for rho in range(4):
        d = VA if (rho & 1) == 0 else VB
        t2 += cmul(d, ZB + 2 * (3 + rho), US + 16) + emit_row(d, 4 + rho)
    t2 += [pk('mul', VA, [('p', ZB + 14), ('b', US)])] + emit_row(VA, 8)
    E(b, t2)
    E(b, read_frags(UF))
    b('s_waitcnt lgkmcnt(13)')
    E(b, ['v_mfma_f32_16x16x32_f16 %s, %s, %s, %s' % (vr(DA + 4, 4), vr(UF1 + 4 * j, 4), vr(VF + 4 * j, 4), vr(DA + 4, 4)) for j in range(4)])
    b('s_waitcnt lgkmcnt(0)')
    E(b, mf(2))
    stamp(b, 3)
    b('s_barrier')
    for t, step in ((0, 4), (1, 16), (2, 1088)):
        for rho in range(4):
            b('v_ldexp_f32 v%d, v%d, s24' % (DA + 4 * t + rho, DA + 4 * t + rho))
        for rho in range(4):
            b('ds_add_f32 v%d, v%d offset:%d' % (120 + t, DA + 4 * t + rho, step * rho))
    b('s_waitcnt lgkmcnt(0)')
    b('s_barrier')
    stamp(b, 4)
    for j in range(17):
        b('ds_read_b32 v%d, v%d' % (G + j, G + j))
    for i in range(4):
        b('v_mov_b32 v%d, 0' % (80 + i))
    b('v_cmp_gt_u32 vcc, 8, v11')
    b('s_and_saveexec_b64 s[28:29], vcc')
    b('s_cbranch_execz K0_NOZ')
    b('s_add_u32 s30, s26, 4096\ns_addc_u32 s31, s27, 0')
    b('global_store_dwordx4 v3, v[80:83], s[30:31]')
    b('s_add_u32 s30, s26, %d\ns_addc_u32 s31, s27, 0' % (4096 + 4224))
    b('global_store_dwordx4 v3, v[80:83], s[30:31]')
    b.label('K0_NOZ')
    b('s_mov_b64 exec, s[28:29]')
    b('s_add_u32 s30, s26, 4224\ns_addc_u32 s31, s27, 0')
    b('s_waitcnt lgkmcnt(0)')
    for m in range(8):
        b('v_cvt_pk_bf16_f32 v%d, v%d, v%d' % (36 + m, G + 2 * m, G + 2 * m + 1))
        b('v_cvt_pk_bf16_f32 v%d, v%d, v%d' % (44 + m, G + 2 * m + 1, G + 2 * m + 2))
    stamp(b, 5)
    b('global_store_dwordx4 v2, v[44:47], s[26:27]')
    b('global_store_dwordx4 v2, v[48:51], s[26:27] offset:16')
    b('global_store_dwordx4 v2, v[36:39], s[30:31]')
    b('global_store_dwordx4 v2, v[40:43], s[30:31] offset:16')
    stamp_end(b, 0)
    b('s_endpgm')

    b.label('K0_NOTK')
    b('s_cmp_ge_u32 s2, %d' % (K0_KGEN + K0_LN))
    b('s_cbranch_scc1 K0_NOTLN')
    b('s_load_dwordx2 s[8:9], s[0:1], %d' % KA['u'])
    b('s_sub_u32 s6, s2, %d' % K0_KGEN)
    b('s_lshl_b32 s6, s6, 14')
    b('v_lshrrev_b32 v3, 6, v0')
    b('v_lshlrev_b32 v2, 12, v3')
    b('v_lshl_add_u32 v2, v1, 4, v2')
    b('v_add_u32 v2, s6, v2')
    b('s_waitcnt lgkmcnt(0)')
    for i in range(4):
        b('global_load_dwordx4 %s, v2, s[8:9] offset:%d' % (vr(4 + 4 * i, 4), 1024 * i))
    WA = 60
    transpose_write_addr(b, WA, 1, 3, 64)
    b('v_lshrrev_b32 v64, 4, v0')
    b('v_and_b32 v64, 7, v64')
    b('v_xor_b32 v64, v64, v0')
    b('v_lshlrev_b32 v64, 4, v64')
    b('v_lshlrev_b32 v65, 4, v0')
    b('v_add_u32 v65, s6, v65')
    b(add64(10, 4, hex(WS_LNT)))
    b(add64(12, 4, hex(WS_XT)))
    b('s_mov_b32 s14, 0x05040100\ns_mov_b32 s15, 0x07060302')
    b('v_mov_b32 v66, %s' % fhex(1.0 / 512))
    XF = 20
    stamp(b, 1)
    for i in range(4):
        b('s_waitcnt vmcnt(%d)' % (3 - i))
        if i == 3:
            stamp(b, 2)
        for k in range(4):
            E(b, unpack(XF + 8 * i + 2 * k, 4 + 4 * i + k))
    T = 68
    for i in range(4):
        b(pk('add', T + 4 * i, [('p', XF + 8 * i), ('p', XF + 8 * i + 2)]))
        b(pk('add', T + 4 * i + 2, [('p', XF + 8 * i + 4), ('p', XF + 8 * i + 6)]))
    for i in range(4):
        b(pk('add', T + 4 * i, [('p', T + 4 * i), ('p', T + 4 * i + 2)]))
    xs = []
    for j in range(8):
        sel = 's15' if j & 1 else 's14'
        xs.append('v_perm_b32 v%d, v%d, v%d, %s' % (84 + 2 * (j & 1), 8 + (j >> 1), 4 + (j >> 1), sel))
        xs.append('v_perm_b32 v%d, v%d, v%d, %s' % (85 + 2 * (j & 1), 16 + (j >> 1), 12 + (j >> 1), sel))
        xs.append('ds_write_b64 v%d, %s offset:%d' % (WA + (j & 3), vr(84 + 2 * (j & 1), 2), 16384 + 128 * (j >> 2)))
    red = ['v_add_f32 v%d, v%d, v%d' % (52 + i, T + 4 * i, T + 4 * i + 1) for i in range(4)] + wave_reduce('add', [52, 53, 54, 55])
    E(b, weave(red, xs))
    for i in range(4):
        b('v_readlane_b32 s%d, v%d, 63' % (16 + i, 52 + i))
    for i in range(4):
        b('v_mul_f32 v%d, s%d, v66' % (52 + i, 16 + i))
    for k in range(4):
        for i in range(4):
            b(pk('add', T + 4 * i + 2, [('p', XF + 8 * i + 2 * k), ('b', 52 + i)], neg_lo=[0, 1], neg_hi=[0, 1]))
        for i in range(4):
            if k == 0:
                b(pk('mul', T + 4 * i, [('p', T + 4 * i + 2), ('p', T + 4 * i + 2)]))
            else:
                b(pk('fma', T + 4 * i, [('p', T + 4 * i + 2), ('p', T + 4 * i + 2), ('p', T + 4 * i)]))
    red = ['v_add_f32 v%d, v%d, v%d' % (56 + i, T + 4 * i, T + 4 * i + 1) for i in range(4)] + wave_reduce('add', [56, 57, 58, 59])
    cen = rnd_pair(52, 84) + rnd_pair(54, 85)
    for i in range(4):
        for k in range(4):
            r = XF + 8 * i + 2 * k
            cen.append(pk('add', r, [('p', r), ('b', 52 + i)], neg_lo=[0, 1], neg_hi=[0, 1]))
            if EXACT['ln']:
                cen += rnd_pair(r, 84 + (k & 1))
    E(b, weave(red, cen))
    for i in range(4):
        b('v_readlane_b32 s%d, v%d, 63' % (16 + i, 56 + i))
    for i in range(4):
        b('v_mul_f32 v%d, s%d, v66' % (56 + i, 16 + i))
    E(b, rnd_pair(56, 84) + rnd_pair(58, 85))
    for i in range(4):
        b('v_add_f32 v%d, %s, v%d' % (56 + i, fhex(1e-5), 56 + i))
    E(b, rnd_pair(56, 84) + rnd_pair(58, 85))
    for i in range(4):
        b('v_sqrt_f32 v%d, v%d' % (56 + i, 56 + i))
    E(b, rnd_pair(56, 84) + rnd_pair(58, 85))
    for i in range(4):
        b('v_rcp_f32 v%d, v%d' % (56 + i, 56 + i))
    for k in range(4):
        for i in range(4):
            r = XF + 8 * i + 2 * k
            b(pk('mul', r, [('p', r), ('b', 56 + i)]))
        for j in (2 * k, 2 * k + 1):
            t = 84 + 2 * (j & 1)
            b('v_cvt_pk_bf16_f32 v%d, v%d, v%d' % (t, XF + j, XF + 8 + j))
            b('v_cvt_pk_bf16_f32 v%d, v%d, v%d' % (t + 1, XF + 16 + j, XF + 24 + j))
            b('ds_write_b64 v%d, %s offset:%d' % (WA + (j & 3), vr(t, 2), 128 * (j >> 2)))
    b('s_waitcnt lgkmcnt(0)')
    b('s_barrier')
    stamp(b, 3)
    for i in range(8):
        b('ds_read_b128 %s, v64 offset:%d' % (vr(4 + 4 * i, 4), 4096 * ((i + 4) & 7)))
    b('v_add_u32 v66, 0x2000, v65')
    for i in range(8):
        b('s_waitcnt lgkmcnt(%d)' % (7 - i))
        base = 12 if i < 4 else 10
        k = i & 3
        b('global_store_dwordx4 v%d, %s, s[%d:%d] offset:%d' % (65 if k < 2 else 66, vr(4 + 4 * i, 4), base, base + 1, 0) if (k & 1) == 0 else
          'global_store_dwordx4 v%d, %s, s[%d:%d] offset:%d' % (67 if k < 2 else 3, vr(4 + 4 * i, 4), base, base + 1, 0))
        if i == 0:
            b('v_add_u32 v67, 0x1000, v65')
            b('v_add_u32 v3, 0x3000, v65')
    stamp_end(b, 0)
    b('s_endpgm')

    b.label('K0_NOTLN')
    b('s_cmp_ge_u32 s2, %d' % (K0_KGEN + K0_LN + K0_MOD))
    b('s_cbranch_scc1 K0_WDR')
    b('s_load_dwordx4 s[8:11], s[0:1], %d' % KA['c'])
    b('s_sub_u32 s6, s2, %d' % (K0_KGEN + K0_LN))
    b('s_and_b32 s7, s6, 3')
    b('s_lshr_b32 s6, s6, 2')
    b('v_lshrrev_b32 v2, 3, v0')
    b('s_lshl_b32 s12, s7, 7')
    b('v_add_u32 v2, s12, v2')
    b('v_mul_u32_u24 v3, 6144, v2')
    b('v_and_b32 v4, 7, v0')
    b('v_lshl_add_u32 v3, v4, 4, v3')
    b('s_lshl_b32 s12, s6, 7')
    b('v_add_u32 v3, s12, v3')
    b('v_lshlrev_b32 v2, 1, v2')
    b('s_waitcnt lgkmcnt(0)')
    for i in range(4):
        b('global_load_ushort v%d, v2, s[8:9] offset:%d' % (4 + i, 64 * i))
    for i in range(4):
        b('global_load_dwordx4 %s, v3, s[10:11]' % vr(8 + 4 * i, 4))
        if i < 3:
            b('v_add_u32 v3, %d, v3' % (32 * 6144))
    stamp(b, 1)
    b('s_waitcnt vmcnt(4)')
    stamp(b, 2)
    for i in range(4):
        b('v_lshlrev_b32 v%d, 16, v%d' % (4 + i, 4 + i))
    for i in range(4):
        b('v_mul_f32 v%d, %s, v%d' % (24 + i, fhex(-LOG2E), 4 + i))
    for i in range(4):
        b('v_exp_f32 v%d, v%d' % (24 + i, 24 + i))
    for i in range(4):
        b('v_add_f32 v%d, 1.0, v%d' % (24 + i, 24 + i))
    for i in range(4):
        b('v_rcp_f32 v%d, v%d' % (24 + i, 24 + i))
    for i in range(4):
        b('v_mul_f32 v%d, v%d, v%d' % (4 + i, 4 + i, 24 + i))
    E(b, rnd_pair(4, 24) + rnd_pair(6, 25))
    for i in range(4):
        b('s_waitcnt vmcnt(%d)' % (3 - i))
        for k in range(4):
            E(b, unpack(24 + 2 * k, 8 + 4 * i + k))
        for k in range(4):
            if i == 0:
                b(pk('mul', 32 + 2 * k, [('p', 24 + 2 * k), ('b', 4 + i)]))
            else:
                b(pk('fma', 32 + 2 * k, [('p', 24 + 2 * k), ('b', 4 + i), ('p', 32 + 2 * k)]))
    stamp(b, 3)
    b('v_lshlrev_b32 v2, 5, v0')
    b('ds_write_b128 v2, v[32:35]')
    b('ds_write_b128 v2, v[36:39] offset:16')
    b('v_readfirstlane_b32 s12, v0')
    b('s_waitcnt lgkmcnt(0)')
    b('s_barrier')
    b('s_cmp_ge_u32 s12, 64')
    b('s_cbranch_scc1 K0_FIN')
    b('v_lshlrev_b32 v2, 2, v0')
    for k in range(32):
        b('ds_read_b32 v%d, v2 offset:%d' % (4 + k, 256 * k))
    b('s_mul_i32 s7, s7, %d' % (3072 * 4))
    b('s_lshl_b32 s6, s6, 8')
    b('s_add_u32 s6, s6, s7')
    b('v_add_u32 v2, s6, v2')
    b('s_waitcnt lgkmcnt(0)')
    for w in (16, 8, 4, 2):
        for k in range(0, w, 2):
            b(pk('add', 4 + k, [('p', 4 + k), ('p', 4 + w + k)]))
    b('v_add_f32 v4, v4, v5')
    b('global_store_dword v2, v4, s[4:5]')
    stamp_end(b, 0)
    b('s_endpgm')

    b.label('K0_WDR')
    b('s_load_dwordx2 s[8:9], s[0:1], %d' % KA['wd'])
    b('s_sub_u32 s6, s2, %d' % (K0_KGEN + K0_LN + K0_MOD))
    b('s_lshl_b32 s7, s6, 14')
    b('v_lshrrev_b32 v3, 6, v0')
    b('v_lshlrev_b32 v2, 12, v3')
    b('v_lshl_add_u32 v2, v1, 4, v2')
    b('v_add_u32 v2, s7, v2')
    b('s_waitcnt lgkmcnt(0)')
    for i in range(4):
        b('global_load_dwordx4 %s, v2, s[8:9] offset:%d' % (vr(4 + 4 * i, 4), 1024 * i))
    transpose_write_addr(b, WA, 1, 3, 64)
    b('v_and_b32 v64, 31, v1')
    b('v_lshl_add_u32 v64, v3, 5, v64')
    b('v_lshrrev_b32 v65, 3, v64')
    b('v_and_b32 v65, 7, v65')
    b('v_lshrrev_b32 v66, 5, v1')
    b('v_lshl_add_u32 v64, v64, 1, v66')
    b('v_xor_b32 v64, v64, v65')
    b('v_lshlrev_b32 v64, 4, v64')
    b('v_mul_u32_u24 v65, %d, v3' % 114688)
    b('v_lshl_add_u32 v65, v1, 4, v65')
    b('s_lshl_b32 s6, s6, 10')
    b('s_add_u32 s6, s6, %s' % hex(WS_WD))
    b(add64(10, 4, 's6'))
    b('s_mov_b32 s14, 0x05040100\ns_mov_b32 s15, 0x07060302')
    stamp(b, 1)
    b('s_waitcnt vmcnt(0)')
    stamp(b, 2)
    for j in range(8):
        sel = 's15' if j & 1 else 's14'
        b('v_perm_b32 v%d, v%d, v%d, %s' % (84 + 2 * (j & 1), 8 + (j >> 1), 4 + (j >> 1), sel))
        b('v_perm_b32 v%d, v%d, v%d, %s' % (85 + 2 * (j & 1), 16 + (j >> 1), 12 + (j >> 1), sel))
        b('ds_write_b64 v%d, %s offset:%d' % (WA + (j & 3), vr(84 + 2 * (j & 1), 2), 128 * (j >> 2)))
    b('s_waitcnt lgkmcnt(0)')
    b('s_barrier')
    for i in range(4):
        b('ds_read_b128 %s, v64 offset:%d' % (vr(4 + 4 * i, 4), 4096 * i))
    for i in range(4):
        b('s_waitcnt lgkmcnt(%d)' % (3 - i))
        b('global_store_dwordx4 v65, %s, s[10:11]' % vr(4 + 4 * i, 4))
        if i < 3:
            b('s_add_u32 s10, s10, %d\ns_addc_u32 s11, s11, 0' % (4 * 114688))
    b.label('K0_FIN')
    stamp_end(b, 0)
    b.label('K0_END')
    b('s_endpgm')
    return b.text(), 160, NSG


def build(kernels):
    head = open('cdna_kernels/%s.s.ref' % NAME).read().split('\n')
    out = [l for l in head if l.startswith(';') and '@launch' not in l and 'Override launch' not in l and 'grid=ceil' not in l]
    for name, fn, grid, block, lds in kernels:
        out.append('; @launch kernel=%s grid=(%d,1,1) block=(%d,1,1) lds=%d' % (name, grid, block, lds))
    out.append('.amdgcn_target "amdgcn-amd-amdhsa--gfx950"')
    out.append('.text')
    desc = []
    for name, fn, grid, block, lds in kernels:
        text, nv, ns = fn()
        out.append('.globl %s\n.p2align 8\n.type %s,@function\n%s:' % (name, name, name))
        out.append(text)
        desc.append('.p2align 6\n.amdhsa_kernel %s\n  .amdhsa_next_free_vgpr %d\n  .amdhsa_next_free_sgpr %d\n  .amdhsa_accum_offset %d\n'
                    '  .amdhsa_group_segment_fixed_size 0\n  .amdhsa_kernarg_size 144\n  .amdhsa_user_sgpr_count 2\n'
                    '  .amdhsa_user_sgpr_kernarg_segment_ptr 1\n  .amdhsa_system_sgpr_workgroup_id_x 1\n.end_amdhsa_kernel'
                    % (name, nv, ns, (min(nv, 256) + 3) // 4 * 4))
    out.append('.section .rodata,"a"')
    out += desc
    return '\n'.join(out) + '\n'


if __name__ == '__main__':
    import gen_rest
    ks = [('prep_kernel', k0, K0_WGS, 256, K0_LDS)] + gen_rest.kernels()
    n = int(sys.argv[2]) if len(sys.argv) > 2 else len(ks)
    open(sys.argv[1], 'w').write(build(ks[:n]))
```

```python
import math, os, struct
import numpy as np
from asmlib import Builder, vr, sr, fhex

NAME = 'adaLN_cond__ssm_conv_s4__glu_gated_geglu__prompt'

WS_MODP = 0x0
WS_GB = 0x10000
WS_CB = 0x11000
WS_SST = 0x40000
WS_FLG = 0x48000
WS_LST = 0x50000
WS_XT = 0x300000
WS_KC = 0x500000
KCS = 4352
WS_X1T = 0xA00000
WS_WF = 0xC00000
WS_WD = 0x1000000
WS_HF = 0x1200000
WS_STAMP = 0x2000000

LOG2E = 1.4426950408889634
KA = dict(u=0, are=8, aim=16, bre=24, bim=32, cre=40, cim=48, ldt=56, dsk=64, bx=72, wg=80, wu=88, wd=96, c=104, wm=112,
          out=120, dbg=128, ws=136)
STAMPS = bool(os.environ.get('STAMPS'))
NSG = 100 if STAMPS else 56


def opt(name, default):
    v = os.environ.get(name)
    if v is None:
        return default
    return type(default)(v) if not isinstance(default, bool) else v not in ('0', '')


def pk(op, d, srcs, neg_lo=None, neg_hi=None):
    cross = lambda s_: s_[0] == 'x' or (s_[0] == 'b' and s_[1] & 1)
    srcs = list(srcs)
    if cross(srcs[1]):
        srcs[0], srcs[1] = srcs[1], srcs[0]
        for n_ in (neg_lo, neg_hi):
            if n_:
                n_[0], n_[1] = n_[1], n_[0]
    assert not any(cross(s_) for s_ in srcs[1:]), (op, d, srcs)
    ops, sl, sh = [], [], []
    for kind, r in srcs:
        if kind == 'p':
            assert r % 2 == 0
            ops.append(vr(r, 2)); sl.append(0); sh.append(1)
        elif kind == 'x':
            ops.append(vr(r, 2)); sl.append(1); sh.append(0)
        elif kind == 'b':
            ops.append(vr(r & ~1, 2)); sl.append(r & 1); sh.append(r & 1)
        elif kind == 'sl':
            ops.append(sr(r, 2)); sl.append(0); sh.append(0)
        elif kind == 'sh':
            ops.append(sr(r, 2)); sl.append(1); sh.append(1)
        else:
            ops.append(r); sl.append(0); sh.append(0)
    assert d % 2 == 0
    s = 'v_pk_%s_f32 %s, %s op_sel:[%s] op_sel_hi:[%s]' % (op, vr(d, 2), ', '.join(ops), ','.join(map(str, sl)), ','.join(map(str, sh)))
    if neg_lo:
        s += ' neg_lo:[%s]' % ','.join(map(str, neg_lo))
    if neg_hi:
        s += ' neg_hi:[%s]' % ','.join(map(str, neg_hi))
    return s


def cmul(d, a, b, bim):
    assert bim % 2 == 0
    return [pk('mul', d, [('p', a), ('b', b)]),
            pk('fma', d, [('x', a), ('b', bim), ('p', d)], neg_lo=[1, 0, 0])]


def weave(*seqs):
    out = []
    seqs = [list(s) for s in seqs]
    while any(seqs):
        for s in seqs:
            if s:
                out.append(s.pop(0))
    return out


def spread(main, fill, per):
    out = []
    fill = list(fill)
    for m in main:
        out.append(m)
        out += fill[:per]
        fill = fill[per:]
    return out + fill


def row_reduce(op, regs):
    out = []
    for m in ('row_ror:8', 'row_ror:4', 'row_ror:2', 'row_ror:1'):
        for r in regs:
            out.append('v_%s_f32_dpp v%d, v%d, v%d %s row_mask:0xf bank_mask:0xf' % (op, r, r, r, m))
    return out


def wave_reduce(op, regs):
    out = row_reduce(op, regs)
    for m, rm in (('row_bcast:15', '0xa'), ('row_bcast:31', '0xc')):
        for r in regs:
            out.append('v_%s_f32_dpp v%d, v%d, v%d %s row_mask:%s bank_mask:0xf' % (op, r, r, r, m, rm))
    return out


def rnd_bf16(r):
    return ['v_cvt_pk_bf16_f32 v%d, v%d, v%d' % (r, r, r), 'v_lshlrev_b32 v%d, 16, v%d' % (r, r)]


def rnd_pair(a, t):
    return ['v_cvt_pk_bf16_f32 v%d, v%d, v%d' % (t, a, a + 1),
            'v_lshlrev_b32 v%d, 16, v%d' % (a, t),
            'v_and_b32 v%d, 0xffff0000, v%d' % (a + 1, t)]


def unpack(dst, src):
    return ['v_lshlrev_b32 v%d, 16, v%d' % (dst, src), 'v_and_b32 v%d, 0xffff0000, v%d' % (dst + 1, src)]


def add64(d, b, off):
    return 's_add_u32 s%d, s%d, %s\ns_addc_u32 s%d, s%d, 0' % (d, b, off, d + 1, b + 1)


def srd(b, d, base, off, nbytes):
    b('s_add_u32 s%d, s%d, %s' % (d, base, off))
    b('s_addc_u32 s%d, s%d, 0' % (d + 1, base + 1))
    b('s_mov_b32 s%d, %d' % (d + 2, nbytes))
    b('s_mov_b32 s%d, 0x20000' % (d + 3))


def E(b, seq):
    for s in seq:
        b(s)


class VM:
    def __init__(self, b):
        self.b = b
        self.tags = []

    def op(self, text, tag):
        self.tags.append(tag)
        return text

    def cnt(self, *need):
        last = max(i for i, t in enumerate(self.tags) if t in need)
        n = len(self.tags) - 1 - last
        n = min(n, 62)
        return n

    def wait(self, *need):
        return 's_waitcnt vmcnt(%d)' % self.cnt(*need)


_dbgn = 0
DBGSEL = {0: [(100, 0, [(0, 0), (1, 2), (2, 15)]), (300, 0, [(3, 15)]), (500, 0, [(4, 15)])],
          1: [(100, 0, [(5, 0), (6, 4), (7, 15)]), (356, 0, [(8, 2), (9, 15)])],
          2: [(100, 5, [(10, 0), (11, 2), (12, 11), (13, 12), (14, 13), (15, 15)])]}


def stamp(b, i):
    if STAMPS:
        b('%s s[%d:%d]' % ('s_memtime' if os.environ.get('STAMP_CLK') else 's_memrealtime', 64 + 2 * i, 65 + 2 * i))


def stamp_init(b):
    if STAMPS:
        for i in range(32):
            b('s_mov_b32 s%d, 0' % (64 + i))
        b('v_lshrrev_b32 v1, 6, v0')
        b('s_nop 1')
        b('v_readfirstlane_b32 s62, v1')
        stamp(b, 0)


def stamp_end(b, kern):
    if STAMPS:
        b('s_waitcnt vmcnt(0)')
        stamp(b, 15)
        b('s_lshl_b32 s60, s2, 3')
        b('s_add_u32 s60, s60, s62')
        b('s_lshl_b32 s60, s60, 7')
        b('s_add_u32 s60, s60, %d' % (WS_STAMP + kern * 1024 * 8 * 128))
        b('s_add_u32 s60, s4, s60')
        b('s_addc_u32 s61, s5, 0')
        b('s_mov_b64 exec, 1')
        b('v_mov_b32 v0, 0')
        b('s_waitcnt lgkmcnt(0)')
        if os.environ.get('DBG') and kern == 2:
            b('s_cmp_lg_u32 s2, 100')
            b('s_cbranch_scc1 DBGX')
            b('s_cmp_lg_u32 s62, 5')
            b('s_cbranch_scc1 DBGX')
            b('s_load_dwordx2 s[58:59], s[0:1], 128')
            b('s_waitcnt lgkmcnt(0)')
            off = int(os.environ['DBG'])
            b('s_sub_u32 s58, s58, %d' % off)
            b('s_subb_u32 s59, s59, 0')
            for kk in range(3):
                for wg, wv, items in DBGSEL[kk]:
                    for slot, st in items:
                        if kk == 2:
                            b('v_mov_b32 v4, s%d' % (64 + 2 * st))
                        else:
                            b('v_mov_b32 v5, %d' % (WS_STAMP + kk * 1024 * 8 * 128 + (wg * 8 + wv) * 128 + 8 * st))
                            b('global_load_dword v4, v5, s[4:5]')
                            b('s_waitcnt vmcnt(0)')
                        b('global_store_dword v0, v4, s[58:59] offset:%d' % (4 * slot))
            b.label('DBGX')
        for i in range(32):
            b('v_mov_b32 v%d, s%d' % (4 + i, 64 + i))
        for i in range(8):
            b('global_store_dwordx4 v0, %s, s[60:61] offset:%d' % (vr(4 + 4 * i, 4), 16 * i))


def bf16_round_int(l):
    if l < 0:
        return l
    u = struct.unpack('<I', struct.pack('<f', float(l)))[0]
    u = ((u + 0x7FFF + ((u >> 16) & 1)) >> 16) << 16
    return int(struct.unpack('<f', struct.pack('<I', u))[0])


CODE_PF = opt('CODE_PF', True)


def code_prefetch(b, tag, first, vidx, vt, st):
    b('s_getpc_b64 s[%d:%d]' % (st, st + 1))
    b.label('PF_%s' % tag)
    b('s_add_u32 s%d, s%d, %s-PF_%s' % (st, st, first, tag))
    b('s_addc_u32 s%d, s%d, 0' % (st + 1, st + 1))
    b('v_lshlrev_b32 v%d, 7, v%d' % (vt, vidx))
    b('v_min_u32 v%d, CODE_END-%s-4, v%d' % (vt, first, vt))
    b('global_load_dword v%d, v%d, s[%d:%d]' % (vt, vt, st, st + 1))
```

```python
from common import *

K0_KGEN, K0_LN, K0_MOD = 256, 128, 192
K0_WGS = K0_KGEN + K0_LN + K0_MOD
TW = 8768
K0_LDS = 4 * TW
ST_EARLY = opt('ST_EARLY', '')
ST_KC = opt('ST_KC', '')
WPF = opt('WPF', 0)


def gather_table():
    rows = []
    for j4 in range(4):
        for tau in range(128):
            e = []
            for j in range(4 * j4, 4 * j4 + 4):
                v = bf16_round_int(2047 - 8 * tau - (j & 7) - 1024 * (j >> 3))
                e.append(4 * (v + (v >> 4)))
            rows.append('.long ' + ','.join(map(str, e)))
    return '.p2align 8\nK0_TAB:\n' + '\n'.join(rows)


def transpose_write_addr(b, va, lane, wave_v, t):
    b('v_lshlrev_b32 v%d, 8, v%d' % (t, lane))
    b('v_lshl_add_u32 v%d, v%d, 3, v%d' % (t, wave_v, t))
    b('v_and_b32 v%d, 7, v%d' % (va, lane))
    b('v_lshlrev_b32 v%d, 4, v%d' % (va, va))
    b('v_xor_b32 v%d, v%d, v%d' % (va, va, t))
    for j in range(1, 4):
        b('v_xor_b32 v%d, %d, v%d' % (va + j, 32 * j, va))


def perm_writes(WA, off):
    xs = []
    for j in range(8):
        sel = 's15' if j & 1 else 's14'
        t = 84 + 2 * (j & 1)
        xs.append('v_perm_b32 v%d, v%d, v%d, %s' % (t, 8 + (j >> 1), 4 + (j >> 1), sel))
        xs.append('v_perm_b32 v%d, v%d, v%d, %s' % (t + 1, 16 + (j >> 1), 12 + (j >> 1), sel))
        xs.append('ds_write_b64 v%d, %s offset:%d' % (WA + (j & 3), vr(t, 2), off + 128 * (j >> 2)))
    return xs


def k0():
    b = Builder()
    b('s_cmp_ge_u32 s2, %d' % K0_WGS)
    b('s_cbranch_scc1 K0_END')
    b('s_load_dwordx2 s[4:5], s[0:1], %d' % KA['ws'])
    stamp_init(b)
    b('v_and_b32 v1, 63, v0')
    b('s_cmp_ge_u32 s2, %d' % K0_KGEN)
    b('s_cbranch_scc1 K0_NOTK')
    b('s_setprio 3')
    if opt('SELF_PF', True):
        b('s_cmp_ge_u32 s2, 8')
        b('s_cbranch_scc1 K0_NSP')
        code_prefetch(b, 's', 'K0_START', 0, 162, 30)
        b.label('K0_NSP')
    b.label('K0_START')
    b('s_load_dwordx4 s[8:11], s[0:1], %d' % KA['are'])
    b('s_load_dwordx4 s[12:15], s[0:1], %d' % KA['bre'])
    b('s_load_dwordx4 s[16:19], s[0:1], %d' % KA['cre'])
    b('s_load_dwordx2 s[20:21], s[0:1], %d' % KA['ldt'])
    b('s_getpc_b64 s[30:31]')
    b('s_add_u32 s30, s30, K0_TAB@rel32@lo+4')
    b('s_addc_u32 s31, s31, K0_TAB@rel32@hi+12')
    b('s_and_b32 s6, s2, 7\ns_lshl_b32 s6, s6, 5\ns_lshr_b32 s7, s2, 3\ns_add_u32 s6, s6, s7\ns_lshl_b32 s6, s6, 1')
    b('s_lshl_b32 s7, s6, 8')
    b('v_and_b32 v160, 127, v0')
    b('v_lshlrev_b32 v161, 4, v160')
    G = 124
    b('v_lshl_add_u32 v2, v0, 1, s7')
    b('v_lshrrev_b32 v3, 7, v0')
    b('v_add_lshl_u32 v11, v3, s6, 1')
    b('v_lshrrev_b32 v87, 6, v0')
    b('s_waitcnt lgkmcnt(0)')
    b('global_load_ushort v10, v11, s[20:21]')
    for i in range(6):
        b('global_load_ushort v%d, v2, s[%d:%d]' % (4 + i, 8 + 2 * i, 9 + 2 * i))
    b('v_readfirstlane_b32 s33, v87')
    b('s_add_u32 s34, s30, 4096\ns_addc_u32 s35, s31, 0')
    for i in range(4):
        b('global_load_dwordx4 %s, v161, s[%d:%d] offset:%d' % (vr(G + 4 * i, 4), 30 + 4 * (i >> 1), 31 + 4 * (i >> 1), 2048 * (i & 1)))
    b('s_mul_i32 s36, s33, %d' % TW)
    WB, RB = 164, 75
    b('v_lshl_add_u32 v%d, v1, 2, s36' % WB)
    for k in range(1, 4):
        b('v_add_u32 v%d, %d, v%d' % (WB + k, 1088 * k, WB))
    b('v_and_b32 v85, 15, v1')
    b('v_lshrrev_b32 v86, 4, v1')
    b('v_mul_u32_u24 v88, 272, v85')
    b('v_lshl_add_u32 v88, v86, 4, v88')
    b('v_add_u32 v%d, s36, v88' % RB)
    b('v_mul_u32_u24 v85, 68, v85')
    b('v_add_u32 v85, s36, v85')
    b('v_lshl_add_u32 v120, v86, 4, v85')
    b('v_mul_u32_u24 v87, 1088, v86')
    b('v_lshlrev_b32 v88, 3, v86')
    b('v_add_u32 v88, 1088, v88')
    b('v_max_u32 v87, v87, v88')
    b('v_add_u32 v121, v87, v85')
    b('v_lshrrev_b32 v87, 1, v86')
    b('v_mul_u32_u24 v87, 4352, v87')
    b('v_and_b32 v88, 1, v86')
    b('v_lshl_add_u32 v87, v88, 5, v87')
    b('v_add_u32 v122, v87, v85')
    b('v_add_u32 v2, s6, v3')
    b('v_mul_u32_u24 v3, %d, v2' % KCS)
    b('v_add_u32 v2, v161, v3')
    b(add64(26, 4, hex(WS_KC)))
    stamp(b, 1)
    b('s_waitcnt vmcnt(10)')
    b('v_lshlrev_b32 v10, 16, v10')
    b('v_mul_f32 v10, %s, v10' % fhex(LOG2E))
    b('v_exp_f32 v10, v10')
    b('s_waitcnt vmcnt(4)')
    stamp(b, 2)
    if WPF:
        b('s_load_dwordx4 s[40:43], s[0:1], %d' % KA['wg'])
        b('s_load_dwordx2 s[44:45], s[0:1], %d' % KA['wd'])
    for i in range(4, 10):
        b('v_lshlrev_b32 v%d, 16, v%d' % (i, i))
    E(b, rnd_bf16(10))
    b(pk('mul', 12, [('p', 4), ('b', 10)]))
    b(pk('mul', 6, [('p', 6), ('b', 10)]))
    b('v_mul_f32 v12, %s, v12' % fhex(LOG2E))
    b('v_mul_f32 v13, %s, v13' % fhex(1.0 / (2 * math.pi)))
    b('v_mov_b32 v4, v7')
    E(b, cmul(14, 8, 6, 4))

    def zpow(d, p, ta, tb):
        s = []
        if p == 1:
            s += ['v_exp_f32 v%d, v12' % ta, 'v_fract_f32 v%d, v13' % tb]
        else:
            s += ['v_mul_f32 v%d, %s, v12' % (ta, fhex(float(p))), 'v_mul_f32 v%d, %s, v13' % (tb, fhex(float(p))),
                  'v_exp_f32 v%d, v%d' % (ta, ta), 'v_fract_f32 v%d, v%d' % (tb, tb)]
        s += ['v_cos_f32 v%d, v%d' % (d, tb), 'v_sin_f32 v%d, v%d' % (d + 1, tb)]
        return s, [pk('mul', d, [('p', d), ('b', ta)])]
    Z1, Z16, ZB, US, VA, VB = 16, 18, 20, 36, 68, 70
    mx = ['v_max_f32 v72, abs(v14), abs(v15)'] + wave_reduce('max', [72]) + ['v_frexp_exp_i32_f32 v72, v72', 'v_readlane_b32 s22, v72, 63']
    a1, f1 = zpow(Z1, 1, 6, 7)
    a2, f2 = zpow(Z16, 16, 4, 5)
    a3, f3 = zpow(ZB, 256, 8, 9)
    zs = a1 + a2 + f1 + a3 + f2 + ['v_mov_b32 v%d, 0x43800000' % US] + f3 + ['v_mov_b32 v%d, 0' % (US + 1)]
    if WPF:
        b('s_mul_i32 s46, s2, 7168')
        b('v_lshlrev_b32 v123, 4, v0')
        b('v_min_u32 v74, %d, v123' % (7168 - 4096 - 16))
        b('s_waitcnt lgkmcnt(0)')
        for m in range(WPF):
            b(add64(40 + 2 * m, 40 + 2 * m, 's46'))
            b('global_load_dwordx4 v[160:163], v123, s[%d:%d]' % (40 + 2 * m, 41 + 2 * m))
            b(add64(40 + 2 * m, 40 + 2 * m, '4096'))
            b('global_load_dwordx4 v[160:163], v74, s[%d:%d]' % (40 + 2 * m, 41 + 2 * m))
    E(b, spread(mx, zs, 2))
    b('s_sub_i32 s23, 13, s22')
    b('s_sub_i32 s24, s22, 21')
    I1, I16, IZ1, IZ2, IZ3, IU8 = 4, 6, 8, 10, 12, 14
    b(pk('mul', US + 2, [('p', Z1), ('b', US)]))
    b('v_ldexp_f32 v%d, v14, s23' % VA)
    b('v_ldexp_f32 v%d, v15, s23' % (VA + 1))
    b('v_mov_b32 v%d, v%d' % (I16, Z16 + 1))
    b('v_mov_b32 v%d, v%d' % (I1, Z1 + 1))
    b('v_mov_b32 v%d, v%d' % (IZ1, ZB + 1))

    def cvt(src, row, neg=False):
        s = ['v_cvt_pk_f16_f32 v%d, v%d, %sv%d' % (72 + (row & 1), src, '-' if neg else '', src + 1)]
        if row & 1:
            s.append('ds_write2_b32 v%d, v72, v73 offset0:%d offset1:%d' % (WB + (row >> 2), 68 * ((row - 1) & 3), 68 * (row & 3)))
        return s

    def read_frags(d):
        return ['ds_read_b128 %s, v%d offset:%d' % (vr(d + 4 * j, 4), RB, 64 * j) for j in range(4)]
    VF, UF, DA, UF1 = 76, 92, 108, 144

    def mf(tile, uf):
        return ['v_mfma_f32_16x16x32_f16 %s, %s, %s, %s' % (vr(DA + 4 * tile, 4), vr(uf + 4 * j, 4), vr(VF + 4 * j, 4),
                                                         vr(DA + 4 * tile, 4) if j else '0') for j in range(4)]
    cv = []
    cur, nxt = VA, VB
    for i in range(16):
        if i < 15:
            cv += cmul(nxt, cur, Z16, I16)
        cv += cvt(cur, i, True)
        cur, nxt = nxt, cur
    cu = []
    for i in range(2, 16):
        cu += cmul(US + 2 * i, US + 2 * (i - 1), Z1, I1)
    E(b, weave(cv, cu))
    E(b, read_frags(VF))
    r0 = []
    for i in range(16):
        r0 += cvt(US + 2 * i, i)
    cz = []
    for m in range(1, 8):
        cz += cmul(ZB + 2 * m, ZB + 2 * (m - 1), ZB, IZ1)
    cz += ['v_mov_b32 v%d, v%d' % (IZ2, ZB + 3), 'v_mov_b32 v%d, v%d' % (IZ3, ZB + 5), 'v_mov_b32 v%d, v%d' % (IU8, US + 17)]
    E(b, weave(r0, cz))
    E(b, read_frags(UF))
    t1 = []
    for g, (zi, uo) in enumerate(((0, 0), (0, 2), (1, 0), (2, 0))):
        for rho in range(4):
            d = VA if (rho & 1) == 0 else VB
            if rho == 0 and uo == 0:
                t1 += [pk('mul', d, [('p', ZB + 2 * zi), ('b', US)])]
            else:
                t1 += cmul(d, US + 2 * (4 * rho + uo), ZB + 2 * zi, (IZ1, IZ2, IZ3)[zi])
            t1 += cvt(d, 4 * g + rho)
    E(b, t1)
    E(b, read_frags(UF1))
    b('s_waitcnt lgkmcnt(12)')
    m0 = mf(0, UF)
    t2 = []
    for rho in range(4):
        d = VA if (rho & 1) == 0 else VB
        t2 += [pk('mul', d, [('p', ZB + 2 * (3 + rho)), ('b', US)])] + cvt(d, rho)
    for rho in range(4):
        d = VA if (rho & 1) == 0 else VB
        t2 += cmul(d, ZB + 2 * (3 + rho), US + 16, IU8) + cvt(d, 4 + rho)
    t2 += [pk('mul', VA, [('p', ZB + 14), ('b', US)]), 'v_cvt_pk_f16_f32 v72, v%d, v%d' % (VA, VA + 1),
           'ds_write_b32 v%d, v72' % (WB + 2)]
    E(b, spread(m0, t2, 3))
    E(b, read_frags(UF))
    b('s_waitcnt lgkmcnt(9)')
    E(b, mf(1, UF1))
    for rho in range(4):
        b('v_ldexp_f32 v%d, v%d, s24' % (DA + rho, DA + rho))
    b('s_waitcnt lgkmcnt(0)')
    E(b, mf(2, UF))
    stamp(b, 3)
    for rho in range(4):
        b('ds_write_b32 v120, v%d offset:%d' % (DA + rho, 4 * rho))
    for rho in range(4):
        b('v_ldexp_f32 v%d, v%d, s24' % (DA + 4 + rho, DA + 4 + rho))
    for rho in range(4):
        b('ds_write_b32 v121, v%d offset:%d' % (DA + 4 + rho, 16 * rho))
    for rho in range(4):
        b('v_ldexp_f32 v%d, v%d, s24' % (DA + 8 + rho, DA + 8 + rho))
    b('s_mov_b32 exec_hi, 1')
    b('ds_write_b32 v122, v%d offset:4352' % (DA + 8))
    b('s_mov_b32 exec_hi, 0')
    for rho in range(1, 4):
        b('ds_write_b32 v122, v%d offset:%d' % (DA + 8 + rho, 4352 + 1088 * rho))
    b('s_mov_b32 exec_hi, -1')
    b('v_mov_b32 v80, 0')
    b('v_add_u32 v3, 4096, v3')
    b('s_waitcnt vmcnt(%d)' % (2 * WPF))
    b('global_store_dword v3, v80, s[26:27] %s' % ST_KC)
    b('s_cmp_ge_u32 s33, 2')
    b('s_waitcnt lgkmcnt(0)')
    b('s_barrier')
    stamp(b, 4)
    b('s_cbranch_scc1 K0_G1')
    for cc in range(2):
        if cc:
            b.label('K0_G1')
        for j in range(16):
            b('ds_read_b32 v%d, v%d offset:%d' % (36 + j, G + j, (2 * cc + 1) * TW))
            b('ds_read_b32 v%d, v%d offset:%d' % (G + j, G + j, 2 * cc * TW))
        if cc == 0:
            b('s_branch K0_G2')
    b.label('K0_G2')
    for h in range(2):
        b('s_waitcnt lgkmcnt(%d)' % (14 if h == 0 else 0))
        for m in range(4 * h, 4 * h + 4):
            b(pk('add', G + 2 * m, [('p', G + 2 * m), ('p', 36 + 2 * m)]))
        for m in range(4 * h, 4 * h + 4):
            b('v_cvt_pk_bf16_f32 v%d, v%d, v%d' % (56 + m, G + 2 * m, G + 2 * m + 1))
        b('global_store_dwordx4 v2, %s, s[26:27] offset:%d %s' % (vr(56 + 4 * h, 4), 2048 * h, ST_KC))
    stamp_end(b, 0)
    b('s_endpgm')

    b.label('K0_NOTK')
    b('s_cmp_ge_u32 s2, %d' % (K0_KGEN + K0_LN))
    b('s_cbranch_scc1 K0_NOTLN')
    b('s_setprio 2')
    b('s_load_dwordx2 s[8:9], s[0:1], %d' % KA['u'])
    b('s_sub_u32 s6, s2, %d' % K0_KGEN)
    b('s_lshl_b32 s6, s6, 14')
    b('v_lshrrev_b32 v3, 6, v0')
    b('v_lshlrev_b32 v2, 12, v3')
    b('v_lshl_add_u32 v2, v1, 4, v2')
    b('s_waitcnt lgkmcnt(0)')
    b(add64(8, 8, 's6'))
    for i in range(4):
        b('global_load_dwordx4 %s, v2, s[8:9] offset:%d' % (vr(4 + 4 * i, 4), 1024 * i))
    WA = 60
    transpose_write_addr(b, WA, 1, 3, 64)
    b('v_bfe_u32 v64, v0, 4, 3')
    b('v_xor_b32 v64, v64, v0')
    b('v_lshlrev_b32 v64, 4, v64')
    b('v_lshlrev_b32 v65, 4, v0')
    b('v_add_u32 v66, 0x1000, v65')
    b('s_lshr_b32 s7, s6, 8')
    b('s_add_u32 s6, s6, %s' % hex(WS_XT))
    b(add64(10, 4, 's6'))
    b(add64(12, 10, '0x2000'))
    b('s_add_u32 s7, s7, %s' % hex(WS_LST))
    b(add64(16, 4, 's7'))
    b(add64(18, 16, '0x2000'))
    b('s_mov_b32 s14, 0x05040100\ns_mov_b32 s15, 0x07060302')
    b('v_bfe_u32 v67, v1, 4, 1')
    b('v_lshlrev_b32 v67, 1, v67')
    b('v_lshrrev_b32 v68, 5, v1')
    b('v_add_u32 v67, v67, v68')
    b('v_lshl_add_u32 v67, v3, 2, v67')
    b('v_lshlrev_b32 v67, 2, v67')
    XF, T = 20, 68
    stamp(b, 1)
    b('s_waitcnt vmcnt(0)')
    stamp(b, 2)
    E(b, perm_writes(WA, 0))
    st = []
    for i in range(4):
        x = XF + 8 * i
        for k in range(4):
            st += unpack(x + 2 * k, 4 + 4 * i + k)
    E(b, st[:16])
    b('s_waitcnt lgkmcnt(0)')
    b('s_barrier')
    stamp(b, 3)
    for i in range(4):
        b('ds_read_b128 %s, v64 offset:%d' % (vr(88 + 4 * i, 4), 4096 * i))
    E(b, st[16:])
    for i in range(4):
        b('s_waitcnt lgkmcnt(%d)' % (3 - i))
        base = (10, 12)[i >> 1]
        b('global_store_dwordx4 v%d, %s, s[%d:%d] %s' % (65 + (i & 1), vr(88 + 4 * i, 4), base, base + 1, ST_EARLY))
    for i in range(4):
        x = XF + 8 * i
        t = T + 4 * i
        b(pk('add', t, [('p', x), ('p', x + 2)]))
        b(pk('mul', t + 2, [('p', x), ('p', x)]))
        b(pk('add', t, [('p', t), ('p', x + 4)]))
        b(pk('fma', t + 2, [('p', x + 2), ('p', x + 2), ('p', t + 2)]))
        b(pk('add', t, [('p', t), ('p', x + 6)]))
        b(pk('fma', t + 2, [('p', x + 4), ('p', x + 4), ('p', t + 2)]))
        b('v_add_f32 v%d, v%d, v%d' % (52 + i, t, t + 1))
        b(pk('fma', t + 2, [('p', x + 6), ('p', x + 6), ('p', t + 2)]))
        b('v_add_f32 v%d, v%d, v%d' % (56 + i, t + 2, t + 3))
    red = []
    for r in (52, 56):
        red += ['v_permlane32_swap_b32 v%d, v%d' % (r, r + 1), 'v_permlane32_swap_b32 v%d, v%d' % (r + 2, r + 3)]
    for r in (52, 56):
        red += ['v_add_f32 v%d, v%d, v%d' % (r, r, r + 1), 'v_add_f32 v%d, v%d, v%d' % (r + 2, r + 2, r + 3)]
    for r in (52, 56):
        red += ['v_permlane16_swap_b32 v%d, v%d' % (r, r + 2)]
    for r in (52, 56):
        red += ['v_add_f32 v%d, v%d, v%d' % (r, r, r + 2)]
    red += row_reduce('add', [52, 56])
    red += ['v_mul_f32 v52, %s, v52' % fhex(1.0 / 512), 'v_mul_f32 v56, %s, v56' % fhex(1.0 / 512),
            'v_fma_f32 v56, -v52, v52, v56', 'v_max_f32 v56, 0, v56', 'v_cvt_pk_bf16_f32 v53, v56, v52',
            'v_lshlrev_b32 v56, 16, v53', 'v_and_b32 v52, 0xffff0000, v53',
            'v_add_f32 v56, %s, v56' % fhex(1e-5)] + rnd_bf16(56) + ['v_sqrt_f32 v56, v56'] + rnd_bf16(56) + \
           ['v_rcp_f32 v56, v56', 'v_mul_f32 v52, -v52, v56']
    E(b, red)
    b('s_mov_b32 exec_lo, 0x00010001')
    b('s_mov_b32 exec_hi, 0x00010001')
    b('global_store_dword v67, v56, s[16:17]')
    b('global_store_dword v67, v52, s[18:19]')
    stamp_end(b, 0)
    b('s_endpgm')

    b.label('K0_NOTLN')
    b('s_load_dwordx4 s[8:11], s[0:1], %d' % KA['c'])
    b('s_sub_u32 s6, s2, %d' % (K0_KGEN + K0_LN))
    b('s_and_b32 s7, s6, 3')
    b('s_lshr_b32 s6, s6, 2')
    b('v_lshrrev_b32 v2, 3, v0')
    b('v_mul_u32_u24 v3, 6144, v2')
    b('v_and_b32 v4, 7, v0')
    b('v_lshl_add_u32 v3, v4, 4, v3')
    b('v_lshlrev_b32 v2, 1, v2')
    b('s_mul_i32 s12, s7, %d' % (128 * 6144))
    b('s_lshl_b32 s13, s6, 7')
    b('s_add_u32 s12, s12, s13')
    b('s_lshl_b32 s13, s7, 8')
    b('s_waitcnt lgkmcnt(0)')
    b(add64(10, 10, 's12'))
    b(add64(8, 8, 's13'))
    for i in range(4):
        b('global_load_dwordx4 %s, v3, s[10:11]' % vr(8 + 4 * i, 4))
        if i < 3:
            b(add64(10, 10, str(32 * 6144)))
    for i in range(4):
        b('global_load_ushort v%d, v2, s[8:9] offset:%d' % (4 + i, 64 * i))
    if CODE_PF:
        b('s_cmp_ge_u32 s2, %d' % (K0_KGEN + K0_LN + 8))
        b('s_cbranch_scc1 K0_NOPF')
        code_prefetch(b, 'a', 'conv_kernel', 0, 40, 14)
        b.label('K0_NOPF')
    b('v_readfirstlane_b32 s12, v0')
    b('v_lshlrev_b32 v2, 5, v0')
    stamp(b, 1)
    b('s_waitcnt vmcnt(0)')
    stamp(b, 2)
    for i in range(4):
        b('v_lshlrev_b32 v%d, 16, v%d' % (4 + i, 4 + i))
    for i in range(4):
        b('v_mul_f32 v%d, %s, v%d' % (24 + i, fhex(-LOG2E), 4 + i))
    for i in range(4):
        b('v_exp_f32 v%d, v%d' % (24 + i, 24 + i))
    b(pk('add', 24, [('p', 24), ('k', '1.0')]))
    b(pk('add', 26, [('p', 26), ('k', '1.0')]))
    for i in range(4):
        b('v_rcp_f32 v%d, v%d' % (24 + i, 24 + i))
    b(pk('mul', 4, [('p', 4), ('p', 24)]))
    b(pk('mul', 6, [('p', 6), ('p', 26)]))
    E(b, rnd_pair(4, 24) + rnd_pair(6, 25))
    for i in range(4):
        for k in range(4):
            E(b, unpack(24 + 2 * k, 8 + 4 * i + k))
        for k in range(4):
            if i == 0:
                b(pk('mul', 32 + 2 * k, [('p', 24 + 2 * k), ('b', 4 + i)]))
            else:
                b(pk('fma', 32 + 2 * k, [('p', 24 + 2 * k), ('b', 4 + i), ('p', 32 + 2 * k)]))
    stamp(b, 3)
    b('ds_write_b128 v2, v[32:35]')
    b('ds_write_b128 v2, v[36:39] offset:16')
    b('s_cmp_ge_u32 s12, 64')
    b('s_waitcnt lgkmcnt(0)')
    b('s_barrier')
    b('s_cbranch_scc1 K0_FIN')
    b('v_lshlrev_b32 v2, 2, v0')
    for k in range(16):
        b('ds_read2st64_b32 %s, v2 offset0:%d offset1:%d' % (vr(4 + 2 * k, 2), 2 * k, 2 * k + 1))
    b('s_and_b32 s12, s6, 7')
    b('s_mul_i32 s12, s12, %d' % (64 * 96))
    b('s_lshr_b32 s6, s6, 3')
    b('s_lshl_b32 s6, s6, 4')
    b('s_lshl_b32 s7, s7, 2')
    b('s_add_u32 s6, s6, s7')
    b('s_add_u32 s6, s6, s12')
    b('v_mul_u32_u24 v2, 96, v0')
    b('v_add_u32 v2, s6, v2')
    b('s_waitcnt lgkmcnt(0)')
    for w in (16, 8, 4, 2):
        for k in range(0, w, 2):
            b(pk('add', 4 + k, [('p', 4 + k), ('p', 4 + w + k)]))
    b('v_add_f32 v4, v4, v5')
    b('global_store_dword v2, v4, s[4:5]')
    b.label('K0_FIN')
    stamp_end(b, 0)
    b.label('K0_END')
    b('s_endpgm')
    return b.text(), 168, NSG
```

```python
from common import *

K1_CONV, K1_WF = 256, 224
K1_WGS = K1_CONV + K1_WF
KB = 256
HB = KB + 2 * 8448
CS_ = 5760
PB = HB + 4 * CS_
K1_LDS = PB + 4 * 9216
ST_X1 = opt('ST_X1', 'sc1')
ST_WF = opt('ST_WF', 'sc1')
FOLD_PRIO = opt('FOLD_PRIO', 0)


def k1():
    b = Builder()
    b('s_cmp_ge_u32 s2, %d' % K1_WGS)
    b('s_cbranch_scc1 K1_END')
    b('s_load_dwordx2 s[4:5], s[0:1], %d' % KA['ws'])
    stamp_init(b)
    b('s_cmp_ge_u32 s2, %d' % K1_CONV)
    b('s_cbranch_scc1 K1_FOLD')
    b('s_load_dwordx2 s[8:9], s[0:1], %d' % KA['dsk'])
    b('v_lshrrev_b32 v2, 6, v0')
    b('v_and_b32 v1, 63, v0')
    b('v_readfirstlane_b32 s33, v2')
    b('s_and_b32 s6, s2, 7\ns_lshl_b32 s6, s6, 5\ns_lshr_b32 s7, s2, 3\ns_add_u32 s6, s6, s7\ns_lshl_b32 s6, s6, 1')
    b('v_lshrrev_b32 v61, 2, v0')
    b('v_and_b32 v3, 3, v0')
    b('v_lshlrev_b32 v2, 14, v61')
    b('v_lshl_add_u32 v2, v3, 4, v2')
    b('v_bfe_u32 v3, v0, 1, 1')
    b('v_mul_u32_u24 v39, 96, v3')
    b('v_lshlrev_b32 v50, 4, v1')
    b('s_lshl_b32 s7, s6, 5')
    b('s_add_u32 s7, s7, %s' % hex(WS_XT))
    b('v_and_b32 v63, 1, v0')
    b('v_lshlrev_b32 v61, 4, v61')
    b('v_lshl_add_u32 v61, v63, 3, v61')
    b('v_lshlrev_b32 v60, 2, v61')
    b('s_mul_i32 s28, s6, 96')
    b('s_lshr_b32 s35, s33, 1')
    b('s_and_b32 s36, s33, 1')
    b('s_add_u32 s29, s6, s35')
    b('s_mul_i32 s29, s29, %d' % KCS)
    b('s_lshl_b32 s34, s36, 2')
    b('s_add_u32 s29, s29, s34')
    b('s_add_u32 s29, s29, %d' % WS_KC)
    b('s_mul_i32 s34, s33, 4224')
    b('s_add_u32 s34, s34, %d' % KB)
    b('s_waitcnt lgkmcnt(0)')
    vm = VM(b)
    b(add64(10, 4, 's7'))
    b(add64(12, 10, '0x100000'))
    b(vm.op('global_load_dwordx4 v[4:7], v2, s[10:11]', 'ln'))
    b(vm.op('global_load_dwordx4 v[8:11], v2, s[12:13]', 'ln'))
    RS, CC_ = 96, 112
    for a in range(4):
        b(add64(14, 4, hex(WS_LST + 4096 * a)))
        for k in range(2):
            b(vm.op('global_load_dwordx4 %s, v60, s[14:15] offset:%d' % (vr(RS + 8 * a + 4 * k, 4), 16 * k), 'ln'))
    b(add64(18, 4, 's28'))
    for s_, o in enumerate((0, 16, 32, 80)):
        b(vm.op('global_load_dwordx4 %s, v39, s[18:19] offset:%d' % (vr(20 + 4 * s_, 4), o), 'mod'))
    srd(b, 24, 4, 's29', 4096)
    b('s_mov_b32 m0, s34')
    for i in range(4):
        b(vm.op('buffer_load_dwordx4 v50, s[24:27], 0 offen offset:%d lds' % (1024 * i), 'k'))
    b('v_add_lshl_u32 v49, v3, s6, 1')
    b(vm.op('global_load_ushort v36, v49, s[8:9]', 'x'))
    b('v_min_u32 v51, 34, v0')
    b('v_lshlrev_b32 v51, 4, v51')
    b('v_pk_mov_b32 v[52:53], 0, 0')
    b('v_pk_mov_b32 v[54:55], 0, 0')
    for i in range(4):
        b('ds_write_b128 v51, v[52:55] offset:%d' % (HB + CS_ * i))
    b('v_mul_u32_u24 v51, %d, v3' % (2 * CS_))
    b('ds_write_b16 v51, v52 offset:%d' % (HB + CS_ + 560))
    b('v_and_b32 v46, 15, v1')
    b('v_lshl_add_u32 v46, v46, 3, s34')
    b('ds_write_b64 v46, v[52:53] offset:4096')
    b('v_lshrrev_b32 v60, 5, v61')
    b('v_lshl_add_u32 v54, v61, 1, v51')
    b('v_lshl_add_u32 v54, v60, 4, v54')
    b('v_add_u32 v55, 8, v61')
    b('v_lshrrev_b32 v55, 5, v55')
    b('v_sub_u32 v55, v55, v60')
    b('v_lshl_add_u32 v55, v55, 4, v54')
    stamp(b, 1)
    b(vm.wait('mod'))
    stamp(b, 2)
    for s_ in range(4):
        b(pk('add', 20 + 4 * s_, [('p', 20 + 4 * s_), ('p', 22 + 4 * s_)]))
    for s_ in range(4):
        b('v_add_f32 v%d, v%d, v%d' % (20 + s_, 20 + 4 * s_, 21 + 4 * s_))
    E(b, rnd_pair(20, 24) + rnd_pair(22, 25))
    b('v_add_f32 v21, 1.0, v21')
    E(b, rnd_bf16(21))
    HF_, XF_ = 160, 176
    for i in range(2):
        for k in range(4):
            o_ = 8 * i + 2 * k
            E(b, unpack(XF_ + o_, 4 + 4 * i + k))
            b(pk('mul', RS + o_, [('p', RS + o_), ('b', 21)]))
            b(pk('fma', CC_ + o_, [('p', CC_ + o_), ('b', 21), ('b', 20)]))
        for k in range(4):
            o_ = 8 * i + 2 * k
            b(pk('fma', HF_ + o_, [('p', XF_ + o_), ('p', RS + o_), ('p', CC_ + o_)]))
        h = 40 + 4 * i
        for k in range(4):
            b('v_cvt_pk_bf16_f32 v%d, v%d, v%d' % (h + k, HF_ + 8 * i + 2 * k, HF_ + 8 * i + 2 * k + 1))
        o = HB + 560 + 2560 * i
        b('ds_write_b128 v54, %s offset:%d' % (vr(h, 4), o))
        for k in range(3):
            b('v_cvt_pk_bf16_f32 v%d, v%d, v%d' % (5 + 4 * i + k, HF_ + 8 * i + 2 * k + 1, HF_ + 8 * i + 2 * k + 2))
        b('ds_write_b16 v54, v%d offset:%d' % (h, o + CS_ + 2))
        b('ds_write_b16_d16_hi v55, v%d offset:%d' % (h + 3, o + CS_ + 16))
        b('ds_write_b32 v54, v%d offset:%d' % (5 + 4 * i, o + CS_ + 4))
        b('ds_write_b64 v54, %s offset:%d' % (vr(6 + 4 * i, 2), o + CS_ + 8))
    b('v_and_b32 v58, 1, v1')
    b('v_bfe_u32 v59, v1, 1, 3')
    b('v_lshrrev_b32 v48, 4, v1')
    b('s_mul_i32 s37, s35, 8448')
    b('s_lshl_b32 s38, s36, 8')
    b('s_sub_u32 s37, s37, s38')
    b('s_add_u32 s37, s37, %d' % (KB + 2 * 2044 - 7 * 512 - 3 * 64))
    b('v_xor_b32 v45, 1, v58')
    b('v_mul_u32_u24 v56, 4224, v45')
    b('v_sub_u32 v47, v48, v59')
    b('v_lshl_add_u32 v56, v47, 3, v56')
    b('v_add_u32 v56, s37, v56')
    b('s_mul_i32 s37, s35, %d' % (2 * CS_))
    b('s_mul_i32 s38, s36, 320')
    b('s_sub_u32 s37, s37, s38')
    b('s_add_u32 s37, s37, %d' % (HB + 4 * 80))
    b('v_mul_u32_u24 v57, %d, v58' % CS_)
    b('v_lshl_add_u32 v57, v48, 3, v57')
    b('v_mul_u32_u24 v47, 80, v59')
    b('v_add3_u32 v57, v57, v47, s37')
    stamp(b, 3)
    b(vm.wait('k') + ' lgkmcnt(0)')
    b('s_barrier')
    stamp(b, 4)

    def reads(rho):
        f = 96 if rho & 1 == 0 else 192
        r = []
        for n in range(8):
            for e in range(2):
                r.append('ds_read_b64 %s, v57 offset:%d' % (vr(f + 32 + 4 * n + 2 * e, 2), (3 - rho) * 80 + 640 * n + 32 * e))
            for e in range(2):
                r.append('ds_read_b64 %s, v56 offset:%d' % (vr(f + 4 * n + 2 * e, 2), (3 - rho) * 64 + (7 - n) * 512 + 32 * e))
        return r
    E(b, reads(0))
    fill = []
    fill += ['s_mul_i32 s37, s33, 9216', 's_add_u32 s37, s37, %d' % PB,
             'v_mul_u32_u24 v62, 144, v59', 'v_lshl_add_u32 v62, v48, 5, v62',
             'v_lshl_add_u32 v62, v45, 2, v62', 'v_add_u32 v62, s37, v62',
             'v_lshl_add_u32 v63, v60, 2, v61', 'v_mul_u32_u24 v58, %d, v3' % (2 * 9216), 'v_lshl_add_u32 v63, v63, 2, v58',
             'v_add_u32 v63, %d, v63' % PB,
             'v_add_u32 v37, s6, v3', 'v_lshrrev_b32 v2, 7, v61', 'v_lshlrev_b32 v2, 17, v2', 'v_lshl_add_u32 v2, v37, 8, v2',
             'v_and_b32 v58, 127, v61', 'v_and_b32 v59, 3, v37', 'v_lshlrev_b32 v59, 5, v59', 'v_xor_b32 v58, v58, v59',
             'v_bfe_u32 v59, v37, 3, 1', 'v_lshlrev_b32 v59, 4, v59', 'v_xor_b32 v58, v58, v59', 'v_lshl_add_u32 v2, v58, 1, v2',
             'v_lshlrev_b32 v38, 2, v37'] + add64(18, 4, hex(WS_GB)).split('\n') + \
            ['global_store_dword v38, v23, s[18:19]'] + add64(10, 4, hex(WS_X1T)).split('\n') + add64(12, 4, hex(WS_X1T + 0x100000)).split('\n')
    fill += ['s_lshl_b32 s20, s2, 7', 'v_lshrrev_b32 v31, 5, v1', 'v_and_b32 v28, 31, v1', 'v_lshlrev_b32 v29, 2, v28', 'v_cmp_lt_u32 s[22:23], 6, v28',
             'v_mul_u32_u24 v30, %d, v31' % (WS_FLG - WS_SST), 'v_add3_u32 v29, v29, v30, s20', 'v_and_b32 v28, 1, v1',
             'v_cndmask_b32 v30, 0, 1, s[22:23]', 'v_mul_u32_u24 v28, 0xbf80, v28', 'v_cmp_eq_u32 s[22:23], 0, v31', 'v_lshlrev_b32 v28, 16, v28'] + \
            add64(20, 4, hex(WS_SST)).split('\n') + \
            ['v_cndmask_b32 v28, v30, v28, s[22:23]', 'global_store_dword v29, v28, s[20:21]']
    fill += ['s_waitcnt vmcnt(2)', 'v_lshlrev_b32 v36, 16, v36', 'v_mul_f32 v36, v36, v22']
    for k in range(8):
        fill += [pk('fma', HF_ + 2 * k, [('p', HF_ + 2 * k), ('b', 36), ('p', XF_ + 2 * k)])]
    order = sorted([(p, m) for p in range(8) for m in range(8 - p)], key=lambda pm: (max(pm) > 3, max(pm), (pm[0] + pm[1]) & 1, pm))
    seq = []
    for grp in ([x for x in order if max(x) <= 3], [x for x in order if max(x) > 3]):
        grp = list(grp)
        while grp:
            pick = next((x for x in grp if not seq or sum(x) != sum(seq[-1])), grp[0])
            grp.remove(pick)
            seq.append(pick)
    touched = set()
    for rho in range(4):
        f = 96 if rho & 1 == 0 else 192
        nxt = reads(rho + 1) if rho < 3 else []
        b('s_waitcnt lgkmcnt(%d)' % (14 if rho == 0 else 0))
        for n, (p, m) in enumerate(seq):
            if rho == 0 and n == 16:
                b('s_waitcnt lgkmcnt(14)')
            a = vr(64 + 4 * (p + m), 4)
            b('v_mfma_f32_16x16x32_bf16 %s, %s, %s, %s' % (a, vr(f + 4 * p, 4), vr(f + 32 + 4 * m, 4), a if p + m in touched else '0'))
            touched.add(p + m)
            if nxt and not (rho == 0 and n in (14, 15)):
                b(nxt.pop(0))
            if fill:
                b(fill.pop(0))
        E(b, nxt)
    assert not fill
    stamp(b, 5)
    for j in range(8):
        if j:
            b('v_add_u32 v62, 1152, v62')
        b('ds_write2_b32 v62, v%d, v%d offset0:0 offset1:2' % (64 + 4 * j, 65 + 4 * j))
        b('ds_write2_b32 v62, v%d, v%d offset0:4 offset1:6' % (66 + 4 * j, 67 + 4 * j))
    b('s_waitcnt lgkmcnt(0)')
    b('s_barrier')
    stamp(b, 6)
    for i in range(2):
        for part in range(2):
            for k in range(2):
                b('ds_read_b128 %s, v63 offset:%d' % (vr(64 + 16 * i + 8 * part + 4 * k, 4), 4608 * i + 9216 * part + 16 * k))
    for i in range(2):
        b('s_waitcnt lgkmcnt(%d)' % (4 - 4 * i))
        Y = 64 + 16 * i
        for k in range(4):
            b(pk('add', Y + 2 * k, [('p', Y + 2 * k), ('p', Y + 2 * k + 8)]))
        for k in range(4):
            b(pk('fma', Y + 2 * k, [('p', Y + 2 * k), ('b', 22), ('p', HF_ + 8 * i + 2 * k)]))
        for k in range(4):
            b('v_cvt_pk_bf16_f32 v%d, v%d, v%d' % (116 + 4 * i + k, Y + 2 * k, Y + 2 * k + 1))
        b('global_store_dwordx4 v2, %s, s[%d:%d] %s' % (vr(116 + 4 * i, 4), 10 + 2 * i, 11 + 2 * i, ST_X1))
    stamp_end(b, 1)
    b('s_endpgm')

    b.label('K1_FOLD')
    b('s_load_dwordx4 s[8:11], s[0:1], %d' % KA['wg'])
    b('s_load_dwordx2 s[24:25], s[0:1], %d' % KA['wd'])
    b('s_sub_u32 s6, s2, %d' % K1_CONV)
    b('s_and_b32 s12, s6, 3')
    b('s_bfe_u32 s13, s6, 0x10002')
    b('s_lshr_b32 s14, s6, 3')
    b('v_lshrrev_b32 v3, 6, v0')
    b('v_and_b32 v1, 63, v0')
    b('v_bfe_u32 v52, v0, 2, 2')
    b('v_and_b32 v53, 3, v0')
    b('v_lshl_add_u32 v52, v52, 3, v53')
    b('v_lshl_add_u32 v2, v3, 5, v52')
    b('v_mul_u32_u24 v2, 3584, v2')
    b('v_lshrrev_b32 v54, 4, v1')
    b('v_lshl_add_u32 v2, v54, 4, v2')
    b('s_mul_i32 s15, s12, %d' % (128 * 3584))
    b('s_lshl_b32 s16, s14, 7')
    b('s_add_u32 s15, s15, s16')
    b('s_mul_i32 s16, s12, %d' % (128 * 96))
    b('v_and_b32 v55, 127, v0')
    b('v_mul_u32_u24 v56, 96, v55')
    b('v_lshrrev_b32 v57, 7, v0')
    b('v_lshl_add_u32 v56, v57, 4, v56')
    b('s_cmp_eq_u32 s13, 0')
    b('s_waitcnt lgkmcnt(0)')
    b('s_cselect_b32 s8, s8, s10')
    b('s_cselect_b32 s9, s9, s11')
    b(add64(18, 4, 's16'))
    b('global_load_dwordx4 v[20:23], v56, s[18:19] offset:48')
    b(add64(8, 8, 's15'))
    b(add64(10, 8, str(4 * 3584)))
    for ch in range(2):
        for ab in range(2):
            b('global_load_dwordx4 %s, v2, s[%d:%d] offset:%d' % (vr(4 + 8 * ch + 4 * ab, 4), 8 + 2 * ab, 9 + 2 * ab, 64 * ch))
    b('s_lshr_b32 s26, s6, 2')
    b('s_and_b32 s27, s6, 3')
    b('s_lshl_b32 s28, s26, 15')
    b('s_lshl_b32 s29, s27, 8')
    b('s_add_u32 s28, s28, s29')
    b(add64(24, 24, 's28'))
    b('v_and_b32 v58, 19, v1')
    b('v_bfe_u32 v59, v1, 2, 1')
    b('v_lshl_add_u32 v58, v59, 3, v58')
    b('v_bfe_u32 v59, v1, 3, 1')
    b('v_lshl_add_u32 v58, v59, 2, v58')
    b('v_lshlrev_b32 v58, 10, v58')
    b('v_lshrrev_b32 v59, 5, v1')
    b('v_lshl_add_u32 v58, v59, 4, v58')
    b('v_lshl_add_u32 v58, v3, 6, v58')
    b('global_load_dwordx4 v[24:27], v58, s[24:25]')
    b('global_load_dwordx4 v[28:31], v58, s[24:25] offset:32')
    if CODE_PF:
        b('s_cmp_ge_u32 s6, 8')
        b('s_cbranch_scc1 K1_NOPF')
        code_prefetch(b, 'b', 'gemm1_kernel', 0, 110, 22)
        b.label('K1_NOPF')
    b('s_setprio %d' % FOLD_PRIO)
    b('v_and_b32 v60, 1, v1')
    b('v_lshlrev_b32 v60, 4, v60')
    b('v_lshlrev_b32 v60, v60, 0x3f80' if False else 'v_mov_b32 v61, 0x3f80')
    b('v_lshlrev_b32 v60, v60, v61')
    b('v_bfe_u32 v61, v1, 1, 3')
    b('v_lshlrev_b32 v62, 2, v54')
    b('v_sub_u32 v61, v62, v61')
    for s_ in range(2):
        for p in range(4):
            b('v_cmp_eq_u32 vcc, %d, v61' % (8 * s_ - p))
            b('v_cndmask_b32 v%d, 0, v60, vcc' % (32 + 4 * s_ + p))
    b('v_bfe_u32 v61, v1, 1, 4')
    b('v_lshlrev_b32 v62, 2, v59')
    b('v_sub_u32 v61, v61, v62')
    for s_ in range(2):
        for p in range(4):
            b('v_cmp_eq_u32 vcc, %d, v61' % (8 * s_ + p))
            b('v_cndmask_b32 v%d, 0, v60, vcc' % (40 + 4 * s_ + p))
    for i in range(4):
        b('v_mov_b32 v%d, 0x3f803f80' % (48 + i))
    b('v_lshlrev_b32 v56, 2, v0')
    b('v_lshlrev_b32 v63, 7, v3')
    b('v_lshl_add_u32 v63, v54, 5, v63')
    b('v_lshlrev_b32 v2, 11, v3')
    b('v_lshl_add_u32 v2, v1, 4, v2')
    b('s_lshl_b32 s15, s14, 17')
    b('s_lshl_b32 s16, s12, 13')
    b('s_add_u32 s15, s15, s16')
    b('s_lshl_b32 s16, s13, 10')
    b('s_add_u32 s15, s15, s16')
    b('s_add_u32 s15, s15, %s' % hex(WS_WF))
    b(add64(20, 4, 's15'))
    b('v_cvt_f32_u32 v57, v57')
    b('s_waitcnt vmcnt(%d)' % (6 + (1 if False else 0)))
    b(pk('add', 20, [('p', 20), ('p', 22)]))
    b('v_add_f32 v20, v20, v21')
    E(b, rnd_bf16(20))
    b('v_add_f32 v20, v20, v57')
    E(b, rnd_bf16(20))
    b('ds_write_b32 v56, v20')
    b('v_mul_u32_u24 v58, 114688, v3')
    b('v_lshl_add_u32 v58, v1, 4, v58')
    b('s_mul_i32 s27, s27, %d' % (4 * 114688))
    b('s_lshl_b32 s26, s26, 11')
    b('s_add_u32 s26, s26, s27')
    b('s_add_u32 s26, s26, %s' % hex(WS_WD))
    b(add64(24, 4, 's26'))
    b('v_readfirstlane_b32 s22, v0')
    b('s_waitcnt lgkmcnt(0)')
    b('s_barrier')
    SBR, OCR, D = 64, 72, 80
    b('ds_read_b128 %s, v63' % vr(SBR, 4))
    b('ds_read_b128 %s, v63 offset:16' % vr(SBR + 4, 4))
    b('ds_read_b128 %s, v63 offset:512' % vr(OCR, 4))
    b('ds_read_b128 %s, v63 offset:528' % vr(OCR + 4, 4))
    stamp(b, 1)
    b('s_waitcnt vmcnt(0)')
    stamp(b, 2)
    for nt in range(4):
        for ab in range(2):
            b('v_mfma_f32_16x16x32_bf16 %s, %s, %s, 0' % (vr(D + 8 * nt + 4 * ab, 4), vr(4 + 8 * (nt >> 1) + 4 * ab, 4), vr(32 + 4 * (nt & 1), 4)))
    b('v_mfma_f32_32x32x16_bf16 v[112:127], v[24:27], v[40:43], 0')
    b('v_mfma_f32_32x32x16_bf16 v[112:127], v[28:31], v[44:47], v[112:127]')
    b('s_waitcnt lgkmcnt(0)')
    for nt in range(4):
        d = D + 8 * nt
        o = 4 + 4 * nt
        b(pk('mul', 128 + 2 * nt, [('p', d), ('p', SBR)]))
        for k in range(1, 4):
            b(pk('fma', 128 + 2 * nt, [('p', d + 2 * k), ('p', SBR + 2 * k), ('p', 128 + 2 * nt)]))
        for k in range(4):
            b(pk('mul', d + 2 * k, [('p', d + 2 * k), ('p', OCR + 2 * k)]))
        for k in range(4):
            b('v_cvt_pk_bf16_f32 v%d, v%d, v%d' % (o + k, d + 2 * k, d + 2 * k + 1))
        b('global_store_dwordx4 v2, %s, s[20:21] %s' % (vr(o, 4), ST_WF))
        if nt < 3:
            b(add64(20, 20, '32768'))
        b('v_mfma_f32_16x16x32_bf16 %s, v[48:51], %s, 0' % (vr(136 + 4 * nt, 4), vr(o, 4)))
    for k in range(8):
        b('v_cvt_pk_bf16_f32 v%d, v%d, v%d' % (24 + k, 112 + 2 * k, 113 + 2 * k))
    b('global_store_dwordx4 v58, v[24:27], s[24:25] %s' % ST_WF)
    b('global_store_dwordx4 v58, v[28:31], s[24:25] offset:1024 %s' % ST_WF)
    for nt in range(4):
        b('v_add_f32 v%d, v%d, v%d' % (128 + nt, 128 + 2 * nt, 129 + 2 * nt))
    b('v_permlane32_swap_b32 v128, v129')
    b('v_permlane32_swap_b32 v130, v131')
    b('v_cmp_eq_u32 s[26:27], 1, v54')
    b('v_cmp_eq_u32 s[28:29], 2, v54')
    b('v_cmp_eq_u32 s[30:31], 3, v54')
    b('v_add_f32 v128, v128, v129')
    b('v_add_f32 v130, v130, v131')
    b('v_cndmask_b32 v136, v136, v144, s[26:27]')
    b('v_permlane16_swap_b32 v128, v130')
    b('v_cndmask_b32 v136, v136, v140, s[28:29]')
    b('v_add_f32 v137, v128, v130')
    b('v_cndmask_b32 v136, v136, v148, s[30:31]')
    b('v_lshlrev_b32 v56, 3, v0')
    b('ds_write_b64 v56, v[136:137] offset:1024')
    stamp(b, 3)
    b('s_cmp_ge_u32 s22, 64')
    b('s_waitcnt lgkmcnt(0)')
    b('s_barrier')
    b('s_cbranch_scc1 K1_FIN')
    for w in range(4):
        b('ds_read_b64 %s, v56 offset:%d' % (vr(64 + 2 * w, 2), 1024 + 512 * w))
    b('v_and_b32 v2, 1, v54')
    b('v_lshlrev_b32 v2, 1, v2')
    b('v_lshrrev_b32 v3, 1, v54')
    b('v_add_u32 v2, v2, v3')
    b('v_lshlrev_b32 v2, 5, v2')
    b('v_and_b32 v3, 15, v1')
    b('v_add_lshl_u32 v2, v2, v3, 2')
    b('s_lshl_b32 s15, s14, 9')
    b('s_lshl_b32 s16, s13, 6')
    b('s_add_u32 s15, s15, s16')
    b('s_mul_i32 s16, s12, %d' % (2 * 3584 * 4))
    b('s_add_u32 s15, s15, s16')
    b('s_add_u32 s15, s15, %s' % hex(WS_CB))
    b(add64(20, 4, 's15'))
    b(add64(22, 20, str(3584 * 4)))
    b('s_waitcnt lgkmcnt(0)')
    b(pk('add', 64, [('p', 64), ('p', 66)]))
    b(pk('add', 68, [('p', 68), ('p', 70)]))
    b(pk('add', 64, [('p', 64), ('p', 68)]))
    b('global_store_dword v2, v64, s[20:21]')
    b('global_store_dword v2, v65, s[22:23]')
    b.label('K1_FIN')
    stamp_end(b, 1)
    b.label('K1_END')
    b('s_endpgm')
    return b.text(), 256, NSG
```

```python
from common import *

K2_WGS = 256
ST = 131072
CBL = ST + 4096
FLAG = CBL + 7 * 32 * 8
SCR = FLAG + 256
K2_LDS = SCR + 8192
PLANS = [
    ({-2: ['x0'], -1: ['x1', 'x2'], 0: ['x3'], 1: ['x4'], 2: ['x5'], 3: ['x6'], 4: ['x7']},
     {0: ['x0'], 1: ['x1'], 2: ['x2'], 3: ['x3'], 4: ['x4'], 5: ['x5'], 6: ['x6', 'x7']}),
    ({-2: ['x0'], -1: ['x1', 'x2'], 0: ['x3'], 1: ['x4'], 2: ['x5', 'x6'], 3: ['x7']},
     {0: ['x0'], 1: ['x1'], 2: ['x2'], 3: ['x3'], 4: ['x4'], 5: ['x5', 'x6', 'x7']}),
    ({-2: ['x0'], -1: ['x1', 'x2'], 0: ['x3', 'x4'], 1: ['x5', 'x6'], 2: ['x7']},
     {0: ['x0'], 1: ['x1'], 2: ['x2'], 3: ['x3'], 4: ['x4', 'x5', 'x6', 'x7']}),
    ({-2: ['x0'], -1: ['x1', 'x2'], 0: ['x3'], 1: ['x4'], 2: ['x5'], 3: ['x6'], 4: ['x7']},
     {0: ['x0'], 1: ['x1'], 2: ['x2'], 3: ['x3'], 4: ['x4'], 5: ['x5'], 6: ['x6'], 7: ['x7']}),
]
PLAN, BARS = PLANS[opt('PLAN', 1)]
GATHER = opt('GATHER', 4)
WD0 = opt('WD0', 18)
AUXX = True
W0 = opt('W0', 4)
WP = opt('WP', 6)
YB = opt('YB', 18)
YN = opt('YN', YB)
WR = opt('WR', 2)
EPI = opt('EPI', 6)
NB = opt('NB', 2)
HD = 6
ROT = opt('ROT', 0)
ROT2 = opt('ROT2', 0)
OLDPRIO = opt('OLDPRIO', False)
SPIN = 0x8000
ST_OUT = opt('ST_OUT', '')
W, XB, ACC = 128, 16, 64


def k23():
    b = Builder()
    b('s_cmp_ge_u32 s2, %d' % K2_WGS)
    b('s_cbranch_scc1 K2_END')
    b('s_load_dwordx2 s[4:5], s[0:1], %d' % KA['ws'])
    b('s_load_dwordx2 s[50:51], s[0:1], %d' % KA['out'])
    stamp_init(b)
    b('v_lshrrev_b32 v2, 6, v0')
    b('v_and_b32 v1, 63, v0')
    b('v_readfirstlane_b32 s33, v2')
    b('s_and_b32 s6, s2, 7')
    b('s_lshr_b32 s7, s2, 3')
    b('s_lshr_b32 s8, s6, 1')
    b('s_lshl_b32 s8, s8, 2')
    b('s_lshr_b32 s9, s7, 3')
    b('s_add_u32 s8, s8, s9')
    b('s_and_b32 s30, s6, 1')
    b('s_lshl_b32 s30, s30, 3')
    b('s_and_b32 s10, s7, 7')
    b('s_add_u32 s30, s30, s10')
    if opt('MAP2', False):
        b('s_lshl_b32 s8, s6, 1')
        b('s_lshr_b32 s9, s7, 4')
        b('s_add_u32 s8, s8, s9')
        b('s_and_b32 s30, s7, 15')
    b('s_mul_i32 s9, s30, 7')
    b('v_lshlrev_b32 v2, 4, v1')
    b('s_lshl_b32 s10, s8, 17')
    b('s_add_u32 s10, s10, %s' % hex(WS_X1T))
    b('s_add_u32 s11, s9, s33')
    b('s_lshl_b32 s12, s11, 15')
    b('s_add_u32 s12, s12, %s' % hex(WS_WF))
    b('s_lshl_b32 s34, s33, 11')
    b('s_and_b32 s48, s8, 3')
    b('s_lshl_b32 s48, s48, 1')
    b('s_add_u32 s48, s48, s30')
    b('s_and_b32 s48, s48, %d' % ROT)
    b('s_cmp_eq_u32 s33, 7')
    b('s_waitcnt lgkmcnt(0)')
    b('s_cbranch_scc1 K2_AUX')
    srd(b, 16, 4, 's10', 131072)
    srd(b, 20, 4, 's12', 32768)

    def make_issue(vm, with_w):
        def issue(tag):
            c = int(tag[1])
            if tag[0] == 'x' and AUXX and c > 0:
                if with_w:
                    return []
                r = ['s_add_u32 s35, s48, %d' % c, 's_and_b32 s35, s35, 7', 's_lshl_b32 s35, s35, 14']
                for i in range(4):
                    r += ['s_mov_b32 m0, %d' % (16384 * c + 4096 * i)] + (['s_add_u32 s35, s35, 4096'] if i else [])
                    r += [vm.op('buffer_load_dwordx4 v2, s[16:19], s35 offen offset:%d lds' % (1024 * k), tag) for k in range(4)]
                return r
            if tag[0] == 'x':
                return ['s_lshl_b32 s35, s48, 14', 's_add_u32 s35, s35, s34', 's_mov_b32 m0, s34',
                        vm.op('buffer_load_dwordx4 v2, s[16:19], s35 offen lds', tag),
                        vm.op('buffer_load_dwordx4 v2, s[16:19], s35 offen offset:1024 lds', tag)]
            if not with_w:
                return []
            return ['s_movk_i32 s36, %d' % (4096 * c)] + \
                   [vm.op('buffer_load_dwordx4 %s, v2, s[20:23], s36 offen offset:%d' % (vr(W + 16 * c + 4 * k, 4), 1024 * k), tag) for k in range(4)]
        return issue

    def xreads(u):
        kk, hh = u >> 1, u & 1
        f = XB + 16 * (u % 3)
        o = (kk & 7) * 8192
        r = []
        if u in (16, 17):
            r += ['v_add_u32 v%d, 0x10000, v%d' % (4 + 4 * hh + j, 4 + 4 * hh + j) for j in range(4)]
        for j in range(4):
            r.append('ds_read_b64_tr_b16 %s, v%d offset:%d' % (vr(f + 4 * j, 2), 4 + 4 * hh + j, o))
            r.append('ds_read_b64_tr_b16 %s, v%d offset:%d' % (vr(f + 4 * j + 2, 2), 4 + 4 * hh + j, o + 1024))
        return r

    def phase2_setup():
        b('s_lshr_b32 s37, s30, 3')
        b('s_lshl_b32 s37, s37, 2')
        b('s_and_b32 s38, s30, 3')
        b('s_add_u32 s37, s37, s38')
        b('s_bfe_u32 s38, s30, 0x10002')
        b('s_and_b32 s39, s33, 1')
        b('s_bfe_u32 s42, s33, 0x10001')
        b('s_lshr_b32 s43, s33, 2')
        b('s_and_b32 s49, s30, 3')
        b('s_mul_i32 s49, s49, %d' % (ROT2 * 1024))
        b('s_mul_i32 s12, s37, %d' % (2 * 114688))
        b('s_mul_i32 s13, s33, %d' % (14 * 1024))
        b('s_add_u32 s12, s12, s13')
        b('s_add_u32 s12, s12, %s' % hex(WS_WD))
        srd(b, 24, 4, 's12', 114688 + 14 * 1024)
        b('s_lshl_b32 s12, s43, 8')
        b('v_xor_b32 v12, s12, v2')
        b('s_mul_i32 s12, s39, 114688')
        b('v_add_u32 v3, s12, v12')
        b('s_sub_u32 s12, 114688, s12')
        b('v_add_u32 v12, s12, v12')

    def wdload(vm, i):
        j = i >> 1
        r = []
        if i & 1 == 0:
            r += ['s_add_u32 s44, s49, %d' % (1024 * j), 's_sub_u32 s47, s44, 14336', 's_cselect_b32 s44, s44, s47']
        r.append('buffer_load_dwordx4 %s, v%d, s[24:27], s44 offen' % (vr(W + 4 * i, 4), 12 if i & 1 else 3))
        return r

    vm = VM(b)
    issue = make_issue(vm, True)

    def wl(i):
        r = []
        if i & 3 == 0:
            r += ['s_add_u32 s36, s48, %d' % (i >> 2), 's_and_b32 s36, s36, 7', 's_lshl_b32 s36, s36, 12']
        r.append(vm.op('buffer_load_dwordx4 %s, v2, s[20:23], s36 offen offset:%d' % (vr(W + 4 * i, 4), 1024 * (i & 3)), 'w%d' % (i >> 1)))
        return r
    E(b, issue('x0'))
    for i in range(W0):
        E(b, wl(i))
    b('s_barrier')
    b('v_lshrrev_b32 v12, 4, v1')
    b('v_bfe_u32 v13, v1, 2, 2')
    b('v_and_b32 v14, 3, v1')
    b('v_lshl_add_u32 v15, v12, 3, v13')
    b('v_lshlrev_b32 v15, 8, v15')
    b('v_lshl_add_u32 v15, v14, 3, v15')
    b('v_and_b32 v14, 1, v12')
    b('v_lshl_add_u32 v14, v13, 1, v14')
    b('v_lshl_add_u32 v4, v14, 5, v15')
    for tt in range(1, 8):
        b('v_xor_b32 v%d, %d, v4' % (4 + tt, 32 * tt))
    for i in range(W0, WP):
        E(b, wl(i))
    b('v_and_b32 v13, 15, v1')
    b('s_lshl_b32 s35, s33, 8')
    b('s_add_u32 s35, s35, %d' % CBL)
    b('v_lshl_add_u32 v14, v13, 3, s35')
    b('s_mov_b32 s35, %d' % ST)
    b('v_lshl_add_u32 v13, v13, 5, s35')
    b('v_mov_b32 v15, %d' % FLAG)
    b('v_cmp_gt_u32 s[40:41], 16, v1')
    b('s_mul_i32 s12, s8, 448')
    b('s_add_u32 s12, s12, s11')
    b('s_lshl_b32 s12, s12, 10')
    b('s_add_u32 s12, s12, %s' % hex(WS_HF))
    b(add64(14, 4, 's12'))
    phase2_setup()
    stamp(b, 1)
    b(vm.wait('x0', 'w0'))
    b('s_barrier')
    stamp(b, 2)
    if OLDPRIO:
        b('s_cmp_ge_u32 s33, 4')
        b('s_cbranch_scc1 K2_NP')
        b('s_setprio 1')
        b.label('K2_NP')
    E(b, xreads(0) + xreads(1))
    nw = WP
    for u in range(32):
        c = u >> 2
        if u & 1 == 0 and u:
            b(vm.wait('w%d' % (u >> 1)))
        if u & 3 == 2:
            if c + 1 in BARS:
                b('s_barrier')
            stamp(b, 3 + c)
        if u == YB:
            assert nw == 32
            b('s_cmp_lt_u32 s33, 4')
            b('s_cbranch_scc1 K2_NY')
            for i in range(YN):
                E(b, wdload(None, i))
            b.label('K2_NY')
        pend = []
        for _ in range(WR if u & 1 else 1):
            if nw < 32:
                pend += wl(nw)
                nw += 1
        fill = (xreads(u + 2) if u < 30 else []) + pend
        b('s_waitcnt lgkmcnt(%d)' % (8 if u < 31 else 0))
        f = XB + 16 * (u % 3)
        mm = []
        for j in range(4):
            for m in range(2):
                a = vr(ACC + 8 * (4 * (u & 1) + j) + 4 * m, 4)
                mm.append('v_mfma_f32_16x16x32_bf16 %s, %s, %s, %s' % (a, vr(W + 8 * (u >> 1) + 4 * m, 4), vr(f + 4 * j, 4), a if u > 1 else '0'))
        E(b, spread(mm, fill, 2))
    stamp(b, 11)
    b('s_cmp_ge_u32 s33, 4')
    b('s_cbranch_scc1 K2_NO')
    for i in range(YN):
        E(b, wdload(None, i))
    b.label('K2_NO')
    for i in range(YN, 28):
        E(b, wdload(None, i))
    wdq = []
    CO = lambda tt: 48 + 4 * tt if tt < 4 else 240 + 4 * (tt - 4)
    b('v_pk_mov_b32 v[6:7], 0, 0')
    b('v_pk_mov_b32 v[10:11], 0, 0')
    b('s_mov_b32 s36, %d' % SPIN)
    b.label('K2_POLL')
    b('ds_read_b32 v4, v15')
    b('s_waitcnt lgkmcnt(0)')
    b('v_readfirstlane_b32 s35, v4')
    b('s_cmp_eq_u32 s35, 1')
    b('s_cbranch_scc1 K2_GO')
    b('s_sleep 1')
    b('s_sub_u32 s36, s36, 1')
    b('s_cmp_lg_u32 s36, 0')
    b('s_cbranch_scc1 K2_POLL')
    b.label('K2_GO')
    b('ds_read_b64 v[4:5], v14')
    b('ds_read_b64 v[8:9], v14 offset:128')
    for tt in range(8):
        b('ds_read_b128 %s, v13 offset:%d' % (vr(16 + 4 * tt, 4), 512 * tt))
    for tt in range(8):
        b('ds_read_b128 %s, v13 offset:%d' % (vr(CO(tt), 4), 512 * tt + 16))
    b('s_waitcnt lgkmcnt(8)')
    for r in (4, 5, 8, 9):
        b('v_cndmask_b32 v%d, 0, v%d, s[40:41]' % (r, r))
    for tt in range(8):
        for m in range(2):
            a = vr(ACC + 8 * tt + 4 * m, 4)
            b('v_mfma_f32_16x16x32_bf16 %s, %s, %s, %s' % (a, vr(4 + 4 * m, 4), vr(16 + 4 * tt, 4), a))
    b('s_waitcnt lgkmcnt(0)')
    cnt = [0]

    def ep(t):
        b(t)
        cnt[0] += 1
        if cnt[0] % EPI == 0 and wdq:
            E(b, wdq.pop(0))
    for p in range(4):
        T = 16 + 16 * (p & 1)
        tl = [(ACC + 8 * (2 * p + e) + 2 * k, T + 4 * e + 2 * k, CO(2 * p + e)) for e in range(2) for k in range(2)]
        for g, t, c in tl:
            ep(pk('mul', t, [('p', g), ('p', g)]))
        for g, t, c in tl:
            ep(pk('fma', t, [('p', t), ('b', c + 1), ('b', c)]))
        for g, t, c in tl:
            ep(pk('mul', t, [('p', t), ('p', g)]))
        for g, t, c in tl:
            ep('v_exp_f32 v%d, v%d' % (t, t))
            ep('v_exp_f32 v%d, v%d' % (t + 1, t + 1))
            ep(pk('mul', g, [('p', g), ('p', g + 4)]))
        for g, t, c in tl:
            ep(pk('fma', t, [('p', t), ('b', c + 2), ('b', c + 2)]))
        for k in range(8):
            ep('v_rcp_f32 v%d, v%d' % (T + k, T + k))
        for g, t, c in tl:
            ep(pk('mul', g, [('p', g), ('p', t)]))
        for n, (g, t, c) in enumerate(tl):
            ep('v_cvt_pk_bf16_f32 v%d, v%d, v%d' % (T + 8 + n, g, g + 1))
        ep('v_permlane16_swap_b32 v%d, v%d' % (T + 8, T + 10))
        ep('v_permlane16_swap_b32 v%d, v%d' % (T + 9, T + 11))
        ep('global_store_dwordx4 v2, %s, s[14:15] sc1' % vr(T + 8, 4))
        if p < 3:
            ep(add64(14, 14, '114688'))
    assert not wdq
    stamp(b, 12)
    NLATE = 0

    b.label('K2_P2')
    RS, GBR = 240, 248
    b('s_lshl_b32 s45, s37, 6')
    b('s_lshl_b32 s12, s39, 5')
    b('s_add_u32 s45, s45, s12')
    b('s_lshl_b32 s12, s43, 4')
    b('s_add_u32 s45, s45, s12')
    b('s_lshl_b32 s46, s38, 6')
    b('s_lshl_b32 s12, s42, 5')
    b('s_add_u32 s46, s46, s12')
    b('v_lshrrev_b32 v6, 5, v1')
    b('v_and_b32 v7, 31, v1')
    b('s_lshl_b32 s12, s45, 2')
    b('s_add_u32 s12, s12, %s' % hex(WS_GB))
    b(add64(14, 4, 's12'))
    b('v_lshlrev_b32 v8, 4, v6')
    b('global_load_dwordx4 %s, v8, s[14:15]' % vr(GBR, 4))
    b('global_load_dwordx4 %s, v8, s[14:15] offset:32' % vr(GBR + 4, 4))
    b('v_add_lshl_u32 v9, v7, s46, 1')
    b('v_lshl_add_u32 v9, v6, 10, v9')
    b('s_sub_u32 s12, s37, s48')
    b('s_and_b32 s12, s12, 7')
    b('s_lshl_b32 s12, s12, 6')
    b('s_and_b32 s13, s45, 63')
    b('s_add_u32 s12, s12, s13')
    b('s_lshl_b32 s12, s12, 8')
    b('v_add_u32 v9, s12, v9')
    for q in range(2):
        for i in range(4):
            b('v_xor_b32 v%d, %d, v9' % (10 + (i & 1), 64 * i + 32 * q))
            b('ds_read_u16 v%d, v%d offset:%d' % (RS + 4 * q + i, 10 + (i & 1), 2048 * q + 256 * i))
    b('s_lshl_b32 s12, s8, 7')
    b('s_add_u32 s12, s12, s46')
    b('s_lshl_b32 s12, s12, 10')
    b('s_lshl_b32 s13, s45, 1')
    b('s_add_u32 s12, s12, s13')
    b(add64(50, 50, 's12'))
    b('v_lshl_add_u32 v15, v7, 10, v8')
    b('s_lshl_b32 s12, s8, 1')
    b('s_add_u32 s12, s12, s38')
    b('s_mul_i32 s12, s12, %d' % (2 * 114688))
    b('s_mul_i32 s13, s33, %d' % (14 * 1024))
    b('s_add_u32 s12, s12, s13')
    b('s_add_u32 s12, s12, %s' % hex(WS_HF))
    srd(b, 20, 4, 's12', 114688 + 14 * 1024)
    b('s_mul_i32 s12, s42, 114688')
    b('v_add_u32 v13, s12, v2')
    b('s_sub_u32 s12, 114688, s12')
    b('v_add_u32 v14, s12, v2')
    b('s_waitcnt vmcnt(%d) lgkmcnt(0)' % (NLATE + 2))
    b('s_cmp_lg_u32 s33, 7')
    b('s_barrier')
    b('s_cbranch_scc1 K2_GO2')
    b('s_lshl_b32 s12, s8, 11')
    b('s_add_u32 s12, s12, %s' % hex(WS_FLG))
    b(add64(28, 4, 's12'))
    b('s_lshl_b32 s12, s30, 7')
    b('v_mov_b32 v4, s12')
    b('v_mov_b32 v5, 1')
    b('global_store_dword v4, v5, s[28:29] sc1')
    b('v_and_b32 v4, 15, v1')
    b('v_lshlrev_b32 v4, 7, v4')
    b('s_mov_b32 s36, %d' % SPIN)
    b.label('K2_POLL2')
    b('global_load_dword v16, v4, s[28:29] sc1')
    b('s_waitcnt vmcnt(0)')
    b('v_cmp_ne_u32 vcc, 1, v16')
    b('s_cmp_eq_u64 vcc, 0')
    b('s_cbranch_scc1 K2_GO2')
    b('s_sleep %d' % opt('SLP', 1))
    b('s_sub_u32 s36, s36, 1')
    b('s_cmp_lg_u32 s36, 0')
    b('s_cbranch_scc1 K2_POLL2')
    b.label('K2_GO2')
    b('s_barrier')
    stamp(b, 13)
    vm = VM(b)

    def hload(j):
        f = XB + 8 * (j % HD)
        r = []
        r += ['s_add_u32 s44, s49, %d' % (1024 * j), 's_sub_u32 s47, s44, 14336', 's_cselect_b32 s44, s44, s47']
        for h in range(2):
            r.append(vm.op('buffer_load_dwordx4 %s, v%d, s[20:23], s44 offen sc1' % (vr(f + 4 * h, 4), 13 + h), 'h%d' % j))
        return r
    for j in range(HD):
        E(b, hload(j))
    for x in range(1, 8):
        b('s_xor_b32 s12, s33, %d' % x)
        b('s_mul_i32 s12, s12, %d' % (7 * 2048))
        b('s_add_u32 s12, s12, %d' % (2048 * (x - 1)))
        b('v_add_u32 v%d, s12, v2' % (3 + x))
    b('s_mul_i32 s12, s33, %d' % (7 * 2048))
    b('v_add_u32 v3, s12, v2')
    for k in range(8):
        b('v_lshlrev_b32 v%d, 16, v%d' % (RS + k, RS + k))
    for j in range(14):
        f = XB + 8 * (j % HD)
        b(vm.wait('h%d' % j))
        for sl in range(4):
            a = vr(ACC + 16 * sl, 16)
            b('v_mfma_f32_32x32x16_bf16 %s, %s, %s, %s' % (a, vr(W + 8 * j + 4 * (sl & 1), 4), vr(f + 4 * (sl >> 1), 4), a if j else '0'))
        if j + HD < 14:
            E(b, hload(j + HD))
    stamp(b, 14)
    for x in (1, 2, 3, 5, 6, 7, 4):
        r = ACC + 16 * (x & 3) + 8 * (x >> 2)
        b('ds_write_b128 v%d, %s' % (3 + x, vr(r, 4)))
        b('ds_write_b128 v%d, %s offset:1024' % (3 + x, vr(r + 4, 4)))
    for k in range(0, 8, 2):
        b(pk('fma', RS + k, [('p', ACC + k), ('p', GBR + k), ('p', RS + k)]))
    b('s_waitcnt lgkmcnt(0)')
    b('s_barrier')
    for x in range(7):
        for h in range(2):
            b('ds_read_b128 %s, v3 offset:%d' % (vr(ACC + 8 * x + 4 * h, 4), 2048 * x + 1024 * h))
    b('s_waitcnt lgkmcnt(6)')
    for k in range(0, 8, 2):
        b(pk('add', ACC + k, [('p', ACC + k), ('p', ACC + 8 + k)]))
        b(pk('add', ACC + 16 + k, [('p', ACC + 16 + k), ('p', ACC + 24 + k)]))
    b('s_waitcnt lgkmcnt(2)')
    for k in range(0, 8, 2):
        b(pk('add', ACC + k, [('p', ACC + k), ('p', ACC + 16 + k)]))
        b(pk('add', ACC + 32 + k, [('p', ACC + 32 + k), ('p', ACC + 40 + k)]))
    b('s_waitcnt lgkmcnt(0)')
    for k in range(0, 8, 2):
        b(pk('add', ACC + k, [('p', ACC + k), ('p', ACC + 48 + k)]))
    for k in range(0, 8, 2):
        b(pk('add', ACC + k, [('p', ACC + k), ('p', ACC + 32 + k)]))
    for k in range(0, 8, 2):
        b(pk('fma', RS + k, [('p', ACC + k), ('p', GBR + k), ('p', RS + k)]))
    for k in range(4):
        b('v_cvt_pk_bf16_f32 v%d, v%d, v%d' % (ACC + k, RS + 2 * k, RS + 2 * k + 1))
    b('v_permlane32_swap_b32 v%d, v%d' % (ACC, ACC + 2))
    b('v_permlane32_swap_b32 v%d, v%d' % (ACC + 1, ACC + 3))
    b('global_store_dwordx4 v15, %s, s[50:51] %s' % (vr(ACC, 4), ST_OUT))
    stamp_end(b, 2)
    b('s_endpgm')

    b.label('K2_AUX')
    srd(b, 16, 4, 's10', 131072)
    vm = VM(b)
    issue = make_issue(vm, False)
    for t in PLAN[-2]:
        E(b, issue(t))
    b('s_barrier')
    b('s_setprio 3')
    for t in PLAN[-1]:
        E(b, issue(t))
    b('s_lshr_b32 s12, s30, 1')
    b('s_lshl_b32 s12, s12, 5')
    b('v_lshrrev_b32 v20, 1, v1')
    b('v_and_b32 v21, 3, v20')
    b('v_lshlrev_b32 v21, 6, v21')
    b('v_bfe_u32 v22, v20, 3, 1')
    b('v_lshl_add_u32 v21, v22, 5, v21')
    b('v_xor_b32 v21, s12, v21')
    b('v_lshl_add_u32 v21, v20, 8, v21')
    b('v_and_b32 v22, 1, v1')
    b('v_lshl_add_u32 v21, v22, 4, v21')
    b('s_and_b32 s13, s30, 1')
    b('s_lshl_b32 s31, s13, 16')
    b('v_mov_b32 v107, %d' % FLAG)
    b('v_pk_mov_b32 v[108:109], 0, 0')
    b('ds_write_b64 v107, v[108:109]')
    b('s_lshl_b32 s12, s9, 7')
    b('s_add_u32 s12, s12, %s' % hex(WS_CB))
    b(add64(14, 4, 's12'))
    b('v_min_u32 v23, 55, v1')
    b('v_lshlrev_b32 v27, 4, v23')
    b('v_lshlrev_b32 v104, 5, v23')
    b('v_add_u32 v104, %d, v104' % CBL)
    b('v_lshlrev_b32 v105, 5, v1')
    b('v_add_u32 v105, %d, v105' % ST)
    b('v_mov_b32 v28, v21')
    b('v_lshrrev_b32 v20, 4, v1')
    b('v_bfe_u32 v21, v1, 2, 2')
    b('v_and_b32 v22, 3, v1')
    b('v_cmp_eq_u32 s[46:47], v20, v21')
    b('v_cmp_eq_u32 s[40:41], 1, v22')
    b('v_cmp_eq_u32 s[42:43], 2, v22')
    b('v_cmp_eq_u32 s[44:45], 3, v22')
    b('v_lshl_add_u32 v24, v20, 3, v21')
    b('v_lshlrev_b32 v24, 5, v24')
    b('v_lshl_add_u32 v24, v22, 3, v24')
    b('v_add_u32 v24, %d, v24' % SCR)
    for i in range(4):
        b('v_mov_b32 v%d, 0x3f803f80' % (112 + i))
    b('s_lshl_b32 s12, s8, 11')
    b('s_add_u32 s12, s12, %s' % hex(WS_SST))
    b(add64(28, 4, 's12'))
    b('s_lshl_b32 s13, s13, 10')
    b('s_lshr_b32 s12, s30, 1')
    b('s_lshl_b32 s12, s12, 7')
    b('s_add_u32 s12, s12, s13')
    b('v_and_b32 v25, 15, v1')
    b('v_lshl_add_u32 v25, v25, 3, s12')
    b('v_lshlrev_b32 v26, 3, v1')
    stamp(b, 1)
    b(vm.wait('x0') + ' lgkmcnt(0)')
    b('s_barrier')
    for i in range(8):
        b('s_mov_b32 m0, %d' % (SCR + 1024 * i))
        b(vm.op('buffer_load_dwordx4 v28, s[16:19], s31 offen lds', 'sh'))
        b('s_add_u32 s31, s31, 8192')
    for q in range(4):
        for w in range(2):
            if q or w:
                b(add64(14, 14, str(3584 * 4)))
            b(vm.op('global_load_dwordx4 %s, v27, s[14:15]' % vr(64 + 16 * w + 4 * q, 4), 'cb'))

    def share():
        b(vm.wait('sh'))
        for kk in range(8):
            for e in range(2):
                b('ds_read_b64_tr_b16 %s, v24 offset:%d' % (vr(32 + 4 * kk + 2 * e, 2), 1024 * kk + 128 * e))
        for kk in range(8):
            b('s_waitcnt lgkmcnt(%d)' % (14 - 2 * kk))
            f = vr(32 + 4 * kk, 4)
            b('v_mfma_f32_16x16x32_bf16 v[120:123], %s, %s, %s' % (f, f, 'v[120:123]' if kk else '0'))
            b('v_mfma_f32_16x16x32_bf16 v[116:119], v[112:115], %s, %s' % (f, 'v[116:119]' if kk else '0'))
        b('v_cndmask_b32 v117, v120, v121, s[40:41]')
        b('v_cndmask_b32 v117, v117, v122, s[42:43]')
        b('v_cndmask_b32 v117, v117, v123, s[44:45]')
        b('v_and_b32 v117, 0x7fffffff, v117')
        b('s_mov_b64 exec, s[46:47]')
        b(vm.op('global_store_dwordx2 v25, v[116:117], s[28:29] sc1', 'pub'))
        b('s_mov_b64 exec, -1')
        stamp(b, 2)

    def cbprep():
        b(vm.wait('cb'))
        for w in range(2):
            p = 64 + 16 * w
            for k in (0, 2):
                b(pk('add', p + k, [('p', p + k), ('p', p + 4 + k)]))
                b(pk('add', p + 8 + k, [('p', p + 8 + k), ('p', p + 12 + k)]))
            for k in (0, 2):
                b(pk('add', p + k, [('p', p + k), ('p', p + 8 + k)]))
        for j in range(4):
            for w in range(2):
                x = 64 + 16 * w + j
                t = 96 + 2 * j + w
                E(b, ['v_cvt_pk_bf16_f32 v%d, v%d, v%d' % (t, x, x), 'v_and_b32 v%d, 0xffff0000, v%d' % (x + 4, t),
                      'v_sub_f32 v%d, v%d, v%d' % (x, x, x + 4), 'v_cvt_pk_bf16_f32 v%d, v%d, v%d' % (t, x + 4, x)])
        b('ds_write_b128 v104, v[96:99]')
        b('ds_write_b128 v104, v[100:103] offset:16')
        phase2_setup()

    def gather():
        K0c = -2.0 * math.sqrt(2.0 / math.pi) * LOG2E
        b('s_mov_b32 s36, %d' % SPIN)
        b('s_mov_b32 s12, %s' % fhex(1.0 / 512))
        b('s_mov_b32 s14, %s' % fhex(1e-5))
        b.label('K2_POLLS')
        for i in range(4):
            b('global_load_dwordx2 %s, v26, s[28:29] offset:%d sc1' % (vr(64 + 2 * i, 2), 512 * i))
        b('s_waitcnt vmcnt(0)')
        b('v_or_b32 v72, v65, v67')
        b('v_or3_b32 v72, v72, v69, v71')
        b('v_cmp_gt_i32 vcc, 0, v72')
        b('s_cmp_eq_u64 vcc, 0')
        b('s_cbranch_scc1 K2_GOS')
        b('s_sleep 2')
        b('s_sub_u32 s36, s36, 1')
        b('s_cmp_lg_u32 s36, 0')
        b('s_cbranch_scc1 K2_POLLS')
        b.label('K2_GOS')
        b('v_add_f32 v82, v64, v68')
        b('v_add_f32 v83, v66, v70')
        b('v_add_f32 v80, v65, v69')
        b('v_add_f32 v81, v67, v71')
        b(pk('mul', 82, [('p', 82), ('sl', 12)]))
        b(pk('mul', 80, [('p', 80), ('sl', 12)]))
        b(pk('fma', 80, [('p', 82), ('p', 82), ('p', 80)], neg_lo=[1, 0, 0], neg_hi=[1, 0, 0]))
        B0, B1 = 88, 96
        b('v_cvt_pk_bf16_f32 v%d, -v82, -v82' % B0)
        b('v_cvt_pk_bf16_f32 v%d, -v83, -v83' % B1)
        b('v_max_f32 v80, 0, v80')
        b('v_max_f32 v81, 0, v81')
        E(b, rnd_pair(80, 84))
        b(pk('add', 80, [('p', 80), ('sl', 14)]))
        E(b, rnd_pair(80, 84))
        b('v_sqrt_f32 v80, v80')
        b('v_sqrt_f32 v81, v81')
        b('v_pk_mov_b32 %s, 0, 0' % vr(B0 + 2, 2))
        b('v_pk_mov_b32 %s, 0, 0' % vr(B1 + 2, 2))
        b('v_cvt_pk_bf16_f32 v%d, v80, v80' % (B0 + 1))
        b('v_cvt_pk_bf16_f32 v%d, v81, v81' % (B1 + 1))
        b('v_lshlrev_b32 v80, 16, v%d' % (B0 + 1))
        b('v_lshlrev_b32 v81, 16, v%d' % (B1 + 1))
        b('v_rcp_f32 v82, v80')
        b('v_rcp_f32 v83, v81')
        b('ds_write_b128 v105, %s' % vr(B0, 4))
        b('ds_write_b128 v105, %s offset:2048' % vr(B1, 4))
        b('v_mul_f32 v%d, v80, v80' % (B0 + 6))
        b('v_mul_f32 v%d, v81, v81' % (B1 + 6))
        b('v_mul_f32 v%d, %s, v82' % (B0 + 4, fhex(K0c)))
        b('v_mul_f32 v%d, %s, v83' % (B1 + 4, fhex(K0c)))
        b(pk('mul', 82, [('p', 82), ('p', 82)]))
        b('v_mul_f32 v82, %s, v82' % fhex(0.044715))
        b('v_mul_f32 v83, %s, v83' % fhex(0.044715))
        b('v_mul_f32 v%d, v82, v%d' % (B0 + 5, B0 + 4))
        b('v_mul_f32 v%d, v83, v%d' % (B1 + 5, B1 + 4))
        b('v_mov_b32 v108, 1')
        b('ds_write_b128 v105, %s offset:16' % vr(B0 + 4, 4))
        b('ds_write_b128 v105, %s offset:2064' % vr(B1 + 4, 4))
        b('ds_write_b32 v107, v108')
        stamp(b, 11)
    for c in range(8):
        for t in PLAN.get(c, []):
            E(b, issue(t))
        if c == 1:
            share()
        if c == 2:
            cbprep()
        if c + 1 in BARS:
            if c == GATHER:
                gather()
            else:
                b(vm.wait(*BARS[c + 1]))
            stamp(b, 3 + c)
            b('s_barrier')
    if GATHER + 1 not in BARS:
        gather()
    for i in range(28):
        E(b, wdload(vm, i))
    b('s_setprio 0')
    stamp(b, 12)
    b('s_waitcnt vmcnt(0)')
    b('s_branch K2_P2')
    b.label('K2_END')
    b('s_endpgm')
    return b.text(), 256, NSG
```

```python
import sys
from common import *
import g0, g1, g23


def build(kernels, data):
    head = open('cdna_kernels/%s.s.ref' % NAME).read().split('\n')
    out = [l for l in head if l.startswith(';') and '@launch' not in l and 'Override launch' not in l and 'grid=ceil' not in l]
    for name, fn, grid, block, lds in kernels:
        out.append('; @launch kernel=%s grid=(%d,1,1) block=(%d,1,1) lds=%d' % (name, grid, block, lds))
    out.append('.amdgcn_target "amdgcn-amd-amdhsa--gfx950"')
    out.append('.text')
    desc = []
    for name, fn, grid, block, lds in kernels:
        text, nv, ns = fn()
        out.append('.globl %s\n.p2align 8\n.type %s,@function\n%s:' % (name, name, name))
        out.append(text)
        desc.append('.p2align 6\n.amdhsa_kernel %s\n  .amdhsa_next_free_vgpr %d\n  .amdhsa_next_free_sgpr %d\n  .amdhsa_accum_offset %d\n'
                    '  .amdhsa_group_segment_fixed_size 0\n  .amdhsa_kernarg_size 144\n  .amdhsa_user_sgpr_count 2\n'
                    '  .amdhsa_user_sgpr_kernarg_segment_ptr 1\n  .amdhsa_system_sgpr_workgroup_id_x 1\n.end_amdhsa_kernel'
                    % (name, nv, ns, (min(nv, 256) + 3) // 4 * 4))
    out.append('CODE_END:')
    out.append('.section .rodata,"a"')
    out += desc
    out += data
    return '\n'.join(out) + '\n'


if __name__ == '__main__':
    ks = [('prep_kernel', g0.k0, g0.K0_WGS, 256, g0.K0_LDS), ('conv_kernel', g1.k1, g1.K1_WGS, 256, g1.K1_LDS),
          ('gemm1_kernel', g23.k23, g23.K2_WGS, 512, g23.K2_LDS)]
    n = int(sys.argv[2]) if len(sys.argv) > 2 else len(ks)
    open(sys.argv[1], 'w').write(build(ks[:n], [g0.gather_table()]))
```

```python
import math, os, struct
import numpy as np
from asmlib import Builder, vr, sr, fhex

NAME = 'adaLN_cond__ssm_conv_s4__glu_gated_geglu__prompt'

WS_MODP = 0x0
WS_GB = 0x10000
WS_CB = 0x11000
WS_SST = 0x40000
WS_FLG = 0x48000
WS_WDF = 0x58000
WS_LST = 0x50000
WS_XT = 0x300000
WS_KC = 0x500000
KCS = 4352
WS_X1T = 0xA00000
WS_WF = 0xC00000
WS_WD = 0x1000000
WS_HF = 0x1200000
WS_STAMP = 0x2000000
if os.environ.get('LAY') == '1':
    WS_XT, WS_KC, WS_HF, WS_X1T, WS_WF, WS_WD = 0x100000, 0x300000, 0x100000, 0x800000, 0xA00000, 0xD80000
if os.environ.get('LAY') == '2':
    WS_XT, WS_KC, WS_X1T, WS_WF, WS_WD, WS_HF = 0x60000, 0x260000, 0x480000, 0x680000, 0xA00000, 0xBC0000

LOG2E = 1.4426950408889634
KA = dict(u=0, are=8, aim=16, bre=24, bim=32, cre=40, cim=48, ldt=56, dsk=64, bx=72, wg=80, wu=88, wd=96, c=104, wm=112,
          out=120, dbg=128, ws=136)
STAMPS = bool(os.environ.get('STAMPS'))
NSG = 100 if STAMPS else 56


def opt(name, default):
    v = os.environ.get(name)
    if v is None:
        return default
    return type(default)(v) if not isinstance(default, bool) else v not in ('0', '')


def pk(op, d, srcs, neg_lo=None, neg_hi=None):
    cross = lambda s_: s_[0] == 'x' or (s_[0] == 'b' and s_[1] & 1)
    srcs = list(srcs)
    if cross(srcs[1]):
        srcs[0], srcs[1] = srcs[1], srcs[0]
        for n_ in (neg_lo, neg_hi):
            if n_:
                n_[0], n_[1] = n_[1], n_[0]
    assert not any(cross(s_) for s_ in srcs[1:]), (op, d, srcs)
    ops, sl, sh = [], [], []
    for kind, r in srcs:
        if kind == 'p':
            assert r % 2 == 0
            ops.append(vr(r, 2)); sl.append(0); sh.append(1)
        elif kind == 'x':
            ops.append(vr(r, 2)); sl.append(1); sh.append(0)
        elif kind == 'b':
            ops.append(vr(r & ~1, 2)); sl.append(r & 1); sh.append(r & 1)
        elif kind == 'sl':
            ops.append(sr(r, 2)); sl.append(0); sh.append(0)
        elif kind == 'sh':
            ops.append(sr(r, 2)); sl.append(1); sh.append(1)
        else:
            ops.append(r); sl.append(0); sh.append(0)
    assert d % 2 == 0
    s = 'v_pk_%s_f32 %s, %s op_sel:[%s] op_sel_hi:[%s]' % (op, vr(d, 2), ', '.join(ops), ','.join(map(str, sl)), ','.join(map(str, sh)))
    if neg_lo:
        s += ' neg_lo:[%s]' % ','.join(map(str, neg_lo))
    if neg_hi:
        s += ' neg_hi:[%s]' % ','.join(map(str, neg_hi))
    return s


def cmul(d, a, b, bim):
    assert bim % 2 == 0
    return [pk('mul', d, [('p', a), ('b', b)]),
            pk('fma', d, [('x', a), ('b', bim), ('p', d)], neg_lo=[1, 0, 0])]


def weave(*seqs):
    out = []
    seqs = [list(s) for s in seqs]
    while any(seqs):
        for s in seqs:
            if s:
                out.append(s.pop(0))
    return out


def spread(main, fill, per):
    out = []
    fill = list(fill)
    for m in main:
        out.append(m)
        out += fill[:per]
        fill = fill[per:]
    return out + fill


def row_reduce(op, regs):
    out = []
    for m in ('row_ror:8', 'row_ror:4', 'row_ror:2', 'row_ror:1'):
        for r in regs:
            out.append('v_%s_f32_dpp v%d, v%d, v%d %s row_mask:0xf bank_mask:0xf' % (op, r, r, r, m))
    return out


def wave_reduce(op, regs):
    out = row_reduce(op, regs)
    for m, rm in (('row_bcast:15', '0xa'), ('row_bcast:31', '0xc')):
        for r in regs:
            out.append('v_%s_f32_dpp v%d, v%d, v%d %s row_mask:%s bank_mask:0xf' % (op, r, r, r, m, rm))
    return out


def rnd_bf16(r):
    return ['v_cvt_pk_bf16_f32 v%d, v%d, v%d' % (r, r, r), 'v_lshlrev_b32 v%d, 16, v%d' % (r, r)]


def rnd_pair(a, t):
    return ['v_cvt_pk_bf16_f32 v%d, v%d, v%d' % (t, a, a + 1),
            'v_lshlrev_b32 v%d, 16, v%d' % (a, t),
            'v_and_b32 v%d, 0xffff0000, v%d' % (a + 1, t)]


def unpack(dst, src):
    return ['v_lshlrev_b32 v%d, 16, v%d' % (dst, src), 'v_and_b32 v%d, 0xffff0000, v%d' % (dst + 1, src)]


def add64(d, b, off):
    return 's_add_u32 s%d, s%d, %s\ns_addc_u32 s%d, s%d, 0' % (d, b, off, d + 1, b + 1)


def srd(b, d, base, off, nbytes):
    b('s_add_u32 s%d, s%d, %s' % (d, base, off))
    b('s_addc_u32 s%d, s%d, 0' % (d + 1, base + 1))
    b('s_mov_b32 s%d, %d' % (d + 2, nbytes))
    b('s_mov_b32 s%d, 0x20000' % (d + 3))


def E(b, seq):
    for s in seq:
        b(s)


class VM:
    def __init__(self, b):
        self.b = b
        self.tags = []

    def op(self, text, tag):
        self.tags.append(tag)
        return text

    def cnt(self, *need):
        last = max(i for i, t in enumerate(self.tags) if t in need)
        n = len(self.tags) - 1 - last
        n = min(n, 62)
        return n

    def wait(self, *need):
        return 's_waitcnt vmcnt(%d)' % self.cnt(*need)


_dbgn = 0
DBGSEL = {0: [(100, 0, [(0, 0), (1, 2), (2, 15)]), (300, 0, [(3, 15)]), (500, 0, [(4, 15)])],
          1: [(100, 0, [(5, 0), (6, 4), (7, 15)]), (356, 0, [(8, 2), (9, 15)])],
          2: [(100, 5, [(10, 0), (11, 2), (12, 11), (13, 12), (14, 13), (15, 15)])]}


def stamp(b, i):
    if STAMPS:
        b('%s s[%d:%d]' % ('s_memtime' if os.environ.get('STAMP_CLK') else 's_memrealtime', 64 + 2 * i, 65 + 2 * i))


def stamp_init(b):
    if STAMPS:
        for i in range(32):
            b('s_mov_b32 s%d, 0' % (64 + i))
        b('v_lshrrev_b32 v1, 6, v0')
        b('s_nop 1')
        b('v_readfirstlane_b32 s62, v1')
        stamp(b, 0)


def stamp_end(b, kern):
    if STAMPS:
        b('s_waitcnt vmcnt(0)')
        stamp(b, 15)
        b('s_lshl_b32 s60, s2, 3')
        b('s_add_u32 s60, s60, s62')
        b('s_lshl_b32 s60, s60, 7')
        b('s_add_u32 s60, s60, %d' % (WS_STAMP + kern * 1024 * 8 * 128))
        b('s_add_u32 s60, s4, s60')
        b('s_addc_u32 s61, s5, 0')
        b('s_mov_b64 exec, 1')
        b('v_mov_b32 v0, 0')
        b('s_waitcnt lgkmcnt(0)')
        if os.environ.get('DBG') and kern == 2:
            b('s_cmp_lg_u32 s2, 100')
            b('s_cbranch_scc1 DBGX')
            b('s_cmp_lg_u32 s62, 5')
            b('s_cbranch_scc1 DBGX')
            b('s_load_dwordx2 s[58:59], s[0:1], 128')
            b('s_waitcnt lgkmcnt(0)')
            off = int(os.environ['DBG'])
            b('s_sub_u32 s58, s58, %d' % off)
            b('s_subb_u32 s59, s59, 0')
            for kk in range(3):
                for wg, wv, items in DBGSEL[kk]:
                    for slot, st in items:
                        if kk == 2:
                            b('v_mov_b32 v4, s%d' % (64 + 2 * st))
                        else:
                            b('v_mov_b32 v5, %d' % (WS_STAMP + kk * 1024 * 8 * 128 + (wg * 8 + wv) * 128 + 8 * st))
                            b('global_load_dword v4, v5, s[4:5]')
                            b('s_waitcnt vmcnt(0)')
                        b('global_store_dword v0, v4, s[58:59] offset:%d' % (4 * slot))
            b.label('DBGX')
        for i in range(32):
            b('v_mov_b32 v%d, s%d' % (4 + i, 64 + i))
        for i in range(8):
            b('global_store_dwordx4 v0, %s, s[60:61] offset:%d' % (vr(4 + 4 * i, 4), 16 * i))


def bf16_round_int(l):
    if l < 0:
        return l
    u = struct.unpack('<I', struct.pack('<f', float(l)))[0]
    u = ((u + 0x7FFF + ((u >> 16) & 1)) >> 16) << 16
    return int(struct.unpack('<f', struct.pack('<I', u))[0])


CODE_PF = opt('CODE_PF', True)


def code_prefetch(b, tag, first, vidx, vt, st):
    b('s_getpc_b64 s[%d:%d]' % (st, st + 1))
    b.label('PF_%s' % tag)
    b('s_add_u32 s%d, s%d, %s-PF_%s' % (st, st, first, tag))
    b('s_addc_u32 s%d, s%d, 0' % (st + 1, st + 1))
    b('v_lshlrev_b32 v%d, 7, v%d' % (vt, vidx))
    b('v_min_u32 v%d, CODE_END-%s-4, v%d' % (vt, first, vt))
    b('global_load_dword v%d, v%d, s[%d:%d]' % (vt, vt, st, st + 1))
```

```python
from common import *

K0_KGEN, K0_LN, K0_MOD = 256, 128, 192
K0_WGS = K0_KGEN + K0_LN + K0_MOD
TW = 8768
K0_LDS = 4 * TW
ST_EARLY = opt('ST_EARLY', '')
ST_KC = opt('ST_KC', '')
WPF = opt('WPF', 0)


def gather_table():
    rows = []
    for j4 in range(4):
        for tau in range(128):
            e = []
            for j in range(4 * j4, 4 * j4 + 4):
                v = bf16_round_int(2047 - 8 * tau - (j & 7) - 1024 * (j >> 3))
                e.append(4 * (v + (v >> 4)))
            rows.append('.long ' + ','.join(map(str, e)))
    return '.p2align 8\nK0_TAB:\n' + '\n'.join(rows)


def transpose_write_addr(b, va, lane, wave_v, t):
    b('v_lshlrev_b32 v%d, 8, v%d' % (t, lane))
    b('v_lshl_add_u32 v%d, v%d, 3, v%d' % (t, wave_v, t))
    b('v_and_b32 v%d, 7, v%d' % (va, lane))
    b('v_lshlrev_b32 v%d, 4, v%d' % (va, va))
    b('v_xor_b32 v%d, v%d, v%d' % (va, va, t))
    for j in range(1, 4):
        b('v_xor_b32 v%d, %d, v%d' % (va + j, 32 * j, va))


def perm_writes(WA, off):
    xs = []
    for j in range(8):
        sel = 's15' if j & 1 else 's14'
        t = 84 + 2 * (j & 1)
        xs.append('v_perm_b32 v%d, v%d, v%d, %s' % (t, 8 + (j >> 1), 4 + (j >> 1), sel))
        xs.append('v_perm_b32 v%d, v%d, v%d, %s' % (t + 1, 16 + (j >> 1), 12 + (j >> 1), sel))
        xs.append('ds_write_b64 v%d, %s offset:%d' % (WA + (j & 3), vr(t, 2), off + 128 * (j >> 2)))
    return xs


def k0():
    b = Builder()
    b('s_cmp_ge_u32 s2, %d' % K0_WGS)
    b('s_cbranch_scc1 K0_END')
    b('s_load_dwordx2 s[4:5], s[0:1], %d' % KA['ws'])
    stamp_init(b)
    b('v_and_b32 v1, 63, v0')
    b('s_cmp_ge_u32 s2, %d' % K0_KGEN)
    b('s_cbranch_scc1 K0_NOTK')
    b('s_setprio 3')
    if opt('SELF_PF', True):
        b('s_cmp_ge_u32 s2, 8')
        b('s_cbranch_scc1 K0_NSP')
        code_prefetch(b, 's', 'K0_START', 0, 162, 30)
        b.label('K0_NSP')
    b.label('K0_START')
    b('s_load_dwordx4 s[8:11], s[0:1], %d' % KA['are'])
    b('s_load_dwordx4 s[12:15], s[0:1], %d' % KA['bre'])
    b('s_load_dwordx4 s[16:19], s[0:1], %d' % KA['cre'])
    b('s_load_dwordx2 s[20:21], s[0:1], %d' % KA['ldt'])
    b('s_getpc_b64 s[30:31]')
    b('s_add_u32 s30, s30, K0_TAB@rel32@lo+4')
    b('s_addc_u32 s31, s31, K0_TAB@rel32@hi+12')
    b('s_and_b32 s6, s2, 7\ns_lshl_b32 s6, s6, 5\ns_lshr_b32 s7, s2, 3\ns_add_u32 s6, s6, s7\ns_lshl_b32 s6, s6, 1')
    b('s_lshl_b32 s7, s6, 8')
    b('v_and_b32 v160, 127, v0')
    b('v_lshlrev_b32 v161, 4, v160')
    G = 124
    b('v_lshl_add_u32 v2, v0, 1, s7')
    b('v_lshrrev_b32 v3, 7, v0')
    b('v_add_lshl_u32 v11, v3, s6, 1')
    b('v_lshrrev_b32 v87, 6, v0')
    b('s_waitcnt lgkmcnt(0)')
    b('global_load_ushort v10, v11, s[20:21]')
    for i in range(6):
        b('global_load_ushort v%d, v2, s[%d:%d]' % (4 + i, 8 + 2 * i, 9 + 2 * i))
    b('v_readfirstlane_b32 s33, v87')
    b('s_add_u32 s34, s30, 4096\ns_addc_u32 s35, s31, 0')
    for i in range(4):
        b('global_load_dwordx4 %s, v161, s[%d:%d] offset:%d' % (vr(G + 4 * i, 4), 30 + 4 * (i >> 1), 31 + 4 * (i >> 1), 2048 * (i & 1)))
    b('s_mul_i32 s36, s33, %d' % TW)
    WB, RB = 164, 75
    b('v_lshl_add_u32 v%d, v1, 2, s36' % WB)
    for k in range(1, 4):
        b('v_add_u32 v%d, %d, v%d' % (WB + k, 1088 * k, WB))
    b('v_and_b32 v85, 15, v1')
    b('v_lshrrev_b32 v86, 4, v1')
    b('v_mul_u32_u24 v88, 272, v85')
    b('v_lshl_add_u32 v88, v86, 4, v88')
    b('v_add_u32 v%d, s36, v88' % RB)
    b('v_mul_u32_u24 v85, 68, v85')
    b('v_add_u32 v85, s36, v85')
    b('v_lshl_add_u32 v120, v86, 4, v85')
    b('v_mul_u32_u24 v87, 1088, v86')
    b('v_lshlrev_b32 v88, 3, v86')
    b('v_add_u32 v88, 1088, v88')
    b('v_max_u32 v87, v87, v88')
    b('v_add_u32 v121, v87, v85')
    b('v_lshrrev_b32 v87, 1, v86')
    b('v_mul_u32_u24 v87, 4352, v87')
    b('v_and_b32 v88, 1, v86')
    b('v_lshl_add_u32 v87, v88, 5, v87')
    b('v_add_u32 v122, v87, v85')
    b('v_add_u32 v2, s6, v3')
    b('v_mul_u32_u24 v3, %d, v2' % KCS)
    b('v_add_u32 v2, v161, v3')
    b(add64(26, 4, hex(WS_KC)))
    stamp(b, 1)
    b('s_waitcnt vmcnt(10)')
    b('v_lshlrev_b32 v10, 16, v10')
    b('v_mul_f32 v10, %s, v10' % fhex(LOG2E))
    b('v_exp_f32 v10, v10')
    b('s_waitcnt vmcnt(4)')
    stamp(b, 2)
    if WPF:
        b('s_load_dwordx4 s[40:43], s[0:1], %d' % KA['wg'])
        b('s_load_dwordx2 s[44:45], s[0:1], %d' % KA['wd'])
    for i in range(4, 10):
        b('v_lshlrev_b32 v%d, 16, v%d' % (i, i))
    E(b, rnd_bf16(10))
    b(pk('mul', 12, [('p', 4), ('b', 10)]))
    b(pk('mul', 6, [('p', 6), ('b', 10)]))
    b('v_mul_f32 v12, %s, v12' % fhex(LOG2E))
    b('v_mul_f32 v13, %s, v13' % fhex(1.0 / (2 * math.pi)))
    b('v_mov_b32 v4, v7')
    E(b, cmul(14, 8, 6, 4))

    def zpow(d, p, ta, tb):
        s = []
        if p == 1:
            s += ['v_exp_f32 v%d, v12' % ta, 'v_fract_f32 v%d, v13' % tb]
        else:
            s += ['v_mul_f32 v%d, %s, v12' % (ta, fhex(float(p))), 'v_mul_f32 v%d, %s, v13' % (tb, fhex(float(p))),
                  'v_exp_f32 v%d, v%d' % (ta, ta), 'v_fract_f32 v%d, v%d' % (tb, tb)]
        s += ['v_cos_f32 v%d, v%d' % (d, tb), 'v_sin_f32 v%d, v%d' % (d + 1, tb)]
        return s, [pk('mul', d, [('p', d), ('b', ta)])]
    Z1, Z16, ZB, US, VA, VB = 16, 18, 20, 36, 68, 70
    mx = ['v_max_f32 v72, abs(v14), abs(v15)'] + wave_reduce('max', [72]) + ['v_frexp_exp_i32_f32 v72, v72', 'v_readlane_b32 s22, v72, 63']
    a1, f1 = zpow(Z1, 1, 6, 7)
    a2, f2 = zpow(Z16, 16, 4, 5)
    a3, f3 = zpow(ZB, 256, 8, 9)
    zs = a1 + a2 + f1 + a3 + f2 + ['v_mov_b32 v%d, 0x43800000' % US] + f3 + ['v_mov_b32 v%d, 0' % (US + 1)]
    if WPF:
        b('s_mul_i32 s46, s2, 7168')
        b('v_lshlrev_b32 v123, 4, v0')
        b('v_min_u32 v74, %d, v123' % (7168 - 4096 - 16))
        b('s_waitcnt lgkmcnt(0)')
        for m in range(WPF):
            b(add64(40 + 2 * m, 40 + 2 * m, 's46'))
            b('global_load_dwordx4 v[160:163], v123, s[%d:%d]' % (40 + 2 * m, 41 + 2 * m))
            b(add64(40 + 2 * m, 40 + 2 * m, '4096'))
            b('global_load_dwordx4 v[160:163], v74, s[%d:%d]' % (40 + 2 * m, 41 + 2 * m))
    E(b, spread(mx, zs, 2))
    b('s_sub_i32 s23, 13, s22')
    b('s_sub_i32 s24, s22, 21')
    I1, I16, IZ1, IZ2, IZ3, IU8 = 4, 6, 8, 10, 12, 14
    b(pk('mul', US + 2, [('p', Z1), ('b', US)]))
    b('v_ldexp_f32 v%d, v14, s23' % VA)
    b('v_ldexp_f32 v%d, v15, s23' % (VA + 1))
    b('v_mov_b32 v%d, v%d' % (I16, Z16 + 1))
    b('v_mov_b32 v%d, v%d' % (I1, Z1 + 1))
    b('v_mov_b32 v%d, v%d' % (IZ1, ZB + 1))

    def cvt(src, row, neg=False):
        s = ['v_cvt_pk_f16_f32 v%d, v%d, %sv%d' % (72 + (row & 1), src, '-' if neg else '', src + 1)]
        if row & 1:
            s.append('ds_write2_b32 v%d, v72, v73 offset0:%d offset1:%d' % (WB + (row >> 2), 68 * ((row - 1) & 3), 68 * (row & 3)))
        return s

    def read_frags(d):
        return ['ds_read_b128 %s, v%d offset:%d' % (vr(d + 4 * j, 4), RB, 64 * j) for j in range(4)]
    VF, UF, DA, UF1 = 76, 92, 108, 144

    def mf(tile, uf):
        return ['v_mfma_f32_16x16x32_f16 %s, %s, %s, %s' % (vr(DA + 4 * tile, 4), vr(uf + 4 * j, 4), vr(VF + 4 * j, 4),
                                                         vr(DA + 4 * tile, 4) if j else '0') for j in range(4)]
    cv = []
    cur, nxt = VA, VB
    for i in range(16):
        if i < 15:
            cv += cmul(nxt, cur, Z16, I16)
        cv += cvt(cur, i, True)
        cur, nxt = nxt, cur
    cu = []
    for i in range(2, 16):
        cu += cmul(US + 2 * i, US + 2 * (i - 1), Z1, I1)
    E(b, weave(cv, cu))
    E(b, read_frags(VF))
    r0 = []
    for i in range(16):
        r0 += cvt(US + 2 * i, i)
    cz = []
    for m in range(1, 8):
        cz += cmul(ZB + 2 * m, ZB + 2 * (m - 1), ZB, IZ1)
    cz += ['v_mov_b32 v%d, v%d' % (IZ2, ZB + 3), 'v_mov_b32 v%d, v%d' % (IZ3, ZB + 5), 'v_mov_b32 v%d, v%d' % (IU8, US + 17)]
    E(b, weave(r0, cz))
    E(b, read_frags(UF))
    t1 = []
    for g, (zi, uo) in enumerate(((0, 0), (0, 2), (1, 0), (2, 0))):
        for rho in range(4):
            d = VA if (rho & 1) == 0 else VB
            if rho == 0 and uo == 0:
                t1 += [pk('mul', d, [('p', ZB + 2 * zi), ('b', US)])]
            else:
                t1 += cmul(d, US + 2 * (4 * rho + uo), ZB + 2 * zi, (IZ1, IZ2, IZ3)[zi])
            t1 += cvt(d, 4 * g + rho)
    E(b, t1)
    E(b, read_frags(UF1))
    b('s_waitcnt lgkmcnt(12)')
    m0 = mf(0, UF)
    t2 = []
    for rho in range(4):
        d = VA if (rho & 1) == 0 else VB
        t2 += [pk('mul', d, [('p', ZB + 2 * (3 + rho)), ('b', US)])] + cvt(d, rho)
    for rho in range(4):
        d = VA if (rho & 1) == 0 else VB
        t2 += cmul(d, ZB + 2 * (3 + rho), US + 16, IU8) + cvt(d, 4 + rho)
    t2 += [pk('mul', VA, [('p', ZB + 14), ('b', US)]), 'v_cvt_pk_f16_f32 v72, v%d, v%d' % (VA, VA + 1),
           'ds_write_b32 v%d, v72' % (WB + 2)]
    E(b, spread(m0, t2, 3))
    E(b, read_frags(UF))
    b('s_waitcnt lgkmcnt(9)')
    E(b, mf(1, UF1))
    for rho in range(4):
        b('v_ldexp_f32 v%d, v%d, s24' % (DA + rho, DA + rho))
    b('s_waitcnt lgkmcnt(0)')
    E(b, mf(2, UF))
    stamp(b, 3)
    for rho in range(4):
        b('ds_write_b32 v120, v%d offset:%d' % (DA + rho, 4 * rho))
    for rho in range(4):
        b('v_ldexp_f32 v%d, v%d, s24' % (DA + 4 + rho, DA + 4 + rho))
    for rho in range(4):
        b('ds_write_b32 v121, v%d offset:%d' % (DA + 4 + rho, 16 * rho))
    for rho in range(4):
        b('v_ldexp_f32 v%d, v%d, s24' % (DA + 8 + rho, DA + 8 + rho))
    b('s_mov_b32 exec_hi, 1')
    b('ds_write_b32 v122, v%d offset:4352' % (DA + 8))
    b('s_mov_b32 exec_hi, 0')
    for rho in range(1, 4):
        b('ds_write_b32 v122, v%d offset:%d' % (DA + 8 + rho, 4352 + 1088 * rho))
    b('s_mov_b32 exec_hi, -1')
    b('v_mov_b32 v80, 0')
    b('v_add_u32 v3, 4096, v3')
    b('s_waitcnt vmcnt(%d)' % (2 * WPF))
    b('global_store_dword v3, v80, s[26:27] %s' % ST_KC)
    b('s_cmp_ge_u32 s33, 2')
    b('s_waitcnt lgkmcnt(0)')
    b('s_barrier')
    stamp(b, 4)
    b('s_cbranch_scc1 K0_G1')
    for cc in range(2):
        if cc:
            b.label('K0_G1')
        for j in range(16):
            b('ds_read_b32 v%d, v%d offset:%d' % (36 + j, G + j, (2 * cc + 1) * TW))
            b('ds_read_b32 v%d, v%d offset:%d' % (G + j, G + j, 2 * cc * TW))
        if cc == 0:
            b('s_branch K0_G2')
    b.label('K0_G2')
    for h in range(2):
        b('s_waitcnt lgkmcnt(%d)' % (14 if h == 0 else 0))
        for m in range(4 * h, 4 * h + 4):
            b(pk('add', G + 2 * m, [('p', G + 2 * m), ('p', 36 + 2 * m)]))
        for m in range(4 * h, 4 * h + 4):
            b('v_cvt_pk_bf16_f32 v%d, v%d, v%d' % (56 + m, G + 2 * m, G + 2 * m + 1))
        b('global_store_dwordx4 v2, %s, s[26:27] offset:%d %s' % (vr(56 + 4 * h, 4), 2048 * h, ST_KC))
    stamp_end(b, 0)
    b('s_endpgm')

    b.label('K0_NOTK')
    b('s_cmp_ge_u32 s2, %d' % (K0_KGEN + K0_LN))
    b('s_cbranch_scc1 K0_NOTLN')
    b('s_setprio 2')
    b('s_load_dwordx2 s[8:9], s[0:1], %d' % KA['u'])
    b('s_sub_u32 s6, s2, %d' % K0_KGEN)
    b('s_lshl_b32 s6, s6, 14')
    b('v_lshrrev_b32 v3, 6, v0')
    b('v_lshlrev_b32 v2, 12, v3')
    b('v_lshl_add_u32 v2, v1, 4, v2')
    b('s_waitcnt lgkmcnt(0)')
    b(add64(8, 8, 's6'))
    for i in range(4):
        b('global_load_dwordx4 %s, v2, s[8:9] offset:%d' % (vr(4 + 4 * i, 4), 1024 * i))
    WA = 60
    transpose_write_addr(b, WA, 1, 3, 64)
    b('v_bfe_u32 v64, v0, 4, 3')
    b('v_xor_b32 v64, v64, v0')
    b('v_lshlrev_b32 v64, 4, v64')
    b('v_lshlrev_b32 v65, 4, v0')
    b('v_add_u32 v66, 0x1000, v65')
    b('s_lshr_b32 s7, s6, 8')
    b('s_add_u32 s6, s6, %s' % hex(WS_XT))
    b(add64(10, 4, 's6'))
    b(add64(12, 10, '0x2000'))
    b('s_add_u32 s7, s7, %s' % hex(WS_LST))
    b(add64(16, 4, 's7'))
    b(add64(18, 16, '0x2000'))
    b('s_mov_b32 s14, 0x05040100\ns_mov_b32 s15, 0x07060302')
    b('v_bfe_u32 v67, v1, 4, 1')
    b('v_lshlrev_b32 v67, 1, v67')
    b('v_lshrrev_b32 v68, 5, v1')
    b('v_add_u32 v67, v67, v68')
    b('v_lshl_add_u32 v67, v3, 2, v67')
    b('v_lshlrev_b32 v67, 2, v67')
    XF, T = 20, 68
    stamp(b, 1)
    b('s_waitcnt vmcnt(0)')
    stamp(b, 2)
    E(b, perm_writes(WA, 0))
    st = []
    for i in range(4):
        x = XF + 8 * i
        for k in range(4):
            st += unpack(x + 2 * k, 4 + 4 * i + k)
    E(b, st[:16])
    b('s_waitcnt lgkmcnt(0)')
    b('s_barrier')
    stamp(b, 3)
    for i in range(4):
        b('ds_read_b128 %s, v64 offset:%d' % (vr(88 + 4 * i, 4), 4096 * i))
    E(b, st[16:])
    for i in range(4):
        b('s_waitcnt lgkmcnt(%d)' % (3 - i))
        base = (10, 12)[i >> 1]
        b('global_store_dwordx4 v%d, %s, s[%d:%d] %s' % (65 + (i & 1), vr(88 + 4 * i, 4), base, base + 1, ST_EARLY))
    for i in range(4):
        x = XF + 8 * i
        t = T + 4 * i
        b(pk('add', t, [('p', x), ('p', x + 2)]))
        b(pk('mul', t + 2, [('p', x), ('p', x)]))
        b(pk('add', t, [('p', t), ('p', x + 4)]))
        b(pk('fma', t + 2, [('p', x + 2), ('p', x + 2), ('p', t + 2)]))
        b(pk('add', t, [('p', t), ('p', x + 6)]))
        b(pk('fma', t + 2, [('p', x + 4), ('p', x + 4), ('p', t + 2)]))
        b('v_add_f32 v%d, v%d, v%d' % (52 + i, t, t + 1))
        b(pk('fma', t + 2, [('p', x + 6), ('p', x + 6), ('p', t + 2)]))
        b('v_add_f32 v%d, v%d, v%d' % (56 + i, t + 2, t + 3))
    red = []
    for r in (52, 56):
        red += ['v_permlane32_swap_b32 v%d, v%d' % (r, r + 1), 'v_permlane32_swap_b32 v%d, v%d' % (r + 2, r + 3)]
    for r in (52, 56):
        red += ['v_add_f32 v%d, v%d, v%d' % (r, r, r + 1), 'v_add_f32 v%d, v%d, v%d' % (r + 2, r + 2, r + 3)]
    for r in (52, 56):
        red += ['v_permlane16_swap_b32 v%d, v%d' % (r, r + 2)]
    for r in (52, 56):
        red += ['v_add_f32 v%d, v%d, v%d' % (r, r, r + 2)]
    red += row_reduce('add', [52, 56])
    red += ['v_mul_f32 v52, %s, v52' % fhex(1.0 / 512), 'v_mul_f32 v56, %s, v56' % fhex(1.0 / 512),
            'v_fma_f32 v56, -v52, v52, v56', 'v_max_f32 v56, 0, v56', 'v_cvt_pk_bf16_f32 v53, v56, v52',
            'v_lshlrev_b32 v56, 16, v53', 'v_and_b32 v52, 0xffff0000, v53',
            'v_add_f32 v56, %s, v56' % fhex(1e-5)] + rnd_bf16(56) + ['v_sqrt_f32 v56, v56'] + rnd_bf16(56) + \
           ['v_rcp_f32 v56, v56', 'v_mul_f32 v52, -v52, v56']
    E(b, red)
    b('s_mov_b32 exec_lo, 0x00010001')
    b('s_mov_b32 exec_hi, 0x00010001')
    b('global_store_dword v67, v56, s[16:17]')
    b('global_store_dword v67, v52, s[18:19]')
    stamp_end(b, 0)
    b('s_endpgm')

    b.label('K0_NOTLN')
    b('s_load_dwordx4 s[8:11], s[0:1], %d' % KA['c'])
    b('s_sub_u32 s6, s2, %d' % (K0_KGEN + K0_LN))
    b('s_and_b32 s7, s6, 3')
    b('s_lshr_b32 s6, s6, 2')
    b('v_lshrrev_b32 v2, 3, v0')
    b('v_mul_u32_u24 v3, 6144, v2')
    b('v_and_b32 v4, 7, v0')
    b('v_lshl_add_u32 v3, v4, 4, v3')
    b('v_lshlrev_b32 v2, 1, v2')
    b('s_mul_i32 s12, s7, %d' % (128 * 6144))
    b('s_lshl_b32 s13, s6, 7')
    b('s_add_u32 s12, s12, s13')
    b('s_lshl_b32 s13, s7, 8')
    b('s_waitcnt lgkmcnt(0)')
    b(add64(10, 10, 's12'))
    b(add64(8, 8, 's13'))
    for i in range(4):
        b('global_load_dwordx4 %s, v3, s[10:11]' % vr(8 + 4 * i, 4))
        if i < 3:
            b(add64(10, 10, str(32 * 6144)))
    for i in range(4):
        b('global_load_ushort v%d, v2, s[8:9] offset:%d' % (4 + i, 64 * i))
    if CODE_PF:
        b('s_cmp_ge_u32 s2, %d' % (K0_KGEN + K0_LN + 8))
        b('s_cbranch_scc1 K0_NOPF')
        code_prefetch(b, 'a', 'conv_kernel', 0, 40, 14)
        b.label('K0_NOPF')
    b('v_readfirstlane_b32 s12, v0')
    b('v_lshlrev_b32 v2, 5, v0')
    stamp(b, 1)
    b('s_waitcnt vmcnt(0)')
    stamp(b, 2)
    for i in range(4):
        b('v_lshlrev_b32 v%d, 16, v%d' % (4 + i, 4 + i))
    for i in range(4):
        b('v_mul_f32 v%d, %s, v%d' % (24 + i, fhex(-LOG2E), 4 + i))
    for i in range(4):
        b('v_exp_f32 v%d, v%d' % (24 + i, 24 + i))
    b(pk('add', 24, [('p', 24), ('k', '1.0')]))
    b(pk('add', 26, [('p', 26), ('k', '1.0')]))
    for i in range(4):
        b('v_rcp_f32 v%d, v%d' % (24 + i, 24 + i))
    b(pk('mul', 4, [('p', 4), ('p', 24)]))
    b(pk('mul', 6, [('p', 6), ('p', 26)]))
    E(b, rnd_pair(4, 24) + rnd_pair(6, 25))
    for i in range(4):
        for k in range(4):
            E(b, unpack(24 + 2 * k, 8 + 4 * i + k))
        for k in range(4):
            if i == 0:
                b(pk('mul', 32 + 2 * k, [('p', 24 + 2 * k), ('b', 4 + i)]))
            else:
                b(pk('fma', 32 + 2 * k, [('p', 24 + 2 * k), ('b', 4 + i), ('p', 32 + 2 * k)]))
    stamp(b, 3)
    b('ds_write_b128 v2, v[32:35]')
    b('ds_write_b128 v2, v[36:39] offset:16')
    b('s_cmp_ge_u32 s12, 64')
    b('s_waitcnt lgkmcnt(0)')
    b('s_barrier')
    b('s_cbranch_scc1 K0_FIN')
    b('v_lshlrev_b32 v2, 2, v0')
    for k in range(16):
        b('ds_read2st64_b32 %s, v2 offset0:%d offset1:%d' % (vr(4 + 2 * k, 2), 2 * k, 2 * k + 1))
    b('s_lshl_b32 s6, s6, 10')
    b('s_lshl_b32 s7, s7, 2')
    b('s_add_u32 s6, s6, s7')
    b('v_lshl_add_u32 v2, v0, 4, s6')
    b('s_waitcnt lgkmcnt(0)')
    for w in (16, 8, 4, 2):
        for k in range(0, w, 2):
            b(pk('add', 4 + k, [('p', 4 + k), ('p', 4 + w + k)]))
    b('v_add_f32 v4, v4, v5')
    b('global_store_dword v2, v4, s[4:5]')
    b.label('K0_FIN')
    stamp_end(b, 0)
    b.label('K0_END')
    b('s_endpgm')
    return b.text(), 168, NSG
```

```python
from common import *

K1_CONV, K1_WF = 256, 224
K1_WGS = K1_CONV + K1_WF
KB = 256
HB = KB + 2 * 8448
CS_ = 5760
PB = HB + 4 * CS_
K1_LDS = PB + 4 * 9216
ST_X1 = opt('ST_X1', 'sc1')
ST_WF = opt('ST_WF', 'sc1')
FOLD_PRIO = opt('FOLD_PRIO', 3)


def k1():
    b = Builder()
    b('s_cmp_ge_u32 s2, %d' % K1_WGS)
    b('s_cbranch_scc1 K1_END')
    b('s_load_dwordx2 s[4:5], s[0:1], %d' % KA['ws'])
    stamp_init(b)
    b('s_cmp_ge_u32 s2, %d' % K1_CONV)
    b('s_cbranch_scc1 K1_FOLD')
    b('s_load_dwordx2 s[8:9], s[0:1], %d' % KA['dsk'])
    b('v_lshrrev_b32 v2, 6, v0')
    b('v_and_b32 v1, 63, v0')
    b('v_readfirstlane_b32 s33, v2')
    b('s_and_b32 s6, s2, 7\ns_lshl_b32 s6, s6, 5\ns_lshr_b32 s7, s2, 3\ns_add_u32 s6, s6, s7\ns_lshl_b32 s6, s6, 1')
    b('v_lshrrev_b32 v61, 2, v0')
    b('v_and_b32 v3, 3, v0')
    b('v_lshlrev_b32 v2, 14, v61')
    b('v_lshl_add_u32 v2, v3, 4, v2')
    b('v_bfe_u32 v3, v0, 1, 1')
    b('v_lshlrev_b32 v39, 4, v3')
    b('v_lshlrev_b32 v50, 4, v1')
    b('s_lshl_b32 s7, s6, 5')
    b('s_add_u32 s7, s7, %s' % hex(WS_XT))
    b('v_and_b32 v63, 1, v0')
    b('v_lshlrev_b32 v61, 4, v61')
    b('v_lshl_add_u32 v61, v63, 3, v61')
    b('v_lshlrev_b32 v60, 2, v61')
    b('s_lshl_b32 s28, s6, 4')
    b('s_lshr_b32 s35, s33, 1')
    b('s_and_b32 s36, s33, 1')
    b('s_add_u32 s29, s6, s35')
    b('s_mul_i32 s29, s29, %d' % KCS)
    b('s_lshl_b32 s34, s36, 2')
    b('s_add_u32 s29, s29, s34')
    b('s_add_u32 s29, s29, %d' % WS_KC)
    b('s_mul_i32 s34, s33, 4224')
    b('s_add_u32 s34, s34, %d' % KB)
    b('s_waitcnt lgkmcnt(0)')
    vm = VM(b)
    b(add64(10, 4, 's7'))
    b(add64(12, 10, '0x100000'))
    b(vm.op('global_load_dwordx4 v[4:7], v2, s[10:11]', 'ln'))
    b(vm.op('global_load_dwordx4 v[8:11], v2, s[12:13]', 'ln'))
    RS, CC_ = 96, 112
    for a in range(4):
        b(add64(14, 4, hex(WS_LST + 4096 * a)))
        for k in range(2):
            b(vm.op('global_load_dwordx4 %s, v60, s[14:15] offset:%d' % (vr(RS + 8 * a + 4 * k, 4), 16 * k), 'ln'))
    b(add64(18, 4, 's28'))
    for s_, o in enumerate((0, 8192, 8192, 3 * 8192)):
        if o:
            b(add64(18, 18, str(o)))
        b(vm.op('global_load_dwordx4 %s, v39, s[18:19]' % vr(20 + 4 * s_, 4), 'mod'))
    srd(b, 24, 4, 's29', 4096)
    b('s_mov_b32 m0, s34')
    for i in range(4):
        b(vm.op('buffer_load_dwordx4 v50, s[24:27], 0 offen offset:%d lds' % (1024 * i), 'k'))
    b('v_add_lshl_u32 v49, v3, s6, 1')
    b(vm.op('global_load_ushort v36, v49, s[8:9]', 'x'))
    b('v_min_u32 v51, 34, v0')
    b('v_lshlrev_b32 v51, 4, v51')
    b('v_pk_mov_b32 v[52:53], 0, 0')
    b('v_pk_mov_b32 v[54:55], 0, 0')
    for i in range(4):
        b('ds_write_b128 v51, v[52:55] offset:%d' % (HB + CS_ * i))
    b('v_mul_u32_u24 v51, %d, v3' % (2 * CS_))
    b('ds_write_b16 v51, v52 offset:%d' % (HB + CS_ + 560))
    b('v_and_b32 v46, 15, v1')
    b('v_lshl_add_u32 v46, v46, 3, s34')
    b('ds_write_b64 v46, v[52:53] offset:4096')
    b('v_lshrrev_b32 v60, 5, v61')
    b('v_lshl_add_u32 v54, v61, 1, v51')
    b('v_lshl_add_u32 v54, v60, 4, v54')
    b('v_add_u32 v55, 8, v61')
    b('v_lshrrev_b32 v55, 5, v55')
    b('v_sub_u32 v55, v55, v60')
    b('v_lshl_add_u32 v55, v55, 4, v54')
    stamp(b, 1)
    b(vm.wait('mod'))
    stamp(b, 2)
    for s_ in range(4):
        b(pk('add', 20 + 4 * s_, [('p', 20 + 4 * s_), ('p', 22 + 4 * s_)]))
    for s_ in range(4):
        b('v_add_f32 v%d, v%d, v%d' % (20 + s_, 20 + 4 * s_, 21 + 4 * s_))
    E(b, rnd_pair(20, 24) + rnd_pair(22, 25))
    b('v_add_f32 v21, 1.0, v21')
    E(b, rnd_bf16(21))
    HF_, XF_ = 160, 176
    for i in range(2):
        for k in range(4):
            o_ = 8 * i + 2 * k
            E(b, unpack(XF_ + o_, 4 + 4 * i + k))
            b(pk('mul', RS + o_, [('p', RS + o_), ('b', 21)]))
            b(pk('fma', CC_ + o_, [('p', CC_ + o_), ('b', 21), ('b', 20)]))
        for k in range(4):
            o_ = 8 * i + 2 * k
            b(pk('fma', HF_ + o_, [('p', XF_ + o_), ('p', RS + o_), ('p', CC_ + o_)]))
        h = 40 + 4 * i
        for k in range(4):
            b('v_cvt_pk_bf16_f32 v%d, v%d, v%d' % (h + k, HF_ + 8 * i + 2 * k, HF_ + 8 * i + 2 * k + 1))
        o = HB + 560 + 2560 * i
        b('ds_write_b128 v54, %s offset:%d' % (vr(h, 4), o))
        for k in range(3):
            b('v_cvt_pk_bf16_f32 v%d, v%d, v%d' % (5 + 4 * i + k, HF_ + 8 * i + 2 * k + 1, HF_ + 8 * i + 2 * k + 2))
        b('ds_write_b16 v54, v%d offset:%d' % (h, o + CS_ + 2))
        b('ds_write_b16_d16_hi v55, v%d offset:%d' % (h + 3, o + CS_ + 16))
        b('ds_write_b32 v54, v%d offset:%d' % (5 + 4 * i, o + CS_ + 4))
        b('ds_write_b64 v54, %s offset:%d' % (vr(6 + 4 * i, 2), o + CS_ + 8))
    b('v_and_b32 v58, 1, v1')
    b('v_bfe_u32 v59, v1, 1, 3')
    b('v_lshrrev_b32 v48, 4, v1')
    b('s_mul_i32 s37, s35, 8448')
    b('s_lshl_b32 s38, s36, 8')
    b('s_sub_u32 s37, s37, s38')
    b('s_add_u32 s37, s37, %d' % (KB + 2 * 2044 - 7 * 512 - 3 * 64))
    b('v_xor_b32 v45, 1, v58')
    b('v_mul_u32_u24 v56, 4224, v45')
    b('v_sub_u32 v47, v48, v59')
    b('v_lshl_add_u32 v56, v47, 3, v56')
    b('v_add_u32 v56, s37, v56')
    b('s_mul_i32 s37, s35, %d' % (2 * CS_))
    b('s_mul_i32 s38, s36, 320')
    b('s_sub_u32 s37, s37, s38')
    b('s_add_u32 s37, s37, %d' % (HB + 4 * 80))
    b('v_mul_u32_u24 v57, %d, v58' % CS_)
    b('v_lshl_add_u32 v57, v48, 3, v57')
    b('v_mul_u32_u24 v47, 80, v59')
    b('v_add3_u32 v57, v57, v47, s37')
    stamp(b, 3)
    b(vm.wait('k') + ' lgkmcnt(0)')
    b('s_barrier')
    stamp(b, 4)

    def reads(rho):
        f = 96 if rho & 1 == 0 else 192
        r = []
        for n in range(8):
            for e in range(2):
                r.append('ds_read_b64 %s, v57 offset:%d' % (vr(f + 32 + 4 * n + 2 * e, 2), (3 - rho) * 80 + 640 * n + 32 * e))
            for e in range(2):
                r.append('ds_read_b64 %s, v56 offset:%d' % (vr(f + 4 * n + 2 * e, 2), (3 - rho) * 64 + (7 - n) * 512 + 32 * e))
        return r
    E(b, reads(0))
    fill = []
    fill += ['s_mul_i32 s37, s33, 9216', 's_add_u32 s37, s37, %d' % PB,
             'v_mul_u32_u24 v62, 144, v59', 'v_lshl_add_u32 v62, v48, 5, v62',
             'v_lshl_add_u32 v62, v45, 2, v62', 'v_add_u32 v62, s37, v62',
             'v_lshl_add_u32 v63, v60, 2, v61', 'v_mul_u32_u24 v58, %d, v3' % (2 * 9216), 'v_lshl_add_u32 v63, v63, 2, v58',
             'v_add_u32 v63, %d, v63' % PB,
             'v_add_u32 v37, s6, v3', 'v_lshrrev_b32 v2, 7, v61', 'v_lshlrev_b32 v2, 17, v2', 'v_lshl_add_u32 v2, v37, 8, v2',
             'v_and_b32 v58, 127, v61', 'v_and_b32 v59, 3, v37', 'v_lshlrev_b32 v59, 5, v59', 'v_xor_b32 v58, v58, v59',
             'v_bfe_u32 v59, v37, 3, 1', 'v_lshlrev_b32 v59, 4, v59', 'v_xor_b32 v58, v58, v59', 'v_lshl_add_u32 v2, v58, 1, v2',
             'v_lshlrev_b32 v38, 2, v37'] + add64(18, 4, hex(WS_GB)).split('\n') + \
            ['global_store_dword v38, v23, s[18:19]'] + add64(10, 4, hex(WS_X1T)).split('\n') + add64(12, 4, hex(WS_X1T + 0x100000)).split('\n')
    fill += ['s_lshl_b32 s20, s2, 7', 'v_lshrrev_b32 v31, 5, v1', 'v_and_b32 v28, 31, v1', 'v_lshlrev_b32 v29, 2, v28',
             'v_mul_u32_u24 v30, %d, v31' % (WS_FLG - WS_SST), 'v_add3_u32 v29, v29, v30, s20', 'v_and_b32 v28, 33, v1',
             's_lshl_b32 s20, s2, 2', 's_add_u32 s20, s20, %d' % (WS_WDF - WS_SST), 'v_mov_b32 v30, s20',
             'v_cmp_eq_u32 s[22:23], 1, v28', 'v_cmp_le_u32 vcc, 48, v1', 'v_mov_b32 v31, 0xbf800000'] + \
            add64(20, 4, hex(WS_SST)).split('\n') + \
            ['v_cndmask_b32 v28, 0, v31, s[22:23]', 'v_cndmask_b32 v29, v29, v30, vcc', 'global_store_dword v29, v28, s[20:21]']
    fill += ['s_waitcnt vmcnt(2)', 'v_lshlrev_b32 v36, 16, v36', 'v_mul_f32 v36, v36, v22']
    for k in range(8):
        fill += [pk('fma', HF_ + 2 * k, [('p', HF_ + 2 * k), ('b', 36), ('p', XF_ + 2 * k)])]
    order = sorted([(p, m) for p in range(8) for m in range(8 - p)], key=lambda pm: (max(pm) > 3, max(pm), (pm[0] + pm[1]) & 1, pm))
    seq = []
    for grp in ([x for x in order if max(x) <= 3], [x for x in order if max(x) > 3]):
        grp = list(grp)
        while grp:
            pick = next((x for x in grp if not seq or sum(x) != sum(seq[-1])), grp[0])
            grp.remove(pick)
            seq.append(pick)
    touched = set()
    for rho in range(4):
        f = 96 if rho & 1 == 0 else 192
        nxt = reads(rho + 1) if rho < 3 else []
        b('s_waitcnt lgkmcnt(%d)' % (14 if rho == 0 else 0))
        for n, (p, m) in enumerate(seq):
            if rho == 0 and n == 16:
                b('s_waitcnt lgkmcnt(14)')
            a = vr(64 + 4 * (p + m), 4)
            b('v_mfma_f32_16x16x32_bf16 %s, %s, %s, %s' % (a, vr(f + 4 * p, 4), vr(f + 32 + 4 * m, 4), a if p + m in touched else '0'))
            touched.add(p + m)
            if nxt and not (rho == 0 and n in (14, 15)):
                b(nxt.pop(0))
            if fill:
                b(fill.pop(0))
        E(b, nxt)
    assert not fill
    stamp(b, 5)
    for j in range(8):
        if j:
            b('v_add_u32 v62, 1152, v62')
        b('ds_write2_b32 v62, v%d, v%d offset0:0 offset1:2' % (64 + 4 * j, 65 + 4 * j))
        b('ds_write2_b32 v62, v%d, v%d offset0:4 offset1:6' % (66 + 4 * j, 67 + 4 * j))
    b('s_waitcnt lgkmcnt(0)')
    b('s_barrier')
    stamp(b, 6)
    for i in range(2):
        for part in range(2):
            for k in range(2):
                b('ds_read_b128 %s, v63 offset:%d' % (vr(64 + 16 * i + 8 * part + 4 * k, 4), 4608 * i + 9216 * part + 16 * k))
    for i in range(2):
        b('s_waitcnt lgkmcnt(%d)' % (4 - 4 * i))
        Y = 64 + 16 * i
        for k in range(4):
            b(pk('add', Y + 2 * k, [('p', Y + 2 * k), ('p', Y + 2 * k + 8)]))
        for k in range(4):
            b(pk('fma', Y + 2 * k, [('p', Y + 2 * k), ('b', 22), ('p', HF_ + 8 * i + 2 * k)]))
        for k in range(4):
            b('v_cvt_pk_bf16_f32 v%d, v%d, v%d' % (116 + 4 * i + k, Y + 2 * k, Y + 2 * k + 1))
        b('global_store_dwordx4 v2, %s, s[%d:%d] %s' % (vr(116 + 4 * i, 4), 10 + 2 * i, 11 + 2 * i, ST_X1))
    stamp_end(b, 1)
    b('s_endpgm')

    b.label('K1_FOLD')
    b('s_load_dwordx4 s[8:11], s[0:1], %d' % KA['wg'])
    b('s_load_dwordx2 s[24:25], s[0:1], %d' % KA['wd'])
    b('s_sub_u32 s6, s2, %d' % K1_CONV)
    b('s_and_b32 s12, s6, 3')
    b('s_bfe_u32 s13, s6, 0x10002')
    b('s_lshr_b32 s14, s6, 3')
    b('v_lshrrev_b32 v3, 6, v0')
    b('v_and_b32 v1, 63, v0')
    b('v_bfe_u32 v52, v0, 2, 2')
    b('v_and_b32 v53, 3, v0')
    b('v_lshl_add_u32 v52, v52, 3, v53')
    b('v_lshl_add_u32 v2, v3, 5, v52')
    b('v_mul_u32_u24 v2, 3584, v2')
    b('v_lshrrev_b32 v54, 4, v1')
    b('v_lshl_add_u32 v2, v54, 4, v2')
    b('s_mul_i32 s15, s12, %d' % (128 * 3584))
    b('s_lshl_b32 s16, s14, 7')
    b('s_add_u32 s15, s15, s16')
    b('s_lshl_b32 s16, s12, 11')
    b('s_add_u32 s16, s16, %d' % (3 * 8192))
    b('v_and_b32 v55, 127, v0')
    b('v_lshlrev_b32 v56, 4, v55')
    b('v_lshrrev_b32 v57, 7, v0')
    b('v_lshl_add_u32 v56, v57, 13, v56')
    b('s_cmp_eq_u32 s13, 0')
    b('s_waitcnt lgkmcnt(0)')
    b('s_cselect_b32 s8, s8, s10')
    b('s_cselect_b32 s9, s9, s11')
    b(add64(18, 4, 's16'))
    b('global_load_dwordx4 v[20:23], v56, s[18:19]')
    b(add64(8, 8, 's15'))
    b(add64(10, 8, str(4 * 3584)))
    for ch in range(2):
        for ab in range(2):
            b('global_load_dwordx4 %s, v2, s[%d:%d] offset:%d' % (vr(4 + 8 * ch + 4 * ab, 4), 8 + 2 * ab, 9 + 2 * ab, 64 * ch))
    b('v_readfirstlane_b32 s30, v3')
    b('s_lshl_b32 s28, s6, 13')
    srd(b, 24, 24, 's28', 8192)
    b('v_lshrrev_b32 v58, 3, v1')
    b('v_lshlrev_b32 v58, 10, v58')
    b('v_and_b32 v59, 7, v1')
    b('v_lshl_add_u32 v58, v59, 4, v58')
    b('s_lshl_b32 s29, s30, 8')
    b('s_lshl_b32 s28, s30, 11')
    b('s_add_u32 s28, s28, 4096')
    b('s_mov_b32 m0, s28')
    b('buffer_load_dwordx4 v58, s[24:27], s29 offen lds')
    b('s_add_u32 m0, s28, 1024')
    b('s_add_u32 s29, s29, 128')
    b('buffer_load_dwordx4 v58, s[24:27], s29 offen lds')
    if CODE_PF:
        b('s_cmp_ge_u32 s6, 8')
        b('s_cbranch_scc1 K1_NOPF')
        code_prefetch(b, 'b', 'gemm1_kernel', 0, 110, 22)
        b.label('K1_NOPF')
    b('s_setprio %d' % FOLD_PRIO)
    b('v_and_b32 v60, 1, v1')
    b('v_lshlrev_b32 v60, 4, v60')
    b('v_lshlrev_b32 v60, v60, 0x3f80' if False else 'v_mov_b32 v61, 0x3f80')
    b('v_lshlrev_b32 v60, v60, v61')
    b('v_bfe_u32 v61, v1, 1, 3')
    b('v_lshlrev_b32 v62, 2, v54')
    b('v_sub_u32 v61, v62, v61')
    for s_ in range(2):
        for p in range(4):
            b('v_cmp_eq_u32 vcc, %d, v61' % (8 * s_ - p))
            b('v_cndmask_b32 v%d, 0, v60, vcc' % (32 + 4 * s_ + p))
    for i in range(4):
        b('v_mov_b32 v%d, 0x3f803f80' % (48 + i))
    b('v_lshlrev_b32 v56, 2, v0')
    b('v_lshlrev_b32 v63, 7, v3')
    b('v_lshl_add_u32 v63, v54, 5, v63')
    b('v_lshlrev_b32 v2, 11, v3')
    b('v_lshl_add_u32 v2, v1, 4, v2')
    b('s_lshl_b32 s15, s14, 17')
    b('s_lshl_b32 s16, s12, 13')
    b('s_add_u32 s15, s15, s16')
    b('s_lshl_b32 s16, s13, 10')
    b('s_add_u32 s15, s15, s16')
    b('s_add_u32 s15, s15, %s' % hex(WS_WF))
    b(add64(20, 4, 's15'))
    b('v_cvt_f32_u32 v57, v57')
    b('s_waitcnt vmcnt(6)')
    b(pk('add', 20, [('p', 20), ('p', 22)]))
    b('v_add_f32 v20, v20, v21')
    E(b, rnd_bf16(20))
    b('v_add_f32 v20, v20, v57')
    E(b, rnd_bf16(20))
    b('ds_write_b32 v56, v20')
    b('v_bfe_u32 v59, v1, 2, 2')
    b('v_lshlrev_b32 v58, 5, v54')
    b('v_lshl_add_u32 v58, v59, 7, v58')
    b('v_lshl_add_u32 v58, v53, 3, v58')
    b('v_add_u32 v58, s28, v58')
    b('v_lshrrev_b32 v59, 5, v1')
    b('v_mul_u32_u24 v59, 114688, v59')
    b('v_and_b32 v60, 31, v1')
    b('v_lshl_add_u32 v59, v60, 4, v59')
    b('s_mul_i32 s26, s30, %d' % (4 * 114688))
    b('s_lshl_b32 s27, s6, 9')
    b('s_add_u32 s26, s26, s27')
    b('s_add_u32 s26, s26, %s' % hex(WS_WD))
    b(add64(24, 4, 's26'))
    b(add64(26, 24, str(2 * 114688)))
    b('v_readfirstlane_b32 s22, v0')
    b('s_waitcnt lgkmcnt(0)')
    b('s_barrier')
    SBR, OCR, D = 64, 72, 80
    b('ds_read_b128 %s, v63' % vr(SBR, 4))
    b('ds_read_b128 %s, v63 offset:16' % vr(SBR + 4, 4))
    b('ds_read_b128 %s, v63 offset:512' % vr(OCR, 4))
    b('ds_read_b128 %s, v63 offset:528' % vr(OCR + 4, 4))
    stamp(b, 1)
    b('s_waitcnt vmcnt(0)')
    stamp(b, 2)
    for i in range(4):
        b('ds_read_b64_tr_b16 %s, v58 offset:%d' % (vr(24 + 2 * i, 2), 512 * i))
    for nt in range(4):
        for ab in range(2):
            b('v_mfma_f32_16x16x32_bf16 %s, %s, %s, 0' % (vr(D + 8 * nt + 4 * ab, 4), vr(4 + 8 * (nt >> 1) + 4 * ab, 4), vr(32 + 4 * (nt & 1), 4)))
    b('s_waitcnt lgkmcnt(0)')
    b('global_store_dwordx4 v59, v[24:27], s[24:25] %s' % ST_WF)
    b('global_store_dwordx4 v59, v[28:31], s[26:27] %s' % ST_WF)
    for nt in range(4):
        d = D + 8 * nt
        o = 4 + 4 * nt
        b(pk('mul', 128 + 2 * nt, [('p', d), ('p', SBR)]))
        for k in range(1, 4):
            b(pk('fma', 128 + 2 * nt, [('p', d + 2 * k), ('p', SBR + 2 * k), ('p', 128 + 2 * nt)]))
        for k in range(4):
            b(pk('mul', d + 2 * k, [('p', d + 2 * k), ('p', OCR + 2 * k)]))
        for k in range(4):
            b('v_cvt_pk_bf16_f32 v%d, v%d, v%d' % (o + k, d + 2 * k, d + 2 * k + 1))
        b('global_store_dwordx4 v2, %s, s[20:21] %s' % (vr(o, 4), ST_WF))
        if nt < 3:
            b(add64(20, 20, '32768'))
        b('v_mfma_f32_16x16x32_bf16 %s, v[48:51], %s, 0' % (vr(136 + 4 * nt, 4), vr(o, 4)))
    for nt in range(4):
        b('v_add_f32 v%d, v%d, v%d' % (128 + nt, 128 + 2 * nt, 129 + 2 * nt))
    b('v_permlane32_swap_b32 v128, v129')
    b('v_permlane32_swap_b32 v130, v131')
    b('v_cmp_eq_u32 s[26:27], 1, v54')
    b('v_cmp_eq_u32 s[28:29], 2, v54')
    b('v_cmp_eq_u32 s[30:31], 3, v54')
    b('v_add_f32 v128, v128, v129')
    b('v_add_f32 v130, v130, v131')
    b('v_cndmask_b32 v136, v136, v144, s[26:27]')
    b('v_permlane16_swap_b32 v128, v130')
    b('v_cndmask_b32 v136, v136, v140, s[28:29]')
    b('v_add_f32 v137, v128, v130')
    b('v_cndmask_b32 v136, v136, v148, s[30:31]')
    b('v_lshlrev_b32 v56, 3, v0')
    b('ds_write_b64 v56, v[136:137] offset:1024')
    stamp(b, 3)
    b('s_cmp_ge_u32 s22, 64')
    b('s_waitcnt lgkmcnt(0)')
    b('s_barrier')
    b('s_cbranch_scc1 K1_FIN')
    for w in range(4):
        b('ds_read_b64 %s, v56 offset:%d' % (vr(64 + 2 * w, 2), 1024 + 512 * w))
    b('v_and_b32 v2, 1, v54')
    b('v_lshlrev_b32 v2, 1, v2')
    b('v_lshrrev_b32 v3, 1, v54')
    b('v_add_u32 v2, v2, v3')
    b('v_lshlrev_b32 v2, 5, v2')
    b('v_and_b32 v3, 15, v1')
    b('v_add_lshl_u32 v2, v2, v3, 2')
    b('s_lshl_b32 s15, s14, 9')
    b('s_lshl_b32 s16, s13, 6')
    b('s_add_u32 s15, s15, s16')
    b('s_mul_i32 s16, s12, %d' % (2 * 3584 * 4))
    b('s_add_u32 s15, s15, s16')
    b('s_add_u32 s15, s15, %s' % hex(WS_CB))
    b(add64(20, 4, 's15'))
    b(add64(22, 20, str(3584 * 4)))
    b('s_waitcnt lgkmcnt(0)')
    b(pk('add', 64, [('p', 64), ('p', 66)]))
    b(pk('add', 68, [('p', 68), ('p', 70)]))
    b(pk('add', 64, [('p', 64), ('p', 68)]))
    b('global_store_dword v2, v64, s[20:21]')
    b('global_store_dword v2, v65, s[22:23]')
    b.label('K1_FIN')
    stamp_end(b, 1)
    b.label('K1_END')
    b('s_endpgm')
    return b.text(), 256, NSG
```

```python
from common import *

K2_WGS = 256
ST = 131072
CBL = ST + 4096
FLAG = CBL + 7 * 32 * 8
SCR = FLAG + 256
K2_LDS = SCR + 8192
PLANS = [
    ({-2: ['x0'], -1: ['x1', 'x2'], 0: ['x3'], 1: ['x4'], 2: ['x5'], 3: ['x6'], 4: ['x7']},
     {0: ['x0'], 1: ['x1'], 2: ['x2'], 3: ['x3'], 4: ['x4'], 5: ['x5'], 6: ['x6', 'x7']}),
    ({-2: ['x0'], -1: ['x1', 'x2'], 0: ['x3'], 1: ['x4'], 2: ['x5', 'x6'], 3: ['x7']},
     {0: ['x0'], 1: ['x1'], 2: ['x2'], 3: ['x3'], 4: ['x4'], 5: ['x5', 'x6', 'x7']}),
    ({-2: ['x0'], -1: ['x1', 'x2'], 0: ['x3', 'x4'], 1: ['x5', 'x6'], 2: ['x7']},
     {0: ['x0'], 1: ['x1'], 2: ['x2'], 3: ['x3'], 4: ['x4', 'x5', 'x6', 'x7']}),
    ({-2: ['x0'], -1: ['x1', 'x2'], 0: ['x3'], 1: ['x4'], 2: ['x5'], 3: ['x6'], 4: ['x7']},
     {0: ['x0'], 1: ['x1'], 2: ['x2'], 3: ['x3'], 4: ['x4'], 5: ['x5'], 6: ['x6'], 7: ['x7']}),
    ({-2: ['x0'], -1: ['x1', 'x2', 'x3'], 0: ['x4'], 1: ['x5'], 2: ['x6', 'x7']},
     {0: ['x0'], 1: ['x1'], 2: ['x2'], 3: ['x3'], 4: ['x4'], 5: ['x5', 'x6', 'x7']}),
]
PLAN, BARS = PLANS[opt('PLAN', 1)]
GATHER = max(BARS) - 1
WD0 = opt('WD0', 18)
AUXX = True
W0 = opt('W0', 4)
WP = opt('WP', 6)
_n, _u = WP, 0
WPAT = opt('WPAT', '12')
while _n < 32:
    _n += int(WPAT[_u % len(WPAT)])
    _u += 1
YB = max(4 * GATHER + 2, _u + (_u & 1), opt('YB', 0))
YN = min(YB, 28)
EPI = opt('EPI', 6)
NB = opt('NB', 2)
HD = 6
CORR = 4 * GATHER + 2
LATE = opt('LATE', True)
ROT = opt('ROT', 0)
ROT2 = opt('ROT2', 0)
OLDPRIO = opt('OLDPRIO', False)
SPIN = 0x8000
ST_OUT = opt('ST_OUT', '')
W, XB, ACC = 128, 16, 64


def k23():
    b = Builder()
    b('s_cmp_ge_u32 s2, %d' % K2_WGS)
    b('s_cbranch_scc1 K2_END')
    b('s_load_dwordx2 s[4:5], s[0:1], %d' % KA['ws'])
    b('s_load_dwordx2 s[50:51], s[0:1], %d' % KA['out'])
    stamp_init(b)
    b('v_lshrrev_b32 v2, 6, v0')
    b('v_and_b32 v1, 63, v0')
    b('v_readfirstlane_b32 s33, v2')
    b('s_and_b32 s6, s2, 7')
    b('s_lshr_b32 s7, s2, 3')
    b('s_lshr_b32 s8, s6, 1')
    b('s_lshl_b32 s8, s8, 2')
    b('s_lshr_b32 s9, s7, 3')
    b('s_add_u32 s8, s8, s9')
    b('s_and_b32 s30, s6, 1')
    b('s_lshl_b32 s30, s30, 3')
    b('s_and_b32 s10, s7, 7')
    b('s_add_u32 s30, s30, s10')
    if opt('MAP2', False):
        b('s_lshl_b32 s8, s6, 1')
        b('s_lshr_b32 s9, s7, 4')
        b('s_add_u32 s8, s8, s9')
        b('s_and_b32 s30, s7, 15')
    b('s_mul_i32 s9, s30, 7')
    b('v_lshlrev_b32 v2, 4, v1')
    b('s_lshl_b32 s10, s8, 17')
    b('s_add_u32 s10, s10, %s' % hex(WS_X1T))
    b('s_add_u32 s11, s9, s33')
    b('s_lshl_b32 s12, s11, 15')
    b('s_add_u32 s12, s12, %s' % hex(WS_WF))
    b('s_lshl_b32 s34, s33, 11')
    b('s_and_b32 s48, s8, 3')
    b('s_lshl_b32 s48, s48, 1')
    b('s_add_u32 s48, s48, s30')
    b('s_and_b32 s48, s48, %d' % ROT)
    b('s_cmp_eq_u32 s33, 7')
    b('s_waitcnt lgkmcnt(0)')
    b('s_cbranch_scc1 K2_AUX')
    srd(b, 16, 4, 's10', 131072)
    srd(b, 20, 4, 's12', 32768)

    def make_issue(vm, with_w):
        def issue(tag):
            c = int(tag[1])
            if tag[0] == 'x' and AUXX and c > 0:
                if with_w:
                    return []
                r = ['s_add_u32 s35, s48, %d' % c, 's_and_b32 s35, s35, 7', 's_lshl_b32 s35, s35, 14']
                for i in range(4):
                    r += ['s_mov_b32 m0, %d' % (16384 * c + 4096 * i)] + (['s_add_u32 s35, s35, 4096'] if i else [])
                    r += [vm.op('buffer_load_dwordx4 v2, s[16:19], s35 offen offset:%d lds' % (1024 * k), tag) for k in range(4)]
                return r
            if tag[0] == 'x':
                return ['s_lshl_b32 s35, s48, 14', 's_add_u32 s35, s35, s34', 's_mov_b32 m0, s34',
                        vm.op('buffer_load_dwordx4 v2, s[16:19], s35 offen lds', tag),
                        vm.op('buffer_load_dwordx4 v2, s[16:19], s35 offen offset:1024 lds', tag)]
            if not with_w:
                return []
            return ['s_movk_i32 s36, %d' % (4096 * c)] + \
                   [vm.op('buffer_load_dwordx4 %s, v2, s[20:23], s36 offen offset:%d' % (vr(W + 16 * c + 4 * k, 4), 1024 * k), tag) for k in range(4)]
        return issue

    def xreads(u):
        kk, hh = u >> 1, u & 1
        f = XB + 16 * (u % 3)
        o = (kk & 7) * 8192
        r = []
        if u in (16, 17):
            r += ['v_add_u32 v%d, 0x10000, v%d' % (4 + 4 * hh + j, 4 + 4 * hh + j) for j in range(4)]
        for j in range(4):
            r.append('ds_read_b64_tr_b16 %s, v%d offset:%d' % (vr(f + 4 * j, 2), 4 + 4 * hh + j, o))
            r.append('ds_read_b64_tr_b16 %s, v%d offset:%d' % (vr(f + 4 * j + 2, 2), 4 + 4 * hh + j, o + 1024))
        return r

    def phase2_setup():
        b('s_lshr_b32 s37, s30, 3')
        b('s_lshl_b32 s37, s37, 2')
        b('s_and_b32 s38, s30, 3')
        b('s_add_u32 s37, s37, s38')
        b('s_bfe_u32 s38, s30, 0x10002')
        b('s_and_b32 s39, s33, 1')
        b('s_bfe_u32 s42, s33, 0x10001')
        b('s_lshr_b32 s43, s33, 2')
        b('s_and_b32 s49, s30, 3')
        b('s_mul_i32 s49, s49, %d' % (ROT2 * 1024))
        b('s_mul_i32 s12, s37, %d' % (2 * 114688))
        b('s_mul_i32 s13, s33, %d' % (14 * 1024))
        b('s_add_u32 s12, s12, s13')
        b('s_add_u32 s12, s12, %s' % hex(WS_WD))
        srd(b, 24, 4, 's12', 114688 + 14 * 1024)
        b('s_lshl_b32 s12, s43, 8')
        b('v_xor_b32 v12, s12, v2')
        b('s_mul_i32 s12, s39, 114688')
        b('v_add_u32 v3, s12, v12')
        b('s_sub_u32 s12, 114688, s12')
        b('v_add_u32 v12, s12, v12')

    def wdload(vm, i):
        j = i >> 1
        r = []
        if i & 1 == 0:
            r += ['s_add_u32 s44, s49, %d' % (1024 * j), 's_sub_u32 s47, s44, 14336', 's_cselect_b32 s44, s44, s47']
        r.append('buffer_load_dwordx4 %s, v%d, s[24:27], s44 offen' % (vr(W + 4 * i, 4), 12 if i & 1 else 3))
        return r

    vm = VM(b)
    issue = make_issue(vm, True)

    def wl(i):
        r = []
        if i & 3 == 0:
            r += ['s_add_u32 s36, s48, %d' % (i >> 2), 's_and_b32 s36, s36, 7', 's_lshl_b32 s36, s36, 12']
        r.append(vm.op('buffer_load_dwordx4 %s, v2, s[20:23], s36 offen offset:%d' % (vr(W + 4 * i, 4), 1024 * (i & 3)), 'w%d' % (i >> 1)))
        return r
    E(b, issue('x0'))
    for i in range(W0):
        E(b, wl(i))
    b('s_barrier')
    b('v_lshrrev_b32 v12, 4, v1')
    b('v_bfe_u32 v13, v1, 2, 2')
    b('v_and_b32 v14, 3, v1')
    b('v_lshl_add_u32 v15, v12, 3, v13')
    b('v_lshlrev_b32 v15, 8, v15')
    b('v_lshl_add_u32 v15, v14, 3, v15')
    b('v_and_b32 v14, 1, v12')
    b('v_lshl_add_u32 v14, v13, 1, v14')
    b('v_lshl_add_u32 v4, v14, 5, v15')
    for tt in range(1, 8):
        b('v_xor_b32 v%d, %d, v4' % (4 + tt, 32 * tt))
    for i in range(W0, WP):
        E(b, wl(i))
    b('v_and_b32 v13, 15, v1')
    b('s_lshl_b32 s35, s33, 8')
    b('s_add_u32 s35, s35, %d' % CBL)
    b('v_lshl_add_u32 v14, v13, 3, s35')
    b('s_mov_b32 s35, %d' % ST)
    b('v_lshl_add_u32 v13, v13, 5, s35')
    b('v_cmp_gt_u32 s[40:41], 16, v1')
    b('s_mul_i32 s12, s8, 448')
    b('s_add_u32 s12, s12, s11')
    b('s_lshl_b32 s12, s12, 10')
    b('s_add_u32 s12, s12, %s' % hex(WS_HF))
    b(add64(14, 4, 's12'))
    phase2_setup()
    stamp(b, 1)
    b(vm.wait('x0', 'w0'))
    b('s_barrier')
    stamp(b, 2)
    if OLDPRIO:
        b('s_cmp_ge_u32 s33, 4')
        b('s_cbranch_scc1 K2_NP')
        b('s_setprio 1')
        b.label('K2_NP')
    E(b, xreads(0) + xreads(1))
    nw = WP
    for u in range(32):
        c = u >> 2
        if u & 1 == 0 and u:
            b(vm.wait('w%d' % (u >> 1)))
        if u & 3 == 2:
            if c + 1 in BARS:
                b('s_barrier')
            stamp(b, 3 + c)
        if u == CORR:
            A0, B0 = W + 32, W
            b('ds_read_b64 %s, v14' % vr(A0, 2))
            b('ds_read_b64 %s, v14 offset:128' % vr(A0 + 4, 2))
            for tt in range(8):
                b('ds_read_b128 %s, v13 offset:%d' % (vr(B0 + 4 * tt, 4), 512 * tt))
            b('v_pk_mov_b32 %s, 0, 0' % vr(A0 + 2, 2))
            b('v_pk_mov_b32 %s, 0, 0' % vr(A0 + 6, 2))
            b('s_waitcnt lgkmcnt(8)')
            for r in (0, 1, 4, 5):
                b('v_cndmask_b32 v%d, 0, v%d, s[40:41]' % (A0 + r, A0 + r))
            b('s_waitcnt lgkmcnt(0)')
            for tt in range(8):
                for m in range(2):
                    a = vr(ACC + 8 * tt + 4 * m, 4)
                    b('v_mfma_f32_16x16x32_bf16 %s, %s, %s, %s' % (a, vr(A0 + 4 * m, 4), vr(B0 + 4 * tt, 4), a))
        if u == YB:
            assert nw == 32
            b('s_cmp_lt_u32 s33, 4')
            b('s_cbranch_scc1 K2_NY')
            for i in range(YN):
                E(b, wdload(None, i))
            b.label('K2_NY')
        pend = []
        for _ in range(int(WPAT[u % len(WPAT)])):
            if nw < 32:
                pend += wl(nw)
                nw += 1
        if u == 31:
            pend += ['ds_read_b128 %s, v13 offset:%d' % (vr(48 + 4 * tt, 4), 512 * tt + 16) for tt in range(4)]
        fill = (xreads(u + 2) if u < 30 else []) + pend
        b('s_waitcnt lgkmcnt(%d)' % (8 if u < 31 else 0))
        f = XB + 16 * (u % 3)
        mm = []
        for j in range(4):
            for m in range(2):
                a = vr(ACC + 8 * (4 * (u & 1) + j) + 4 * m, 4)
                mm.append('v_mfma_f32_16x16x32_bf16 %s, %s, %s, %s' % (a, vr(W + 8 * (u >> 1) + 4 * m, 4), vr(f + 4 * j, 4), a if u > 1 else '0'))
        E(b, spread(mm, fill, 2))
    stamp(b, 11)
    b('s_cmp_ge_u32 s33, 4')
    b('s_cbranch_scc1 K2_NO')
    for i in range(YN):
        E(b, wdload(None, i))
    b.label('K2_NO')
    if not LATE:
        for i in range(YN, 28):
            E(b, wdload(None, i))
    wdq = []
    CO = lambda tt: 48 + 4 * tt if tt < 4 else 240 + 4 * (tt - 4)
    for tt in range(4, 8):
        b('ds_read_b128 %s, v13 offset:%d' % (vr(CO(tt), 4), 512 * tt + 16))
    b('s_waitcnt lgkmcnt(4)')
    cnt = [0]

    def ep(t):
        b(t)
        cnt[0] += 1
        if cnt[0] % EPI == 0 and wdq:
            E(b, wdq.pop(0))
    for p in range(4):
        T = 16 + 16 * (p & 1)
        if p == 2:
            b('s_waitcnt lgkmcnt(0)')
        tl = [(ACC + 8 * (2 * p + e) + 2 * k, T + 4 * e + 2 * k, CO(2 * p + e)) for e in range(2) for k in range(2)]
        for g, t, c in tl:
            ep(pk('mul', t, [('p', g), ('p', g)]))
        for g, t, c in tl:
            ep(pk('fma', t, [('p', t), ('b', c + 1), ('b', c)]))
        for g, t, c in tl:
            ep(pk('mul', t, [('p', t), ('p', g)]))
        for g, t, c in tl:
            ep('v_exp_f32 v%d, v%d' % (t, t))
            ep('v_exp_f32 v%d, v%d' % (t + 1, t + 1))
            ep(pk('mul', g, [('p', g), ('p', g + 4)]))
        for g, t, c in tl:
            ep(pk('fma', t, [('p', t), ('b', c + 2), ('b', c + 2)]))
        for k in range(8):
            ep('v_rcp_f32 v%d, v%d' % (T + k, T + k))
        for g, t, c in tl:
            ep(pk('mul', g, [('p', g), ('p', t)]))
        for n, (g, t, c) in enumerate(tl):
            ep('v_cvt_pk_bf16_f32 v%d, v%d, v%d' % (T + 8 + n, g, g + 1))
        ep('v_permlane16_swap_b32 v%d, v%d' % (T + 8, T + 10))
        ep('v_permlane16_swap_b32 v%d, v%d' % (T + 9, T + 11))
        ep('global_store_dwordx4 v2, %s, s[14:15] sc1' % vr(T + 8, 4))
        if p < 3:
            ep(add64(14, 14, '114688'))
    assert not wdq
    stamp(b, 12)
    NLATE = 0
    if LATE:
        for i in range(YN, 28):
            E(b, wdload(None, i))
        NLATE = 28 - YN

    b.label('K2_P2')
    RS, GBR = 240, 248
    b('s_lshl_b32 s45, s37, 6')
    b('s_lshl_b32 s12, s39, 5')
    b('s_add_u32 s45, s45, s12')
    b('s_lshl_b32 s12, s43, 4')
    b('s_add_u32 s45, s45, s12')
    b('s_lshl_b32 s46, s38, 6')
    b('s_lshl_b32 s12, s42, 5')
    b('s_add_u32 s46, s46, s12')
    b('v_lshrrev_b32 v6, 5, v1')
    b('v_and_b32 v7, 31, v1')
    b('s_lshl_b32 s12, s45, 2')
    b('s_add_u32 s12, s12, %s' % hex(WS_GB))
    b(add64(14, 4, 's12'))
    b('v_lshlrev_b32 v8, 4, v6')
    b('global_load_dwordx4 %s, v8, s[14:15]' % vr(GBR, 4))
    b('global_load_dwordx4 %s, v8, s[14:15] offset:32' % vr(GBR + 4, 4))
    b('v_add_lshl_u32 v9, v7, s46, 1')
    b('v_lshl_add_u32 v9, v6, 10, v9')
    b('s_sub_u32 s12, s37, s48')
    b('s_and_b32 s12, s12, 7')
    b('s_lshl_b32 s12, s12, 6')
    b('s_and_b32 s13, s45, 63')
    b('s_add_u32 s12, s12, s13')
    b('s_lshl_b32 s12, s12, 8')
    b('v_add_u32 v9, s12, v9')
    for q in range(2):
        for i in range(4):
            b('v_xor_b32 v%d, %d, v9' % (10 + (i & 1), 64 * i + 32 * q))
            b('ds_read_u16 v%d, v%d offset:%d' % (RS + 4 * q + i, 10 + (i & 1), 2048 * q + 256 * i))
    b('s_lshl_b32 s12, s8, 7')
    b('s_add_u32 s12, s12, s46')
    b('s_lshl_b32 s12, s12, 10')
    b('s_lshl_b32 s13, s45, 1')
    b('s_add_u32 s12, s12, s13')
    b(add64(50, 50, 's12'))
    b('v_lshl_add_u32 v15, v7, 10, v8')
    b('s_lshl_b32 s12, s8, 1')
    b('s_add_u32 s12, s12, s38')
    b('s_mul_i32 s12, s12, %d' % (2 * 114688))
    b('s_mul_i32 s13, s33, %d' % (14 * 1024))
    b('s_add_u32 s12, s12, s13')
    b('s_add_u32 s12, s12, %s' % hex(WS_HF))
    srd(b, 20, 4, 's12', 114688 + 14 * 1024)
    b('s_mul_i32 s12, s42, 114688')
    b('v_add_u32 v13, s12, v2')
    b('s_sub_u32 s12, 114688, s12')
    b('v_add_u32 v14, s12, v2')
    b('s_waitcnt vmcnt(%d) lgkmcnt(0)' % (NLATE + 2))
    b('s_cmp_lg_u32 s33, 7')
    b('s_barrier')
    b('s_cbranch_scc1 K2_GO2')
    b('s_lshl_b32 s12, s8, 11')
    b('s_add_u32 s12, s12, %s' % hex(WS_FLG))
    b(add64(28, 4, 's12'))
    b('s_lshl_b32 s12, s30, 7')
    b('v_mov_b32 v4, s12')
    b('v_mov_b32 v5, 1')
    b('global_store_dword v4, v5, s[28:29] sc1')
    b('v_and_b32 v4, 15, v1')
    b('v_lshlrev_b32 v4, 7, v4')
    b('s_mov_b32 s36, %d' % SPIN)
    b.label('K2_POLL2')
    b('global_load_dword v16, v4, s[28:29] sc1')
    b('s_waitcnt vmcnt(0)')
    b('v_cmp_ne_u32 vcc, 1, v16')
    b('s_cmp_eq_u64 vcc, 0')
    b('s_cbranch_scc1 K2_GO2')
    b('s_sleep %d' % opt('SLP', 1))
    b('s_sub_u32 s36, s36, 1')
    b('s_cmp_lg_u32 s36, 0')
    b('s_cbranch_scc1 K2_POLL2')
    b.label('K2_GO2')
    b('s_barrier')
    stamp(b, 13)
    vm = VM(b)

    def hload(j):
        f = XB + 8 * (j % HD)
        r = []
        r += ['s_add_u32 s44, s49, %d' % (1024 * j), 's_sub_u32 s47, s44, 14336', 's_cselect_b32 s44, s44, s47']
        for h in range(2):
            r.append(vm.op('buffer_load_dwordx4 %s, v%d, s[20:23], s44 offen sc1' % (vr(f + 4 * h, 4), 13 + h), 'h%d' % j))
        return r
    for j in range(HD):
        E(b, hload(j))
    for x in range(1, 8):
        b('s_xor_b32 s12, s33, %d' % x)
        b('s_mul_i32 s12, s12, %d' % (7 * 2048))
        b('s_add_u32 s12, s12, %d' % (2048 * (x - 1)))
        b('v_add_u32 v%d, s12, v2' % (3 + x))
    b('s_mul_i32 s12, s33, %d' % (7 * 2048))
    b('v_add_u32 v3, s12, v2')
    for k in range(8):
        b('v_lshlrev_b32 v%d, 16, v%d' % (RS + k, RS + k))
    for j in range(14):
        f = XB + 8 * (j % HD)
        b(vm.wait('h%d' % j))
        for sl in range(4):
            a = vr(ACC + 16 * sl, 16)
            b('v_mfma_f32_32x32x16_bf16 %s, %s, %s, %s' % (a, vr(W + 8 * j + 4 * (sl & 1), 4), vr(f + 4 * (sl >> 1), 4), a if j else '0'))
        if j + HD < 14:
            E(b, hload(j + HD))
    stamp(b, 14)
    for x in (1, 2, 3, 5, 6, 7, 4):
        r = ACC + 16 * (x & 3) + 8 * (x >> 2)
        b('ds_write_b128 v%d, %s' % (3 + x, vr(r, 4)))
        b('ds_write_b128 v%d, %s offset:1024' % (3 + x, vr(r + 4, 4)))
    for k in range(0, 8, 2):
        b(pk('fma', RS + k, [('p', ACC + k), ('p', GBR + k), ('p', RS + k)]))
    b('s_waitcnt lgkmcnt(0)')
    b('s_barrier')
    for x in range(7):
        for h in range(2):
            b('ds_read_b128 %s, v3 offset:%d' % (vr(ACC + 8 * x + 4 * h, 4), 2048 * x + 1024 * h))
    b('s_waitcnt lgkmcnt(6)')
    for k in range(0, 8, 2):
        b(pk('add', ACC + k, [('p', ACC + k), ('p', ACC + 8 + k)]))
        b(pk('add', ACC + 16 + k, [('p', ACC + 16 + k), ('p', ACC + 24 + k)]))
    b('s_waitcnt lgkmcnt(2)')
    for k in range(0, 8, 2):
        b(pk('add', ACC + k, [('p', ACC + k), ('p', ACC + 16 + k)]))
        b(pk('add', ACC + 32 + k, [('p', ACC + 32 + k), ('p', ACC + 40 + k)]))
    b('s_waitcnt lgkmcnt(0)')
    for k in range(0, 8, 2):
        b(pk('add', ACC + k, [('p', ACC + k), ('p', ACC + 48 + k)]))
    for k in range(0, 8, 2):
        b(pk('add', ACC + k, [('p', ACC + k), ('p', ACC + 32 + k)]))
    for k in range(0, 8, 2):
        b(pk('fma', RS + k, [('p', ACC + k), ('p', GBR + k), ('p', RS + k)]))
    for k in range(4):
        b('v_cvt_pk_bf16_f32 v%d, v%d, v%d' % (ACC + k, RS + 2 * k, RS + 2 * k + 1))
    b('v_permlane32_swap_b32 v%d, v%d' % (ACC, ACC + 2))
    b('v_permlane32_swap_b32 v%d, v%d' % (ACC + 1, ACC + 3))
    b('global_store_dwordx4 v15, %s, s[50:51] %s' % (vr(ACC, 4), ST_OUT))
    stamp_end(b, 2)
    b('s_endpgm')

    b.label('K2_AUX')
    srd(b, 16, 4, 's10', 131072)
    vm = VM(b)
    issue = make_issue(vm, False)
    for t in PLAN[-2]:
        E(b, issue(t))
    b('s_barrier')
    b('s_setprio 3')
    for t in PLAN[-1]:
        E(b, issue(t))
    b('s_lshr_b32 s12, s30, 1')
    b('s_lshl_b32 s12, s12, 5')
    b('v_lshrrev_b32 v20, 1, v1')
    b('v_and_b32 v21, 3, v20')
    b('v_lshlrev_b32 v21, 6, v21')
    b('v_bfe_u32 v22, v20, 3, 1')
    b('v_lshl_add_u32 v21, v22, 5, v21')
    b('v_xor_b32 v21, s12, v21')
    b('v_lshl_add_u32 v21, v20, 8, v21')
    b('v_and_b32 v22, 1, v1')
    b('v_lshl_add_u32 v21, v22, 4, v21')
    b('s_and_b32 s13, s30, 1')
    b('s_lshl_b32 s31, s13, 16')
    b('s_lshl_b32 s12, s9, 7')
    b('s_add_u32 s12, s12, %s' % hex(WS_CB))
    b(add64(14, 4, 's12'))
    b('v_min_u32 v23, 55, v1')
    b('v_lshlrev_b32 v27, 4, v23')
    b('v_lshlrev_b32 v104, 5, v23')
    b('v_add_u32 v104, %d, v104' % CBL)
    b('v_lshlrev_b32 v105, 5, v1')
    b('v_add_u32 v105, %d, v105' % ST)
    b('v_mov_b32 v28, v21')
    b('v_lshrrev_b32 v20, 4, v1')
    b('v_bfe_u32 v21, v1, 2, 2')
    b('v_and_b32 v22, 3, v1')
    b('v_cmp_eq_u32 s[46:47], v20, v21')
    b('v_cmp_eq_u32 s[40:41], 1, v22')
    b('v_cmp_eq_u32 s[42:43], 2, v22')
    b('v_cmp_eq_u32 s[44:45], 3, v22')
    b('v_lshl_add_u32 v24, v20, 3, v21')
    b('v_lshlrev_b32 v24, 5, v24')
    b('v_lshl_add_u32 v24, v22, 3, v24')
    b('v_add_u32 v24, %d, v24' % SCR)
    for i in range(4):
        b('v_mov_b32 v%d, 0x3f803f80' % (112 + i))
    b('s_lshl_b32 s12, s8, 11')
    b('s_add_u32 s12, s12, %s' % hex(WS_SST))
    b(add64(28, 4, 's12'))
    b('s_lshl_b32 s13, s13, 10')
    b('s_lshr_b32 s12, s30, 1')
    b('s_lshl_b32 s12, s12, 7')
    b('s_add_u32 s12, s12, s13')
    b('v_and_b32 v25, 15, v1')
    b('v_lshl_add_u32 v25, v25, 3, s12')
    b('v_lshlrev_b32 v26, 3, v1')
    stamp(b, 1)
    b(vm.wait('x0') + ' lgkmcnt(0)')
    b('s_barrier')
    for i in range(8):
        b('s_mov_b32 m0, %d' % (SCR + 1024 * i))
        b(vm.op('buffer_load_dwordx4 v28, s[16:19], s31 offen lds', 'sh'))
        b('s_add_u32 s31, s31, 8192')
    for q in range(4):
        for w in range(2):
            if q or w:
                b(add64(14, 14, str(3584 * 4)))
            b(vm.op('global_load_dwordx4 %s, v27, s[14:15]' % vr(64 + 16 * w + 4 * q, 4), 'cb'))

    def share():
        b(vm.wait('sh'))
        for kk in range(8):
            for e in range(2):
                b('ds_read_b64_tr_b16 %s, v24 offset:%d' % (vr(32 + 4 * kk + 2 * e, 2), 1024 * kk + 128 * e))
        for kk in range(8):
            b('s_waitcnt lgkmcnt(%d)' % (14 - 2 * kk))
            f = vr(32 + 4 * kk, 4)
            b('v_mfma_f32_16x16x32_bf16 v[120:123], %s, %s, %s' % (f, f, 'v[120:123]' if kk else '0'))
            b('v_mfma_f32_16x16x32_bf16 v[116:119], v[112:115], %s, %s' % (f, 'v[116:119]' if kk else '0'))
        b('v_cndmask_b32 v117, v120, v121, s[40:41]')
        b('v_cndmask_b32 v117, v117, v122, s[42:43]')
        b('v_cndmask_b32 v117, v117, v123, s[44:45]')
        b('v_and_b32 v117, 0x7fffffff, v117')
        b('s_mov_b64 exec, s[46:47]')
        b(vm.op('global_store_dwordx2 v25, v[116:117], s[28:29] sc1', 'pub'))
        b('s_mov_b64 exec, -1')
        stamp(b, 2)

    def cbprep():
        b(vm.wait('cb'))
        for w in range(2):
            p = 64 + 16 * w
            for k in (0, 2):
                b(pk('add', p + k, [('p', p + k), ('p', p + 4 + k)]))
                b(pk('add', p + 8 + k, [('p', p + 8 + k), ('p', p + 12 + k)]))
            for k in (0, 2):
                b(pk('add', p + k, [('p', p + k), ('p', p + 8 + k)]))
        for j in range(4):
            for w in range(2):
                x = 64 + 16 * w + j
                t = 96 + 2 * j + w
                E(b, ['v_cvt_pk_bf16_f32 v%d, v%d, v%d' % (t, x, x), 'v_and_b32 v%d, 0xffff0000, v%d' % (x + 4, t),
                      'v_sub_f32 v%d, v%d, v%d' % (x, x, x + 4), 'v_cvt_pk_bf16_f32 v%d, v%d, v%d' % (t, x + 4, x)])
        b('ds_write_b128 v104, v[96:99]')
        b('ds_write_b128 v104, v[100:103] offset:16')
        phase2_setup()

    def gather():
        K0c = -2.0 * math.sqrt(2.0 / math.pi) * LOG2E
        b('s_mov_b32 s36, %d' % SPIN)
        b('s_mov_b32 s12, %s' % fhex(1.0 / 512))
        b('s_mov_b32 s14, %s' % fhex(1e-5))
        b.label('K2_POLLS')
        for i in range(4):
            b('global_load_dwordx2 %s, v26, s[28:29] offset:%d sc1' % (vr(64 + 2 * i, 2), 512 * i))
        b('s_waitcnt vmcnt(0)')
        b('v_or_b32 v72, v65, v67')
        b('v_or3_b32 v72, v72, v69, v71')
        b('v_cmp_gt_i32 vcc, 0, v72')
        b('s_cmp_eq_u64 vcc, 0')
        b('s_cbranch_scc1 K2_GOS')
        b('s_sleep 2')
        b('s_sub_u32 s36, s36, 1')
        b('s_cmp_lg_u32 s36, 0')
        b('s_cbranch_scc1 K2_POLLS')
        b.label('K2_GOS')
        b('v_add_f32 v82, v64, v68')
        b('v_add_f32 v83, v66, v70')
        b('v_add_f32 v80, v65, v69')
        b('v_add_f32 v81, v67, v71')
        b(pk('mul', 82, [('p', 82), ('sl', 12)]))
        b(pk('mul', 80, [('p', 80), ('sl', 12)]))
        b(pk('fma', 80, [('p', 82), ('p', 82), ('p', 80)], neg_lo=[1, 0, 0], neg_hi=[1, 0, 0]))
        B0, B1 = 88, 96
        b('v_cvt_pk_bf16_f32 v%d, -v82, -v82' % B0)
        b('v_cvt_pk_bf16_f32 v%d, -v83, -v83' % B1)
        b('v_max_f32 v80, 0, v80')
        b('v_max_f32 v81, 0, v81')
        E(b, rnd_pair(80, 84))
        b(pk('add', 80, [('p', 80), ('sl', 14)]))
        E(b, rnd_pair(80, 84))
        b('v_sqrt_f32 v80, v80')
        b('v_sqrt_f32 v81, v81')
        b('v_pk_mov_b32 %s, 0, 0' % vr(B0 + 2, 2))
        b('v_pk_mov_b32 %s, 0, 0' % vr(B1 + 2, 2))
        b('v_cvt_pk_bf16_f32 v%d, v80, v80' % (B0 + 1))
        b('v_cvt_pk_bf16_f32 v%d, v81, v81' % (B1 + 1))
        b('v_lshlrev_b32 v80, 16, v%d' % (B0 + 1))
        b('v_lshlrev_b32 v81, 16, v%d' % (B1 + 1))
        b('v_rcp_f32 v82, v80')
        b('v_rcp_f32 v83, v81')
        b('ds_write_b128 v105, %s' % vr(B0, 4))
        b('ds_write_b128 v105, %s offset:2048' % vr(B1, 4))
        b('v_mul_f32 v%d, v80, v80' % (B0 + 6))
        b('v_mul_f32 v%d, v81, v81' % (B1 + 6))
        b('v_mul_f32 v%d, %s, v82' % (B0 + 4, fhex(K0c)))
        b('v_mul_f32 v%d, %s, v83' % (B1 + 4, fhex(K0c)))
        b(pk('mul', 82, [('p', 82), ('p', 82)]))
        b('v_mul_f32 v82, %s, v82' % fhex(0.044715))
        b('v_mul_f32 v83, %s, v83' % fhex(0.044715))
        b('v_mul_f32 v%d, v82, v%d' % (B0 + 5, B0 + 4))
        b('v_mul_f32 v%d, v83, v%d' % (B1 + 5, B1 + 4))
        b('ds_write_b128 v105, %s offset:16' % vr(B0 + 4, 4))
        b('ds_write_b128 v105, %s offset:2064' % vr(B1 + 4, 4))
        stamp(b, 11)
    for c in range(8):
        for t in PLAN.get(c, []):
            E(b, issue(t))
        if c == 1:
            share()
        if c == 2:
            cbprep()
        if c + 1 in BARS:
            if c == GATHER:
                gather()
                b('s_waitcnt lgkmcnt(0)')
            else:
                b(vm.wait(*BARS[c + 1]))
            stamp(b, 3 + c)
            b('s_barrier')
    if GATHER + 1 not in BARS:
        gather()
    for i in range(28):
        E(b, wdload(vm, i))
    b('s_setprio 0')
    stamp(b, 12)
    b('s_waitcnt vmcnt(0)')
    b('s_branch K2_P2')
    b.label('K2_END')
    b('s_endpgm')
    return b.text(), 256, NSG
```

```python
import math, os, struct
import numpy as np
from asmlib import Builder, vr, sr, fhex

NAME = 'adaLN_cond__ssm_conv_s4__glu_gated_geglu__prompt'

WS_MODP = 0x0
WS_GB = 0x10000
WS_CB = 0x11000
WS_SST = 0x40000
WS_FLG = 0x48000
WS_WDF = 0x58000
WS_LST = 0x50000
WS_G1 = 0x5A000
WS_LNT = 0x100000
WS_XT = 0x300000
WS_KC = 0x500000
KCS = 4352
WS_X1T = 0xA00000
WS_WF = 0xC00000
WS_WD = 0x1000000
WS_HF = 0x1200000
WS_STAMP = 0x2000000
if os.environ.get('LAY') == '1':
    WS_XT, WS_KC, WS_HF, WS_X1T, WS_WF, WS_WD = 0x100000, 0x300000, 0x100000, 0x800000, 0xA00000, 0xD80000
if os.environ.get('LAY') == '2':
    WS_XT, WS_KC, WS_X1T, WS_WF, WS_WD, WS_HF = 0x60000, 0x260000, 0x480000, 0x680000, 0xA00000, 0xBC0000

WS_BASE = int(os.environ.get('WS_BASE', '0')) << 20
LOG2E = 1.4426950408889634
KA = dict(u=0, are=8, aim=16, bre=24, bim=32, cre=40, cim=48, ldt=56, dsk=64, bx=72, wg=80, wu=88, wd=96, c=104, wm=112,
          out=120, dbg=128, ws=136)
STAMPS = bool(os.environ.get('STAMPS'))
NSG = 100 if STAMPS else 56


def opt(name, default):
    v = os.environ.get(name)
    if v is None:
        return default
    return type(default)(v) if not isinstance(default, bool) else v not in ('0', '')


def pk(op, d, srcs, neg_lo=None, neg_hi=None):
    cross = lambda s_: s_[0] == 'x' or (s_[0] == 'b' and s_[1] & 1)
    srcs = list(srcs)
    if cross(srcs[1]):
        srcs[0], srcs[1] = srcs[1], srcs[0]
        for n_ in (neg_lo, neg_hi):
            if n_:
                n_[0], n_[1] = n_[1], n_[0]
    assert not any(cross(s_) for s_ in srcs[1:]), (op, d, srcs)
    ops, sl, sh = [], [], []
    for kind, r in srcs:
        if kind == 'p':
            assert r % 2 == 0
            ops.append(vr(r, 2)); sl.append(0); sh.append(1)
        elif kind == 'x':
            ops.append(vr(r, 2)); sl.append(1); sh.append(0)
        elif kind == 'b':
            ops.append(vr(r & ~1, 2)); sl.append(r & 1); sh.append(r & 1)
        elif kind == 'sl':
            ops.append(sr(r, 2)); sl.append(0); sh.append(0)
        elif kind == 'sh':
            ops.append(sr(r, 2)); sl.append(1); sh.append(1)
        else:
            ops.append(r); sl.append(0); sh.append(0)
    assert d % 2 == 0
    s = 'v_pk_%s_f32 %s, %s op_sel:[%s] op_sel_hi:[%s]' % (op, vr(d, 2), ', '.join(ops), ','.join(map(str, sl)), ','.join(map(str, sh)))
    if neg_lo:
        s += ' neg_lo:[%s]' % ','.join(map(str, neg_lo))
    if neg_hi:
        s += ' neg_hi:[%s]' % ','.join(map(str, neg_hi))
    return s


def cmul(d, a, b, bim):
    assert bim % 2 == 0
    return [pk('mul', d, [('p', a), ('b', b)]),
            pk('fma', d, [('x', a), ('b', bim), ('p', d)], neg_lo=[1, 0, 0])]


def weave(*seqs):
    out = []
    seqs = [list(s) for s in seqs]
    while any(seqs):
        for s in seqs:
            if s:
                out.append(s.pop(0))
    return out


def spread(main, fill, per):
    out = []
    fill = list(fill)
    for m in main:
        out.append(m)
        out += fill[:per]
        fill = fill[per:]
    return out + fill


def row_reduce(op, regs):
    out = []
    for m in ('row_ror:8', 'row_ror:4', 'row_ror:2', 'row_ror:1'):
        for r in regs:
            out.append('v_%s_f32_dpp v%d, v%d, v%d %s row_mask:0xf bank_mask:0xf' % (op, r, r, r, m))
    return out


def wave_reduce(op, regs):
    out = row_reduce(op, regs)
    for m, rm in (('row_bcast:15', '0xa'), ('row_bcast:31', '0xc')):
        for r in regs:
            out.append('v_%s_f32_dpp v%d, v%d, v%d %s row_mask:%s bank_mask:0xf' % (op, r, r, r, m, rm))
    return out


def rnd_bf16(r):
    return ['v_cvt_pk_bf16_f32 v%d, v%d, v%d' % (r, r, r), 'v_lshlrev_b32 v%d, 16, v%d' % (r, r)]


def rnd_pair(a, t):
    return ['v_cvt_pk_bf16_f32 v%d, v%d, v%d' % (t, a, a + 1),
            'v_lshlrev_b32 v%d, 16, v%d' % (a, t),
            'v_and_b32 v%d, 0xffff0000, v%d' % (a + 1, t)]


def unpack(dst, src):
    return ['v_lshlrev_b32 v%d, 16, v%d' % (dst, src), 'v_and_b32 v%d, 0xffff0000, v%d' % (dst + 1, src)]


def add64(d, b, off):
    return 's_add_u32 s%d, s%d, %s\ns_addc_u32 s%d, s%d, 0' % (d, b, off, d + 1, b + 1)


def srd(b, d, base, off, nbytes):
    b('s_add_u32 s%d, s%d, %s' % (d, base, off))
    b('s_addc_u32 s%d, s%d, 0' % (d + 1, base + 1))
    b('s_mov_b32 s%d, %d' % (d + 2, nbytes))
    b('s_mov_b32 s%d, 0x20000' % (d + 3))


def E(b, seq):
    for s in seq:
        b(s)


class VM:
    def __init__(self, b):
        self.b = b
        self.tags = []

    def op(self, text, tag):
        self.tags.append(tag)
        return text

    def cnt(self, *need):
        last = max(i for i, t in enumerate(self.tags) if t in need)
        n = len(self.tags) - 1 - last
        n = min(n, 62)
        return n

    def wait(self, *need):
        return 's_waitcnt vmcnt(%d)' % self.cnt(*need)


_dbgn = 0
DBGSEL = {0: [(100, 0, [(0, 0), (1, 2), (2, 15)]), (300, 0, [(3, 15)]), (500, 0, [(4, 15)])],
          1: [(100, 0, [(5, 0), (6, 4), (7, 15)]), (356, 0, [(8, 2), (9, 15)])],
          2: [(100, 5, [(10, 0), (11, 2), (12, 11), (13, 12), (14, 13), (15, 15)])]}


def stamp(b, i):
    if STAMPS:
        b('%s s[%d:%d]' % ('s_memtime' if os.environ.get('STAMP_CLK') else 's_memrealtime', 64 + 2 * i, 65 + 2 * i))


def stamp_init(b):
    if STAMPS:
        for i in range(32):
            b('s_mov_b32 s%d, 0' % (64 + i))
        b('v_lshrrev_b32 v1, 6, v0')
        b('s_nop 1')
        b('v_readfirstlane_b32 s62, v1')
        stamp(b, 0)


def stamp_end(b, kern):
    if STAMPS:
        b('s_waitcnt vmcnt(0)')
        stamp(b, 15)
        b('s_lshl_b32 s60, s2, 3')
        b('s_add_u32 s60, s60, s62')
        b('s_lshl_b32 s60, s60, 7')
        b('s_add_u32 s60, s60, %d' % (WS_STAMP + kern * 1024 * 8 * 128))
        b('s_add_u32 s60, s4, s60')
        b('s_addc_u32 s61, s5, 0')
        b('s_mov_b64 exec, 1')
        b('v_mov_b32 v0, 0')
        b('s_waitcnt lgkmcnt(0)')
        if os.environ.get('DBG') and kern == 2:
            b('s_cmp_lg_u32 s2, 100')
            b('s_cbranch_scc1 DBGX')
            b('s_cmp_lg_u32 s62, 5')
            b('s_cbranch_scc1 DBGX')
            b('s_load_dwordx2 s[58:59], s[0:1], 128')
            b('s_waitcnt lgkmcnt(0)')
            off = int(os.environ['DBG'])
            b('s_sub_u32 s58, s58, %d' % off)
            b('s_subb_u32 s59, s59, 0')
            for kk in range(3):
                for wg, wv, items in DBGSEL[kk]:
                    for slot, st in items:
                        if kk == 2:
                            b('v_mov_b32 v4, s%d' % (64 + 2 * st))
                        else:
                            b('v_mov_b32 v5, %d' % (WS_STAMP + kk * 1024 * 8 * 128 + (wg * 8 + wv) * 128 + 8 * st))
                            b('global_load_dword v4, v5, s[4:5]')
                            b('s_waitcnt vmcnt(0)')
                        b('global_store_dword v0, v4, s[58:59] offset:%d' % (4 * slot))
            b.label('DBGX')
        for i in range(32):
            b('v_mov_b32 v%d, s%d' % (4 + i, 64 + i))
        for i in range(8):
            b('global_store_dwordx4 v0, %s, s[60:61] offset:%d' % (vr(4 + 4 * i, 4), 16 * i))


def bf16_round_int(l):
    if l < 0:
        return l
    u = struct.unpack('<I', struct.pack('<f', float(l)))[0]
    u = ((u + 0x7FFF + ((u >> 16) & 1)) >> 16) << 16
    return int(struct.unpack('<f', struct.pack('<I', u))[0])


CODE_PF = opt('CODE_PF', True)


def code_prefetch(b, tag, first, vidx, vt, st, back=False):
    b('s_getpc_b64 s[%d:%d]' % (st, st + 1))
    b.label('PF_%s' % tag)
    if back:
        b('s_sub_u32 s%d, s%d, PF_%s-%s' % (st, st, tag, first))
        b('s_subb_u32 s%d, s%d, 0' % (st + 1, st + 1))
    else:
        b('s_add_u32 s%d, s%d, %s-PF_%s' % (st, st, first, tag))
        b('s_addc_u32 s%d, s%d, 0' % (st + 1, st + 1))
    b('v_lshlrev_b32 v%d, 7, v%d' % (vt, vidx))
    b('v_min_u32 v%d, CODE_END-%s-4, v%d' % (vt, first, vt))
    b('global_load_dword v%d, v%d, s[%d:%d]' % (vt, vt, st, st + 1))


def load_ws(b):
    b('s_load_dwordx2 s[4:5], s[0:1], %d' % KA['ws'])


def rebase_ws(b):
    if WS_BASE:
        b(add64(4, 4, hex(WS_BASE)))
```

```python
from common import *

WGS = 256
TW = 8768
KB = 256
HB = KB + 2 * 8448
CS_ = 5760
PB = HB + 4 * CS_
BB = PB + 4 * 9216
FB_ = BB + 16384
CNT = FB_ + 12288
LDS = CNT + 16
ST_X1 = opt('ST_X1', 'sc1')
ST_WF = opt('ST_WF', 'sc1')
FOLD_PRIO = opt('FOLD_PRIO', 3)
SPIN = 0x8000
FW_EARLY = opt('FW_EARLY', True)
N_XT, N_MOD, N_FOLD = 128, 96, 224


def gather_table():
    rows = []
    for j4 in range(4):
        for tau in range(128):
            e = []
            for j in range(4 * j4, 4 * j4 + 4):
                v = bf16_round_int(2047 - 8 * tau - (j & 7) - 1024 * (j >> 3))
                e.append(PB + 4 * (v + (v >> 4)))
            rows.append('.long ' + ','.join(map(str, e)))
    return '.p2align 8\nK0_TAB:\n' + '\n'.join(rows)


def transpose_write_addr(b, va, lane, wave_v, t):
    b('v_lshlrev_b32 v%d, 8, v%d' % (t, lane))
    b('v_lshl_add_u32 v%d, v%d, 3, v%d' % (t, wave_v, t))
    b('v_and_b32 v%d, 7, v%d' % (va, lane))
    b('v_lshlrev_b32 v%d, 4, v%d' % (va, va))
    b('v_xor_b32 v%d, v%d, v%d' % (va, va, t))
    for j in range(1, 4):
        b('v_xor_b32 v%d, %d, v%d' % (va + j, 32 * j, va))


def perm_writes(WA, off):
    xs = []
    for j in range(8):
        sel = 's15' if j & 1 else 's14'
        t = 84 + 2 * (j & 1)
        xs.append('v_perm_b32 v%d, v%d, v%d, %s' % (t, 8 + (j >> 1), 4 + (j >> 1), sel))
        xs.append('v_perm_b32 v%d, v%d, v%d, %s' % (t + 1, 16 + (j >> 1), 12 + (j >> 1), sel))
        xs.append('ds_write_b64 v%d, %s offset:%d' % (WA + (j & 3), vr(t, 2), off + 128 * (j >> 2)))
    return xs


def k01():
    b = Builder()
    b('s_cmp_ge_u32 s2, %d' % WGS)
    b('s_cbranch_scc1 K1_END')
    b('s_load_dwordx2 s[4:5], s[0:1], %d' % KA['ws'])
    stamp_init(b)
    b('v_lshrrev_b32 v87, 6, v0')
    b('v_and_b32 v1, 63, v0')
    b('v_readfirstlane_b32 s33, v87')
    b('s_cmp_ge_u32 s33, 4')
    b('s_cbranch_scc1 K1_B')
    b('s_setprio 3')
    b('s_load_dwordx2 s[38:39], s[0:1], %d' % KA['dsk'])
    b('s_load_dwordx2 s[50:51], s[0:1], %d' % KA['dbg'])
    b('s_load_dwordx4 s[8:11], s[0:1], %d' % KA['are'])
    b('s_load_dwordx4 s[12:15], s[0:1], %d' % KA['bre'])
    b('s_load_dwordx4 s[16:19], s[0:1], %d' % KA['cre'])
    b('s_load_dwordx2 s[20:21], s[0:1], %d' % KA['ldt'])
    b('s_getpc_b64 s[30:31]')
    b('s_add_u32 s30, s30, K0_TAB@rel32@lo+4')
    b('s_addc_u32 s31, s31, K0_TAB@rel32@hi+12')
    b('s_and_b32 s6, s2, 7\ns_lshl_b32 s6, s6, 5\ns_lshr_b32 s7, s2, 3\ns_add_u32 s6, s6, s7\ns_lshl_b32 s6, s6, 1')
    b('s_lshl_b32 s7, s6, 8')
    b('v_and_b32 v160, 127, v0')
    b('v_lshlrev_b32 v161, 4, v160')
    G = 124
    b('v_lshl_add_u32 v2, v0, 1, s7')
    b('v_lshrrev_b32 v3, 7, v0')
    b('v_add_lshl_u32 v11, v3, s6, 1')
    b('s_waitcnt lgkmcnt(0)')
    b('global_load_ushort v10, v11, s[20:21]')
    for i in range(6):
        b('global_load_ushort v%d, v2, s[%d:%d]' % (4 + i, 8 + 2 * i, 9 + 2 * i))
    b('s_add_u32 s34, s30, 4096\ns_addc_u32 s35, s31, 0')
    for i in range(4):
        b('global_load_dwordx4 %s, v161, s[%d:%d] offset:%d' % (vr(G + 4 * i, 4), 30 + 4 * (i >> 1), 31 + 4 * (i >> 1), 2048 * (i & 1)))
    b('s_mul_i32 s36, s33, %d' % TW)
    b('s_add_u32 s36, s36, %d' % PB)
    WB, RB = 164, 75
    b('v_lshl_add_u32 v%d, v1, 2, s36' % WB)
    for k in range(1, 4):
        b('v_add_u32 v%d, %d, v%d' % (WB + k, 1088 * k, WB))
    b('v_and_b32 v85, 15, v1')
    b('v_lshrrev_b32 v86, 4, v1')
    b('v_mul_u32_u24 v88, 272, v85')
    b('v_lshl_add_u32 v88, v86, 4, v88')
    b('v_add_u32 v%d, s36, v88' % RB)
    b('v_mul_u32_u24 v85, 68, v85')
    b('v_add_u32 v85, s36, v85')
    b('v_lshl_add_u32 v120, v86, 4, v85')
    b('v_mul_u32_u24 v87, 1088, v86')
    b('v_lshlrev_b32 v88, 3, v86')
    b('v_add_u32 v88, 1088, v88')
    b('v_max_u32 v87, v87, v88')
    b('v_add_u32 v121, v87, v85')
    b('v_lshrrev_b32 v87, 1, v86')
    b('v_mul_u32_u24 v87, 4352, v87')
    b('v_and_b32 v88, 1, v86')
    b('v_lshl_add_u32 v87, v88, 5, v87')
    b('v_add_u32 v122, v87, v85')
    b('v_mul_u32_u24 v2, 8448, v3')
    b('v_add_u32 v2, v161, v2')
    stamp(b, 1)
    b('s_waitcnt vmcnt(10)')
    b('v_lshlrev_b32 v10, 16, v10')
    b('v_mul_f32 v10, %s, v10' % fhex(LOG2E))
    b('v_exp_f32 v10, v10')
    b('s_waitcnt vmcnt(4)')
    stamp(b, 2)
    for i in range(4, 10):
        b('v_lshlrev_b32 v%d, 16, v%d' % (i, i))
    E(b, rnd_bf16(10))
    b(pk('mul', 12, [('p', 4), ('b', 10)]))
    b(pk('mul', 6, [('p', 6), ('b', 10)]))
    b('v_mul_f32 v12, %s, v12' % fhex(LOG2E))
    b('v_mul_f32 v13, %s, v13' % fhex(1.0 / (2 * math.pi)))
    b('v_mov_b32 v4, v7')
    E(b, cmul(14, 8, 6, 4))

    def zpow(d, p, ta, tb):
        s = []
        if p == 1:
            s += ['v_exp_f32 v%d, v12' % ta, 'v_fract_f32 v%d, v13' % tb]
        else:
            s += ['v_mul_f32 v%d, %s, v12' % (ta, fhex(float(p))), 'v_mul_f32 v%d, %s, v13' % (tb, fhex(float(p))),
                  'v_exp_f32 v%d, v%d' % (ta, ta), 'v_fract_f32 v%d, v%d' % (tb, tb)]
        s += ['v_cos_f32 v%d, v%d' % (d, tb), 'v_sin_f32 v%d, v%d' % (d + 1, tb)]
        return s, [pk('mul', d, [('p', d), ('b', ta)])]
    Z1, Z16, ZB, US, VA, VB = 16, 18, 20, 36, 68, 70
    mx = ['v_max_f32 v72, abs(v14), abs(v15)'] + wave_reduce('max', [72]) + ['v_frexp_exp_i32_f32 v72, v72', 'v_readlane_b32 s22, v72, 63']
    a1, f1 = zpow(Z1, 1, 6, 7)
    a2, f2 = zpow(Z16, 16, 4, 5)
    a3, f3 = zpow(ZB, 256, 8, 9)
    zs = a1 + a2 + f1 + a3 + f2 + ['v_mov_b32 v%d, 0x43800000' % US] + f3 + ['v_mov_b32 v%d, 0' % (US + 1)]
    E(b, spread(mx, zs, 2))
    b('s_sub_i32 s23, 13, s22')
    b('s_sub_i32 s24, s22, 21')
    I1, I16, IZ1, IZ2, IZ3, IU8 = 4, 6, 8, 10, 12, 14
    b(pk('mul', US + 2, [('p', Z1), ('b', US)]))
    b('v_ldexp_f32 v%d, v14, s23' % VA)
    b('v_ldexp_f32 v%d, v15, s23' % (VA + 1))
    b('v_mov_b32 v%d, v%d' % (I16, Z16 + 1))
    b('v_mov_b32 v%d, v%d' % (I1, Z1 + 1))
    b('v_mov_b32 v%d, v%d' % (IZ1, ZB + 1))

    def cvt(src, row, neg=False):
        s = ['v_cvt_pk_f16_f32 v%d, v%d, %sv%d' % (72 + (row & 1), src, '-' if neg else '', src + 1)]
        if row & 1:
            s.append('ds_write2_b32 v%d, v72, v73 offset0:%d offset1:%d' % (WB + (row >> 2), 68 * ((row - 1) & 3), 68 * (row & 3)))
        return s

    def read_frags(d):
        return ['ds_read_b128 %s, v%d offset:%d' % (vr(d + 4 * j, 4), RB, 64 * j) for j in range(4)]
    VF, UF, DA, UF1 = 76, 92, 108, 144

    def mf(tile, uf):
        return ['v_mfma_f32_16x16x32_f16 %s, %s, %s, %s' % (vr(DA + 4 * tile, 4), vr(uf + 4 * j, 4), vr(VF + 4 * j, 4),
                                                         vr(DA + 4 * tile, 4) if j else '0') for j in range(4)]
    cv = []
    cur, nxt = VA, VB
    for i in range(16):
        if i < 15:
            cv += cmul(nxt, cur, Z16, I16)
        cv += cvt(cur, i, True)
        cur, nxt = nxt, cur
    cu = []
    for i in range(2, 16):
        cu += cmul(US + 2 * i, US + 2 * (i - 1), Z1, I1)
    E(b, weave(cv, cu))
    E(b, read_frags(VF))
    r0 = []
    for i in range(16):
        r0 += cvt(US + 2 * i, i)
    cz = []
    for m in range(1, 8):
        cz += cmul(ZB + 2 * m, ZB + 2 * (m - 1), ZB, IZ1)
    cz += ['v_mov_b32 v%d, v%d' % (IZ2, ZB + 3), 'v_mov_b32 v%d, v%d' % (IZ3, ZB + 5), 'v_mov_b32 v%d, v%d' % (IU8, US + 17)]
    E(b, weave(r0, cz))
    E(b, read_frags(UF))
    t1 = []
    for g, (zi, uo) in enumerate(((0, 0), (0, 2), (1, 0), (2, 0))):
        for rho in range(4):
            d = VA if (rho & 1) == 0 else VB
            if rho == 0 and uo == 0:
                t1 += [pk('mul', d, [('p', ZB + 2 * zi), ('b', US)])]
            else:
                t1 += cmul(d, US + 2 * (4 * rho + uo), ZB + 2 * zi, (IZ1, IZ2, IZ3)[zi])
            t1 += cvt(d, 4 * g + rho)
    E(b, t1)
    E(b, read_frags(UF1))
    b('s_waitcnt lgkmcnt(12)')
    m0 = mf(0, UF)
    t2 = []
    for rho in range(4):
        d = VA if (rho & 1) == 0 else VB
        t2 += [pk('mul', d, [('p', ZB + 2 * (3 + rho)), ('b', US)])] + cvt(d, rho)
    for rho in range(4):
        d = VA if (rho & 1) == 0 else VB
        t2 += cmul(d, ZB + 2 * (3 + rho), US + 16, IU8) + cvt(d, 4 + rho)
    t2 += [pk('mul', VA, [('p', ZB + 14), ('b', US)]), 'v_cvt_pk_f16_f32 v72, v%d, v%d' % (VA, VA + 1),
           'ds_write_b32 v%d, v72' % (WB + 2)]
    E(b, spread(m0, t2, 3))
    E(b, read_frags(UF))
    b('s_waitcnt lgkmcnt(9)')
    E(b, mf(1, UF1))
    for rho in range(4):
        b('v_ldexp_f32 v%d, v%d, s24' % (DA + rho, DA + rho))
    b('s_waitcnt lgkmcnt(0)')
    E(b, mf(2, UF))
    stamp(b, 3)
    for rho in range(4):
        b('ds_write_b32 v120, v%d offset:%d' % (DA + rho, 4 * rho))
    for rho in range(4):
        b('v_ldexp_f32 v%d, v%d, s24' % (DA + 4 + rho, DA + 4 + rho))
    for rho in range(4):
        b('ds_write_b32 v121, v%d offset:%d' % (DA + 4 + rho, 16 * rho))
    for rho in range(4):
        b('v_ldexp_f32 v%d, v%d, s24' % (DA + 8 + rho, DA + 8 + rho))
    b('s_mov_b32 exec_hi, 1')
    b('ds_write_b32 v122, v%d offset:4352' % (DA + 8))
    b('s_mov_b32 exec_hi, 0')
    for rho in range(1, 4):
        b('ds_write_b32 v122, v%d offset:%d' % (DA + 8 + rho, 4352 + 1088 * rho))
    b('s_mov_b32 exec_hi, -1')
    b('v_add_u32 v3, %d, v2' % (KB + 4224 - 4))
    b('v_mov_b32 v111, 0')
    b('s_waitcnt vmcnt(0)')
    b('global_load_dword v112, v111, s[50:51] sc1')
    b('s_cmp_ge_u32 s33, 2')
    b('s_waitcnt lgkmcnt(0)')
    b('s_barrier')
    stamp(b, 4)
    b('s_cbranch_scc1 K0_G1')
    for cc in range(2):
        if cc:
            b.label('K0_G1')
        for j in range(16):
            b('ds_read_b32 v%d, v%d offset:%d' % (36 + j, G + j, (2 * cc + 1) * TW))
            b('ds_read_b32 v%d, v%d offset:%d' % (G + j, G + j, 2 * cc * TW))
        if cc == 0:
            b('s_branch K0_G2')
    b.label('K0_G2')
    for h in range(2):
        b('s_waitcnt lgkmcnt(%d)' % (14 if h == 0 else 0))
        for m in range(4 * h, 4 * h + 4):
            b(pk('add', G + 2 * m, [('p', G + 2 * m), ('p', 36 + 2 * m)]))
        for m in range(4 * h, 4 * h + 4):
            b('v_cvt_pk_bf16_f32 v%d, v%d, v%d' % (56 + m, G + 2 * m, G + 2 * m + 1))
        b('ds_write_b128 v2, %s offset:%d' % (vr(56 + 4 * h, 4), KB + 2048 * h))
        if h:
            b('v_add_u32 v3, 2048, v3')
        b('ds_write2_b32 v3, v%d, v%d offset0:0 offset1:1' % (56 + 4 * h, 57 + 4 * h))
        b('ds_write2_b32 v3, v%d, v%d offset0:2 offset1:3' % (58 + 4 * h, 59 + 4 * h))
    b('s_waitcnt lgkmcnt(0)')
    b('v_lshrrev_b32 v61, 2, v0')
    b('v_and_b32 v3, 3, v0')
    b('v_lshlrev_b32 v2, 14, v61')
    b('v_lshl_add_u32 v2, v3, 4, v2')
    b('v_bfe_u32 v3, v0, 1, 1')
    b('v_lshlrev_b32 v39, 2, v3')
    b('v_add_lshl_u32 v49, v3, s6, 1')
    b('global_load_ushort v36, v49, s[38:39]')
    b('s_lshl_b32 s7, s6, 5')
    b('s_add_u32 s7, s7, %s' % hex(WS_XT))
    b(add64(10, 4, 's7'))
    b(add64(12, 10, '0x100000'))
    srd(b, 24, 4, hex(WS_LST), 16384)
    b('s_lshl_b32 s28, s6, 2')
    b('s_add_u32 s28, s28, 2048')
    b(add64(18, 4, 's28'))
    b(add64(20, 18, '12288'))
    b('v_and_b32 v63, 1, v0')
    b('v_lshlrev_b32 v61, 4, v61')
    b('v_lshl_add_u32 v61, v63, 3, v61')
    b('v_lshlrev_b32 v40, 4, v1')
    b('s_lshl_b32 s28, s33, 11')
    b('s_mul_i32 s29, s33, 9216')
    b('s_add_u32 s29, s29, %d' % PB)
    b('v_lshrrev_b32 v42, 2, v1')
    b('v_lshlrev_b32 v42, 7, v42')
    b('v_lshl_add_u32 v42, v63, 5, v42')
    b('v_add_u32 v42, s29, v42')
    b('v_add_u32 v41, 8192, v39')
    b('s_lshr_b32 s35, s33, 1')
    b('s_and_b32 s36, s33, 1')
    b('s_mul_i32 s34, s33, 4224')
    b('s_add_u32 s34, s34, %d' % KB)
    b('v_min_u32 v51, 34, v0')
    b('v_lshlrev_b32 v51, 4, v51')
    b('v_pk_mov_b32 v[52:53], 0, 0')
    b('v_pk_mov_b32 v[54:55], 0, 0')
    for i in range(4):
        b('ds_write_b128 v51, v[52:55] offset:%d' % (HB + CS_ * i))
    b('v_mul_u32_u24 v51, %d, v3' % (2 * CS_))
    b('ds_write_b16 v51, v52 offset:%d' % (HB + CS_ + 560))
    b('v_and_b32 v46, 15, v1')
    b('v_lshl_add_u32 v46, v46, 3, s34')
    b('ds_write_b64 v46, v[52:53] offset:4096')
    b('v_mul_u32_u24 v46, 8448, v3')
    b('ds_write_b32 v46, v52 offset:%d' % (KB + 4224 + 4092))
    b('v_lshrrev_b32 v60, 5, v61')
    b('v_lshl_add_u32 v54, v61, 1, v51')
    b('v_lshl_add_u32 v54, v60, 4, v54')
    b('v_add_u32 v55, 8, v61')
    b('v_lshrrev_b32 v55, 5, v55')
    b('v_sub_u32 v55, v55, v60')
    b('v_lshl_add_u32 v55, v55, 4, v54')
    b('v_and_b32 v58, 1, v1')
    b('v_bfe_u32 v59, v1, 1, 3')
    b('v_lshrrev_b32 v50, 4, v1')
    b('s_mul_i32 s37, s35, 8448')
    b('s_lshl_b32 s38, s36, 8')
    b('s_sub_u32 s37, s37, s38')
    b('s_add_u32 s37, s37, %d' % (KB + 2 * 2044 - 7 * 512 - 3 * 64))
    b('v_xor_b32 v38, 1, v58')
    b('v_mul_u32_u24 v56, 4224, v38')
    b('v_sub_u32 v37, v50, v59')
    b('v_lshl_add_u32 v56, v37, 3, v56')
    b('v_add_u32 v56, s37, v56')
    b('s_mul_i32 s37, s35, %d' % (2 * CS_))
    b('s_mul_i32 s38, s36, 320')
    b('s_sub_u32 s37, s37, s38')
    b('s_add_u32 s37, s37, %d' % (HB + 4 * 80))
    b('v_mul_u32_u24 v57, %d, v58' % CS_)
    b('v_lshl_add_u32 v57, v50, 3, v57')
    b('v_mul_u32_u24 v37, 80, v59')
    b('v_add3_u32 v57, v57, v37, s37')
    b('s_cmp_lg_u32 s33, 0')
    b('s_cbranch_scc1 K1_GO')
    b('s_mov_b32 s46, %d' % SPIN)
    b('s_waitcnt vmcnt(0)')
    b.label('K1_P1')
    b('v_readfirstlane_b32 s47, v112')
    b('s_cmp_lg_u32 s47, 0')
    b('s_cbranch_scc1 K1_P1X')
    b('global_load_dword v112, v111, s[50:51] sc1')
    b('s_sub_u32 s46, s46, 1')
    b('s_cmp_lg_u32 s46, 0')
    b('s_waitcnt vmcnt(0)')
    b('s_cbranch_scc1 K1_P1')
    b.label('K1_P1X')
    b(add64(22, 4, hex(WS_G1)))
    b('v_lshlrev_b32 v113, 7, v1')
    b('s_mov_b32 s46, %d' % SPIN)
    b.label('K1_P3')
    b('global_load_dwordx4 v[116:119], v113, s[22:23] sc1')
    b('s_waitcnt vmcnt(0)')
    for i in range(4):
        b('v_xor_b32 v%d, v%d, v112' % (116 + i, 116 + i))
    b('v_or3_b32 v116, v116, v117, v118')
    b('v_or_b32 v116, v116, v119')
    b('v_cmp_ne_u32 vcc, 0, v116')
    b('s_cmp_eq_u64 vcc, 0')
    b('s_cbranch_scc1 K1_GO')
    if opt('PSL', 8):
        b('s_sleep %d' % opt('PSL', 8))
    b('s_sub_u32 s46, s46, 1')
    b('s_cmp_lg_u32 s46, 0')
    b('s_cbranch_scc1 K1_P3')
    b.label('K1_GO')
    stamp(b, 5)
    b('s_barrier')
    stamp(b, 6)
    vm = VM(b)
    b(vm.op('global_load_dwordx4 v[4:7], v2, s[10:11] sc1', 'ln'))
    b(vm.op('global_load_dwordx4 v[8:11], v2, s[12:13] sc1', 'ln'))
    b('s_mov_b32 m0, s29')
    for i in range(2):
        b(vm.op('buffer_load_dwordx4 v40, s[24:27], s28 offen offset:%d sc1 lds' % (1024 * i), 'st'))
    b('s_add_u32 m0, s29, 2048')
    b('s_add_u32 s28, s28, 8192')
    for i in range(2):
        b(vm.op('buffer_load_dwordx4 v40, s[24:27], s28 offen offset:%d sc1 lds' % (1024 * i), 'st'))
    for p_ in range(2):
        for s_, (v_, o_) in enumerate(((39, -2048), (39, 0), (39, 2048), (41, 0))):
            b(vm.op('global_load_dword v%d, v%d, s[%d:%d] offset:%d sc1' % (20 + 4 * p_ + s_, v_, 18 + 2 * p_, 19 + 2 * p_, o_), 'mod'))
    RS, CC_ = 96, 112
    b(vm.wait('st'))
    for i in range(2):
        for a in range(2):
            for k in range(2):
                b('ds_read_b128 %s, v42 offset:%d' % (vr(RS + 16 * a + 8 * i + 4 * k, 4), 2048 * i + 64 * a + 16 * k))
    b(vm.wait('mod'))
    stamp(b, 7)
    b(pk('add', 20, [('p', 20), ('p', 24)]))
    b(pk('add', 22, [('p', 22), ('p', 26)]))
    E(b, rnd_pair(20, 24) + rnd_pair(22, 25))
    b('v_add_f32 v21, 1.0, v21')
    E(b, rnd_bf16(21))
    HF_, XF_ = 160, 176
    for i in range(2):
        for k in range(4):
            E(b, unpack(XF_ + 8 * i + 2 * k, 4 + 4 * i + k))
        if i == 0:
            b('s_waitcnt lgkmcnt(0)')
        for k in range(4):
            o_ = 8 * i + 2 * k
            b(pk('mul', RS + o_, [('p', RS + o_), ('b', 21)]))
            b(pk('fma', CC_ + o_, [('p', CC_ + o_), ('b', 21), ('b', 20)]))
        for k in range(4):
            o_ = 8 * i + 2 * k
            b(pk('fma', HF_ + o_, [('p', XF_ + o_), ('p', RS + o_), ('p', CC_ + o_)]))
        h = 40 + 4 * i
        for k in range(4):
            b('v_cvt_pk_bf16_f32 v%d, v%d, v%d' % (h + k, HF_ + 8 * i + 2 * k, HF_ + 8 * i + 2 * k + 1))
        o = HB + 560 + 2560 * i
        b('ds_write_b128 v54, %s offset:%d' % (vr(h, 4), o))
        for k in range(3):
            b('v_cvt_pk_bf16_f32 v%d, v%d, v%d' % (5 + 4 * i + k, HF_ + 8 * i + 2 * k + 1, HF_ + 8 * i + 2 * k + 2))
        b('ds_write_b16 v54, v%d offset:%d' % (h, o + CS_ + 2))
        b('ds_write_b16_d16_hi v55, v%d offset:%d' % (h + 3, o + CS_ + 16))
        b('ds_write_b32 v54, v%d offset:%d' % (5 + 4 * i, o + CS_ + 4))
        b('ds_write_b64 v54, %s offset:%d' % (vr(6 + 4 * i, 2), o + CS_ + 8))
    b('s_waitcnt lgkmcnt(0)')
    b('s_barrier')
    stamp(b, 8)

    def reads(rho):
        f = 96 if rho & 1 == 0 else 192
        r = []
        for n in range(8):
            for e in range(2):
                r.append('ds_read_b64 %s, v57 offset:%d' % (vr(f + 32 + 4 * n + 2 * e, 2), (3 - rho) * 80 + 640 * n + 32 * e))
            for e in range(2):
                r.append('ds_read_b64 %s, v56 offset:%d' % (vr(f + 4 * n + 2 * e, 2), (3 - rho) * 64 + (7 - n) * 512 + 32 * e))
        return r
    E(b, reads(0))
    fill = []
    fill += ['s_mul_i32 s37, s33, 9216', 's_add_u32 s37, s37, %d' % PB,
             'v_mul_u32_u24 v62, 144, v59', 'v_lshl_add_u32 v62, v50, 5, v62',
             'v_lshl_add_u32 v62, v38, 2, v62', 'v_add_u32 v62, s37, v62',
             'v_lshl_add_u32 v63, v60, 2, v61', 'v_mul_u32_u24 v58, %d, v3' % (2 * 9216), 'v_lshl_add_u32 v63, v63, 2, v58',
             'v_add_u32 v63, %d, v63' % PB,
             'v_add_u32 v37, s6, v3', 'v_lshrrev_b32 v2, 7, v61', 'v_lshlrev_b32 v2, 17, v2', 'v_lshl_add_u32 v2, v37, 8, v2',
             'v_and_b32 v58, 127, v61', 'v_and_b32 v59, 3, v37', 'v_lshlrev_b32 v59, 5, v59', 'v_xor_b32 v58, v58, v59',
             'v_bfe_u32 v59, v37, 3, 1', 'v_lshlrev_b32 v59, 4, v59', 'v_xor_b32 v58, v58, v59', 'v_lshl_add_u32 v2, v58, 1, v2',
             'v_lshlrev_b32 v38, 2, v37'] + add64(18, 4, hex(WS_GB)).split('\n') + \
            ['global_store_dword v38, v23, s[18:19]'] + add64(10, 4, hex(WS_X1T)).split('\n') + add64(12, 4, hex(WS_X1T + 0x100000)).split('\n')
    fill += ['s_lshl_b32 s20, s2, 7', 'v_lshrrev_b32 v31, 5, v1', 'v_and_b32 v28, 31, v1', 'v_lshlrev_b32 v29, 2, v28',
             'v_mul_u32_u24 v30, %d, v31' % (WS_FLG - WS_SST), 'v_add3_u32 v29, v29, v30, s20', 'v_and_b32 v28, 33, v1',
             's_lshl_b32 s20, s2, 2', 's_add_u32 s20, s20, %d' % (WS_WDF - WS_SST), 'v_mov_b32 v30, s20',
             'v_cmp_eq_u32 s[22:23], 1, v28', 'v_cmp_le_u32 vcc, 48, v1', 'v_mov_b32 v31, 0xbf800000'] + \
            add64(20, 4, hex(WS_SST)).split('\n') + \
            ['v_cndmask_b32 v28, 0, v31, s[22:23]', 'v_cndmask_b32 v29, v29, v30, vcc', 'global_store_dword v29, v28, s[20:21]']
    fill += ['s_waitcnt vmcnt(2)', 'v_lshlrev_b32 v36, 16, v36', 'v_mul_f32 v36, v36, v22']
    for k in range(8):
        fill += [pk('fma', HF_ + 2 * k, [('p', HF_ + 2 * k), ('b', 36), ('p', XF_ + 2 * k)])]
    order = sorted([(p, m) for p in range(8) for m in range(8 - p)], key=lambda pm: (max(pm) > 3, max(pm), (pm[0] + pm[1]) & 1, pm))
    seq = []
    for grp in ([x for x in order if max(x) <= 3], [x for x in order if max(x) > 3]):
        grp = list(grp)
        while grp:
            pick = next((x for x in grp if not seq or sum(x) != sum(seq[-1])), grp[0])
            grp.remove(pick)
            seq.append(pick)
    touched = set()
    for rho in range(4):
        f = 96 if rho & 1 == 0 else 192
        nxt = reads(rho + 1) if rho < 3 else []
        b('s_waitcnt lgkmcnt(%d)' % (14 if rho == 0 else 0))
        for n, (p, m) in enumerate(seq):
            if rho == 0 and n == 16:
                b('s_waitcnt lgkmcnt(14)')
            a = vr(64 + 4 * (p + m), 4)
            b('v_mfma_f32_16x16x32_bf16 %s, %s, %s, %s' % (a, vr(f + 4 * p, 4), vr(f + 32 + 4 * m, 4), a if p + m in touched else '0'))
            touched.add(p + m)
            if nxt and not (rho == 0 and n in (14, 15)):
                b(nxt.pop(0))
            if fill:
                b(fill.pop(0))
        E(b, nxt)
    assert not fill
    stamp(b, 9)
    for j in range(8):
        if j:
            b('v_add_u32 v62, 1152, v62')
        b('ds_write2_b32 v62, v%d, v%d offset0:0 offset1:2' % (64 + 4 * j, 65 + 4 * j))
        b('ds_write2_b32 v62, v%d, v%d offset0:4 offset1:6' % (66 + 4 * j, 67 + 4 * j))
    b('s_waitcnt lgkmcnt(0)')
    b('s_barrier')
    stamp(b, 10)
    for i in range(2):
        for part in range(2):
            for k in range(2):
                b('ds_read_b128 %s, v63 offset:%d' % (vr(64 + 16 * i + 8 * part + 4 * k, 4), 4608 * i + 9216 * part + 16 * k))
    for i in range(2):
        b('s_waitcnt lgkmcnt(%d)' % (4 - 4 * i))
        Y = 64 + 16 * i
        for k in range(4):
            b(pk('add', Y + 2 * k, [('p', Y + 2 * k), ('p', Y + 2 * k + 8)]))
        for k in range(4):
            b(pk('fma', Y + 2 * k, [('p', Y + 2 * k), ('b', 22), ('p', HF_ + 8 * i + 2 * k)]))
        for k in range(4):
            b('v_cvt_pk_bf16_f32 v%d, v%d, v%d' % (116 + 4 * i + k, Y + 2 * k, Y + 2 * k + 1))
        b('global_store_dwordx4 v2, %s, s[%d:%d] %s' % (vr(116 + 4 * i, 4), 10 + 2 * i, 11 + 2 * i, ST_X1))
    stamp_end(b, 0)
    b('s_endpgm')

    b.label('K1_B')
    b('s_load_dwordx2 s[8:9], s[0:1], %d' % KA['u'])
    b('s_load_dwordx4 s[40:43], s[0:1], %d' % KA['c'])
    b('s_load_dwordx4 s[44:47], s[0:1], %d' % KA['wg'])
    b('s_load_dwordx2 s[48:49], s[0:1], %d' % KA['wd'])
    b('s_load_dwordx2 s[50:51], s[0:1], %d' % KA['dbg'])
    b('s_memrealtime s[52:53]')
    b('v_and_b32 v0, 255, v0')
    b('v_lshrrev_b32 v3, 6, v0')
    b('v_mov_b32 v110, %d' % CNT)
    b('v_mov_b32 v111, 0')
    b('ds_write_b32 v110, v111')
    if CODE_PF:
        b('s_cmp_ge_u32 s2, 8')
        b('s_cbranch_scc1 K1_NOPF')
        code_prefetch(b, 'a', 'prep_kernel', 0, 112, 22, back=True)
        b.label('K1_NOPF')
    b('s_cmp_ge_u32 s2, %d' % N_XT)
    b('s_cbranch_scc1 K1_NOTXT')
    b('s_lshl_b32 s6, s2, 14')
    b('v_lshlrev_b32 v2, 12, v3')
    b('v_lshl_add_u32 v2, v1, 4, v2')
    b('v_lshrrev_b32 v60, 4, v1')
    b('v_lshlrev_b32 v61, 2, v60')
    b('v_xor_b32 v61, v61, v1')
    b('v_and_b32 v61, 15, v61')
    b('v_lshlrev_b32 v61, 4, v61')
    b('v_lshl_add_u32 v61, v60, 10, v61')
    b('s_sub_u32 s30, s33, 4')
    b('s_lshl_b32 s28, s30, 12')
    b('s_add_u32 s28, s28, %d' % BB)
    b('s_lshl_b32 s29, s30, 8')
    b('s_lshl_b32 s7, s2, 3')
    b('s_add_u32 s7, s7, s33')
    b('s_cmp_lg_u32 s7, 4')
    b('s_waitcnt lgkmcnt(0)')
    b('s_cbranch_scc1 K1_NOTAG')
    b('s_or_b32 s52, s52, 1')
    b('v_mov_b32 v114, s52')
    b('global_store_dword v111, v114, s[50:51] sc1')
    b.label('K1_NOTAG')
    srd(b, 24, 8, 's6', 16384)
    for i in range(4):
        b('s_add_u32 m0, s28, %d' % (1024 * i))
        b('buffer_load_dwordx4 v61, s[24:27], s29 offen lds')
        b('s_add_u32 s29, s29, 4096')
    for i in range(4):
        b('global_load_dwordx4 %s, v2, s[24:25] offset:%d' % (vr(4 + 4 * i, 4), 1024 * i))
    b('v_bfe_u32 v62, v1, 2, 2')
    b('v_and_b32 v63, 1, v60')
    b('v_lshl_add_u32 v64, v63, 3, v62')
    b('v_lshlrev_b32 v64, 8, v64')
    b('v_lshrrev_b32 v65, 5, v1')
    b('v_bfe_u32 v66, v1, 1, 1')
    b('v_lshl_add_u32 v66, v65, 1, v66')
    b('v_lshl_add_u32 v66, v62, 2, v66')
    b('v_lshl_add_u32 v64, v66, 4, v64')
    b('v_and_b32 v66, 1, v1')
    b('v_lshl_add_u32 v64, v66, 3, v64')
    b('v_add_u32 v64, s28, v64')
    for i in range(1, 4):
        b('v_xor_b32 v%d, %d, v64' % (88 + i, 64 * i))
    b('v_mov_b32 v88, v64')
    b('v_and_b32 v66, 15, v1')
    b('v_lshl_add_u32 v66, v65, 4, v66')
    b('v_lshlrev_b32 v66, 5, v66')
    b('v_lshl_add_u32 v65, v63, 4, v66')
    b('s_lshl_b32 s7, s30, 12')
    b('s_add_u32 s7, s7, s6')
    b('s_add_u32 s7, s7, %s' % hex(WS_XT))
    b(add64(10, 4, 's7'))
    b('s_lshl_b32 s7, s2, 7')
    b('s_add_u32 s7, s7, %s' % hex(WS_LST))
    b(add64(16, 4, 's7'))
    b('v_bfe_u32 v67, v1, 4, 1')
    b('v_lshlrev_b32 v67, 1, v67')
    b('v_lshrrev_b32 v68, 5, v1')
    b('v_add_u32 v67, v67, v68')
    b('v_lshl_add_u32 v67, v3, 2, v67')
    b('v_lshlrev_b32 v67, 2, v67')
    XF, T = 20, 68
    stamp(b, 1)
    b('s_waitcnt vmcnt(4)')
    stamp(b, 2)
    for i in range(4):
        for e in range(2):
            b('ds_read_b64_tr_b16 %s, v%d offset:%d' % (vr(92 + 4 * i + 2 * e, 2), 88 + i, 1024 * e))
    for i in range(4):
        b('s_waitcnt lgkmcnt(%d)' % (6 - 2 * i))
        b('global_store_dwordx4 v65, %s, s[10:11] offset:%d sc1' % (vr(92 + 4 * i, 4), 1024 * i))
    for i in range(4):
        b('s_waitcnt vmcnt(%d)' % (7 - i))
        x = XF + 8 * i
        t = T + 4 * i
        for k in range(4):
            E(b, unpack(x + 2 * k, 4 + 4 * i + k))
        b(pk('add', t, [('p', x), ('p', x + 2)]))
        b(pk('mul', t + 2, [('p', x), ('p', x)]))
        b(pk('add', t, [('p', t), ('p', x + 4)]))
        b(pk('fma', t + 2, [('p', x + 2), ('p', x + 2), ('p', t + 2)]))
        b(pk('add', t, [('p', t), ('p', x + 6)]))
        b(pk('fma', t + 2, [('p', x + 4), ('p', x + 4), ('p', t + 2)]))
        b('v_add_f32 v%d, v%d, v%d' % (52 + i, t, t + 1))
        b(pk('fma', t + 2, [('p', x + 6), ('p', x + 6), ('p', t + 2)]))
        b('v_add_f32 v%d, v%d, v%d' % (56 + i, t + 2, t + 3))
    red = []
    for r in (52, 56):
        red += ['v_permlane32_swap_b32 v%d, v%d' % (r, r + 1), 'v_permlane32_swap_b32 v%d, v%d' % (r + 2, r + 3)]
    for r in (52, 56):
        red += ['v_add_f32 v%d, v%d, v%d' % (r, r, r + 1), 'v_add_f32 v%d, v%d, v%d' % (r + 2, r + 2, r + 3)]
    for r in (52, 56):
        red += ['v_permlane16_swap_b32 v%d, v%d' % (r, r + 2)]
    for r in (52, 56):
        red += ['v_add_f32 v%d, v%d, v%d' % (r, r, r + 2)]
    red += row_reduce('add', [52, 56])
    red += ['v_mul_f32 v52, %s, v52' % fhex(1.0 / 512), 'v_mul_f32 v56, %s, v56' % fhex(1.0 / 512),
            'v_fma_f32 v56, -v52, v52, v56', 'v_max_f32 v56, 0, v56', 'v_cvt_pk_bf16_f32 v53, v56, v52',
            'v_lshlrev_b32 v56, 16, v53', 'v_and_b32 v52, 0xffff0000, v53',
            'v_add_f32 v56, %s, v56' % fhex(1e-5)] + rnd_bf16(56) + ['v_sqrt_f32 v56, v56'] + rnd_bf16(56) + \
           ['v_rcp_f32 v56, v56', 'v_mul_f32 v52, -v52, v56']
    E(b, red)
    b('s_mov_b32 exec_lo, 0x00010001')
    b('s_mov_b32 exec_hi, 0x00010001')
    b('global_store_dword v67, v56, s[16:17] sc1')
    b('global_store_dword v67, v52, s[16:17] offset:64 sc1')
    b('s_mov_b64 exec, -1')
    stamp(b, 3)
    b('s_barrier')
    b('s_branch K1_PUB')
    b.label('K1_NOTXT')
    b('s_cmp_ge_u32 s2, %d' % (N_XT + N_MOD))
    b('s_cbranch_scc1 K1_IDLE')
    b('s_sub_u32 s6, s2, %d' % N_XT)
    b('s_and_b32 s7, s6, 1')
    b('s_lshr_b32 s6, s6, 1')
    b('v_lshrrev_b32 v2, 3, v0')
    b('v_mul_u32_u24 v4, 6144, v2')
    b('v_and_b32 v5, 7, v0')
    b('v_lshl_add_u32 v60, v5, 4, v4')
    b('v_lshlrev_b32 v2, 1, v2')
    b('s_mul_i32 s12, s7, %d' % (256 * 6144))
    b('s_lshl_b32 s13, s6, 7')
    b('s_add_u32 s12, s12, s13')
    b('s_lshl_b32 s13, s7, 9')
    b('s_waitcnt lgkmcnt(0)')
    b(add64(42, 42, 's12'))
    b(add64(40, 40, 's13'))
    for i in range(8):
        b('global_load_ushort v%d, v2, s[40:41] offset:%d' % (4 + i, 64 * i))
    for i in range(8):
        b('global_load_dwordx4 %s, v60, s[42:43]' % vr(64 + 4 * i, 4))
        if i < 7:
            b(add64(42, 42, str(32 * 6144)))
    b('v_lshlrev_b32 v2, 5, v0')
    b('v_add_u32 v2, %d, v2' % BB)
    stamp(b, 1)
    b('s_waitcnt vmcnt(8)')
    for i in range(8):
        b('v_lshlrev_b32 v%d, 16, v%d' % (4 + i, 4 + i))
    for i in range(8):
        b('v_mul_f32 v%d, %s, v%d' % (24 + i, fhex(-LOG2E), 4 + i))
    for i in range(8):
        b('v_exp_f32 v%d, v%d' % (24 + i, 24 + i))
    for i in range(0, 8, 2):
        b(pk('add', 24 + i, [('p', 24 + i), ('k', '1.0')]))
    for i in range(8):
        b('v_rcp_f32 v%d, v%d' % (24 + i, 24 + i))
    for i in range(0, 8, 2):
        b(pk('mul', 4 + i, [('p', 4 + i), ('p', 24 + i)]))
    for i in range(0, 8, 2):
        E(b, rnd_pair(4 + i, 24))
    for i in range(8):
        b('s_waitcnt vmcnt(%d)' % (7 - i))
        for k in range(4):
            E(b, unpack(24 + 2 * k, 64 + 4 * i + k))
        for k in range(4):
            if i == 0:
                b(pk('mul', 32 + 2 * k, [('p', 24 + 2 * k), ('b', 4 + i)]))
            else:
                b(pk('fma', 32 + 2 * k, [('p', 24 + 2 * k), ('b', 4 + i), ('p', 32 + 2 * k)]))
    stamp(b, 2)
    b('ds_write_b128 v2, v[32:35]')
    b('ds_write_b128 v2, v[36:39] offset:16')
    b('s_cmp_lg_u32 s33, 4')
    b('s_waitcnt lgkmcnt(0)')
    b('s_barrier')
    stamp(b, 3)
    b('s_cbranch_scc1 K1_PUB')
    b('v_lshlrev_b32 v2, 2, v0')
    b('v_add_u32 v2, %d, v2' % BB)
    for k in range(16):
        b('ds_read2st64_b32 %s, v2 offset0:%d offset1:%d' % (vr(4 + 2 * k, 2), 2 * k, 2 * k + 1))
    b('s_lshl_b32 s6, s6, 8')
    b('s_mul_i32 s7, s7, 12288')
    b('s_add_u32 s6, s6, s7')
    b('v_lshl_add_u32 v2, v0, 2, s6')
    b('s_waitcnt lgkmcnt(0)')
    for w in (16, 8, 4, 2):
        for k in range(0, w, 2):
            b(pk('add', 4 + k, [('p', 4 + k), ('p', 4 + w + k)]))
    b('v_add_f32 v4, v4, v5')
    b('global_store_dword v2, v4, s[4:5] sc1')
    b('s_branch K1_PUB')
    b.label('K1_IDLE')
    b('s_waitcnt lgkmcnt(0)')
    b('s_barrier')
    b.label('K1_PUB')
    WR = 120

    def wreq():
        b('s_and_b32 s12, s2, 3')
        b('s_bfe_u32 s13, s2, 0x10002')
        b('s_lshr_b32 s14, s2, 3')
        b('v_bfe_u32 v52, v0, 2, 2')
        b('v_and_b32 v53, 3, v0')
        b('v_lshl_add_u32 v52, v52, 3, v53')
        b('v_lshl_add_u32 v2, v3, 5, v52')
        b('v_mul_u32_u24 v2, 3584, v2')
        b('v_lshrrev_b32 v54, 4, v1')
        b('v_lshl_add_u32 v2, v54, 4, v2')
        b('s_mul_i32 s15, s12, %d' % (128 * 3584))
        b('s_lshl_b32 s16, s14, 7')
        b('s_add_u32 s15, s15, s16')
        b('s_cmp_eq_u32 s13, 0')
        b('s_cselect_b32 s8, s44, s46')
        b('s_cselect_b32 s9, s45, s47')
        b(add64(8, 8, 's15'))
        b(add64(10, 8, str(4 * 3584)))
        for ch in range(2):
            for ab in range(2):
                b('global_load_dwordx4 %s, v2, s[%d:%d] offset:%d' % (vr(WR + 8 * ch + 4 * ab, 4), 8 + 2 * ab, 9 + 2 * ab, 64 * ch))
        b('s_sub_u32 s30, s33, 4')
        b('s_lshl_b32 s28, s2, 13')
        srd(b, 24, 48, 's28', 8192)
        b('v_lshrrev_b32 v58, 3, v1')
        b('v_lshlrev_b32 v58, 10, v58')
        b('v_and_b32 v59, 7, v1')
        b('v_lshl_add_u32 v58, v59, 4, v58')
        b('s_lshl_b32 s29, s30, 8')
        b('s_lshl_b32 s28, s30, 11')
        b('s_add_u32 s28, s28, %d' % (FB_ + 4096))
        b('s_mov_b32 m0, s28')
        b('buffer_load_dwordx4 v58, s[24:27], s29 offen lds')
        b('s_add_u32 m0, s28, 1024')
        b('s_add_u32 s29, s29, 128')
        b('buffer_load_dwordx4 v58, s[24:27], s29 offen lds')
    b('global_load_dword v115, v111, s[50:51] sc1')
    if FW_EARLY:
        b('s_cmp_ge_u32 s2, %d' % N_FOLD)
        b('s_cbranch_scc1 K1_NOW')
        wreq()
    b.label('K1_NOW')
    b('v_mov_b32 v112, 1')
    b('s_lshr_b32 s34, s2, 2')
    b('s_lshl_b32 s34, s34, 7')
    b('s_and_b32 s35, s2, 3')
    b('s_lshl_b32 s35, s35, 2')
    b('s_add_u32 s34, s34, s35')
    b('v_mov_b32 v113, s34')
    b(add64(22, 4, hex(WS_G1)))
    b('s_cmp_ge_u32 s2, %d' % N_FOLD)
    b('s_cbranch_scc1 K1_W0')
    b('s_waitcnt vmcnt(%d)' % (6 if FW_EARLY else 0))
    b('s_branch K1_W1')
    b.label('K1_W0')
    b('s_waitcnt vmcnt(0)')
    b.label('K1_W1')
    stamp(b, 4)
    b('s_mov_b64 exec, 1')
    b('ds_add_rtn_u32 v114, v110, v112')
    b('s_mov_b32 s36, %d' % SPIN)
    b('s_waitcnt lgkmcnt(0)')
    b('v_readfirstlane_b32 s35, v114')
    b('s_cmp_lg_u32 s35, 3')
    b('s_cbranch_scc1 K1_NL')
    b.label('K1_T0')
    b('v_readfirstlane_b32 s35, v115')
    b('s_cmp_lg_u32 s35, 0')
    b('s_cbranch_scc1 K1_T1')
    b('global_load_dword v115, v111, s[50:51] sc1')
    b('s_sub_u32 s36, s36, 1')
    b('s_cmp_lg_u32 s36, 0')
    b('s_waitcnt vmcnt(0)')
    b('s_cbranch_scc1 K1_T0')
    b.label('K1_T1')
    b('global_store_dword v113, v115, s[22:23] sc1')
    b.label('K1_NL')
    b('s_mov_b64 exec, -1')
    stamp(b, 5)
    b('s_cmp_ge_u32 s2, %d' % N_FOLD)
    b('s_waitcnt lgkmcnt(0)')
    b('s_barrier')
    stamp(b, 6)
    b('s_cbranch_scc0 K1_FOLD')
    b('s_barrier')
    b('s_barrier')
    b('s_branch K1_FIN')
    b.label('K1_FOLD')
    if not FW_EARLY:
        wreq()
    b('s_lshl_b32 s16, s12, 9')
    b('s_add_u32 s16, s16, %d' % (3 * 2048))
    b('v_and_b32 v55, 127, v0')
    b('v_lshlrev_b32 v56, 2, v55')
    b('v_lshrrev_b32 v57, 7, v0')
    b('v_lshl_add_u32 v56, v57, 11, v56')
    b(add64(18, 4, 's16'))
    b('global_load_dword v20, v56, s[18:19] sc1')
    b(add64(18, 18, '12288'))
    b('global_load_dword v21, v56, s[18:19] sc1')
    b('s_setprio %d' % FOLD_PRIO)
    b('v_and_b32 v60, 1, v1')
    b('v_lshlrev_b32 v60, 4, v60')
    b('v_lshlrev_b32 v60, v60, 0x3f80' if False else 'v_mov_b32 v61, 0x3f80')
    b('v_lshlrev_b32 v60, v60, v61')
    b('v_bfe_u32 v61, v1, 1, 3')
    b('v_lshlrev_b32 v62, 2, v54')
    b('v_sub_u32 v61, v62, v61')
    for s_ in range(2):
        for p in range(4):
            b('v_cmp_eq_u32 vcc, %d, v61' % (8 * s_ - p))
            b('v_cndmask_b32 v%d, 0, v60, vcc' % (32 + 4 * s_ + p))
    for i in range(4):
        b('v_mov_b32 v%d, 0x3f803f80' % (48 + i))
    b('v_lshlrev_b32 v56, 2, v0')
    b('v_add_u32 v56, %d, v56' % FB_)
    b('v_lshlrev_b32 v63, 7, v3')
    b('v_lshl_add_u32 v63, v54, 5, v63')
    b('v_add_u32 v63, %d, v63' % FB_)
    b('v_lshlrev_b32 v2, 11, v3')
    b('v_lshl_add_u32 v2, v1, 4, v2')
    b('s_lshl_b32 s15, s14, 17')
    b('s_lshl_b32 s16, s12, 13')
    b('s_add_u32 s15, s15, s16')
    b('s_lshl_b32 s16, s13, 10')
    b('s_add_u32 s15, s15, s16')
    b('s_add_u32 s15, s15, %s' % hex(WS_WF))
    b(add64(20, 4, 's15'))
    b('v_cvt_f32_u32 v57, v57')
    b('s_waitcnt vmcnt(0)')
    b('v_add_f32 v20, v20, v21')
    E(b, rnd_bf16(20))
    b('v_add_f32 v20, v20, v57')
    E(b, rnd_bf16(20))
    b('ds_write_b32 v56, v20')
    b('v_bfe_u32 v59, v1, 2, 2')
    b('v_lshlrev_b32 v58, 5, v54')
    b('v_lshl_add_u32 v58, v59, 7, v58')
    b('v_lshl_add_u32 v58, v53, 3, v58')
    b('v_add_u32 v58, s28, v58')
    b('v_lshrrev_b32 v59, 5, v1')
    b('v_mul_u32_u24 v59, 114688, v59')
    b('v_and_b32 v60, 31, v1')
    b('v_lshl_add_u32 v59, v60, 4, v59')
    b('s_mul_i32 s26, s30, %d' % (4 * 114688))
    b('s_lshl_b32 s27, s2, 9')
    b('s_add_u32 s26, s26, s27')
    b('s_add_u32 s26, s26, %s' % hex(WS_WD))
    b(add64(24, 4, 's26'))
    b(add64(26, 24, str(2 * 114688)))
    b('v_readfirstlane_b32 s22, v0')
    b('s_waitcnt lgkmcnt(0)')
    b('s_barrier')
    SBR, OCR, D = 64, 72, 80
    b('ds_read_b128 %s, v63' % vr(SBR, 4))
    b('ds_read_b128 %s, v63 offset:16' % vr(SBR + 4, 4))
    b('ds_read_b128 %s, v63 offset:512' % vr(OCR, 4))
    b('ds_read_b128 %s, v63 offset:528' % vr(OCR + 4, 4))
    stamp(b, 7)
    b('s_waitcnt vmcnt(0)')
    stamp(b, 8)
    for i in range(4):
        b('ds_read_b64_tr_b16 %s, v58 offset:%d' % (vr(24 + 2 * i, 2), 512 * i))
    for nt in range(4):
        for ab in range(2):
            b('v_mfma_f32_16x16x32_bf16 %s, %s, %s, 0' % (vr(D + 8 * nt + 4 * ab, 4), vr(WR + 8 * (nt >> 1) + 4 * ab, 4), vr(32 + 4 * (nt & 1), 4)))
    b('s_waitcnt lgkmcnt(0)')
    b('global_store_dwordx4 v59, v[24:27], s[24:25] %s' % ST_WF)
    b('global_store_dwordx4 v59, v[28:31], s[26:27] %s' % ST_WF)
    for nt in range(4):
        d = D + 8 * nt
        o = 4 + 4 * nt
        b(pk('mul', 128 + 2 * nt, [('p', d), ('p', SBR)]))
        for k in range(1, 4):
            b(pk('fma', 128 + 2 * nt, [('p', d + 2 * k), ('p', SBR + 2 * k), ('p', 128 + 2 * nt)]))
        for k in range(4):
            b(pk('mul', d + 2 * k, [('p', d + 2 * k), ('p', OCR + 2 * k)]))
        for k in range(4):
            b('v_cvt_pk_bf16_f32 v%d, v%d, v%d' % (o + k, d + 2 * k, d + 2 * k + 1))
        b('global_store_dwordx4 v2, %s, s[20:21] %s' % (vr(o, 4), ST_WF))
        if nt < 3:
            b(add64(20, 20, '32768'))
        b('v_mfma_f32_16x16x32_bf16 %s, v[48:51], %s, 0' % (vr(136 + 4 * nt, 4), vr(o, 4)))
    for nt in range(4):
        b('v_add_f32 v%d, v%d, v%d' % (128 + nt, 128 + 2 * nt, 129 + 2 * nt))
    b('v_permlane32_swap_b32 v128, v129')
    b('v_permlane32_swap_b32 v130, v131')
    b('v_cmp_eq_u32 s[26:27], 1, v54')
    b('v_cmp_eq_u32 s[28:29], 2, v54')
    b('v_cmp_eq_u32 s[30:31], 3, v54')
    b('v_add_f32 v128, v128, v129')
    b('v_add_f32 v130, v130, v131')
    b('v_cndmask_b32 v136, v136, v144, s[26:27]')
    b('v_permlane16_swap_b32 v128, v130')
    b('v_cndmask_b32 v136, v136, v140, s[28:29]')
    b('v_add_f32 v137, v128, v130')
    b('v_cndmask_b32 v136, v136, v148, s[30:31]')
    b('v_lshlrev_b32 v56, 3, v0')
    b('v_add_u32 v56, %d, v56' % FB_)
    b('ds_write_b64 v56, v[136:137] offset:1024')
    stamp(b, 9)
    b('s_cmp_ge_u32 s22, 64')
    b('s_waitcnt lgkmcnt(0)')
    b('s_barrier')
    b('s_cbranch_scc1 K1_FIN')
    for w in range(4):
        b('ds_read_b64 %s, v56 offset:%d' % (vr(64 + 2 * w, 2), 1024 + 512 * w))
    b('v_and_b32 v2, 1, v54')
    b('v_lshlrev_b32 v2, 1, v2')
    b('v_lshrrev_b32 v3, 1, v54')
    b('v_add_u32 v2, v2, v3')
    b('v_lshlrev_b32 v2, 5, v2')
    b('v_and_b32 v3, 15, v1')
    b('v_add_lshl_u32 v2, v2, v3, 2')
    b('s_lshl_b32 s15, s14, 9')
    b('s_lshl_b32 s16, s13, 6')
    b('s_add_u32 s15, s15, s16')
    b('s_mul_i32 s16, s12, %d' % (2 * 3584 * 4))
    b('s_add_u32 s15, s15, s16')
    b('s_add_u32 s15, s15, %s' % hex(WS_CB))
    b(add64(20, 4, 's15'))
    b(add64(22, 20, str(3584 * 4)))
    b('s_waitcnt lgkmcnt(0)')
    b(pk('add', 64, [('p', 64), ('p', 66)]))
    b(pk('add', 68, [('p', 68), ('p', 70)]))
    b(pk('add', 64, [('p', 64), ('p', 68)]))
    b('global_store_dword v2, v64, s[20:21]')
    b('global_store_dword v2, v65, s[22:23]')
    b.label('K1_FIN')
    stamp_end(b, 0)
    b.label('K1_END')
    b('s_endpgm')
    return b.text(), 256, NSG
```

```python
from common import *

K2_WGS = 256
ST = 131072
CBL = ST + 4096
FLAG = CBL + 7 * 32 * 8
SCR = FLAG + 256
K2_LDS = SCR + 8192
PLANS = [
    ({-2: ['x0'], -1: ['x1', 'x2'], 0: ['x3'], 1: ['x4'], 2: ['x5'], 3: ['x6'], 4: ['x7']},
     {0: ['x0'], 1: ['x1'], 2: ['x2'], 3: ['x3'], 4: ['x4'], 5: ['x5'], 6: ['x6', 'x7']}),
    ({-2: ['x0'], -1: ['x1', 'x2'], 0: ['x3'], 1: ['x4'], 2: ['x5', 'x6'], 3: ['x7']},
     {0: ['x0'], 1: ['x1'], 2: ['x2'], 3: ['x3'], 4: ['x4'], 5: ['x5', 'x6', 'x7']}),
    ({-2: ['x0'], -1: ['x1', 'x2'], 0: ['x3', 'x4'], 1: ['x5', 'x6'], 2: ['x7']},
     {0: ['x0'], 1: ['x1'], 2: ['x2'], 3: ['x3'], 4: ['x4', 'x5', 'x6', 'x7']}),
    ({-2: ['x0'], -1: ['x1', 'x2'], 0: ['x3'], 1: ['x4'], 2: ['x5'], 3: ['x6'], 4: ['x7']},
     {0: ['x0'], 1: ['x1'], 2: ['x2'], 3: ['x3'], 4: ['x4'], 5: ['x5'], 6: ['x6'], 7: ['x7']}),
    ({-2: ['x0'], -1: ['x1', 'x2', 'x3'], 0: ['x4'], 1: ['x5'], 2: ['x6', 'x7']},
     {0: ['x0'], 1: ['x1'], 2: ['x2'], 3: ['x3'], 4: ['x4'], 5: ['x5', 'x6', 'x7']}),
]
PLAN, BARS = PLANS[opt('PLAN', 1)]
GATHER = max(BARS) - 1
WD0 = opt('WD0', 18)
AUXX = True
W0 = opt('W0', 4)
WP = opt('WP', 6)
_n, _u = WP, 0
WPAT = opt('WPAT', '12')
while _n < 32:
    _n += int(WPAT[_u % len(WPAT)])
    _u += 1
YB = max(4 * GATHER + 2, _u + (_u & 1), opt('YB', 0))
YN = min(YB, 28)
EPI = opt('EPI', 12)
NB = opt('NB', 2)
HD = 6
LPRIO = opt('LPRIO', 2)
CORR = 4 * GATHER + 2
NL = opt('NL', 4)
ILV = opt('ILV', False)
RESTF = opt('RESTF', True)
ROT = opt('ROT', 0)
ROT2 = opt('ROT2', 0)
OLDPRIO = opt('OLDPRIO', False)
SPIN = 0x8000
ST_OUT = opt('ST_OUT', '')
W, XB, ACC = 128, 16, 64


def k23():
    b = Builder()
    b('s_cmp_ge_u32 s2, %d' % K2_WGS)
    b('s_cbranch_scc1 K2_END')
    b('s_load_dwordx2 s[4:5], s[0:1], %d' % KA['ws'])
    b('s_load_dwordx2 s[50:51], s[0:1], %d' % KA['out'])
    stamp_init(b)
    b('v_lshrrev_b32 v2, 6, v0')
    b('v_and_b32 v1, 63, v0')
    b('v_readfirstlane_b32 s33, v2')
    b('s_and_b32 s6, s2, 7')
    b('s_lshr_b32 s7, s2, 3')
    b('s_lshr_b32 s8, s6, 1')
    b('s_lshl_b32 s8, s8, 2')
    b('s_lshr_b32 s9, s7, 3')
    b('s_add_u32 s8, s8, s9')
    b('s_and_b32 s30, s6, 1')
    b('s_lshl_b32 s30, s30, 3')
    b('s_and_b32 s10, s7, 7')
    b('s_add_u32 s30, s30, s10')
    if opt('MAP2', False):
        b('s_lshl_b32 s8, s6, 1')
        b('s_lshr_b32 s9, s7, 4')
        b('s_add_u32 s8, s8, s9')
        b('s_and_b32 s30, s7, 15')
    b('s_mul_i32 s9, s30, 7')
    b('v_lshlrev_b32 v2, 4, v1')
    b('s_lshl_b32 s10, s8, 17')
    b('s_add_u32 s10, s10, %s' % hex(WS_X1T))
    b('s_add_u32 s11, s9, s33')
    b('s_lshl_b32 s12, s11, 15')
    b('s_add_u32 s12, s12, %s' % hex(WS_WF))
    b('s_lshl_b32 s34, s33, 11')
    b('s_and_b32 s48, s8, 3')
    b('s_lshl_b32 s48, s48, 1')
    b('s_add_u32 s48, s48, s30')
    b('s_and_b32 s48, s48, %d' % ROT)
    b('s_cmp_eq_u32 s33, 7')
    b('s_waitcnt lgkmcnt(0)')
    b('s_cbranch_scc1 K2_AUX')
    srd(b, 16, 4, 's10', 131072)
    srd(b, 20, 4, 's12', 32768)

    def make_issue(vm, with_w):
        def issue(tag):
            c = int(tag[1])
            if tag[0] == 'x' and AUXX and c > 0:
                if with_w:
                    return []
                r = ['s_add_u32 s35, s48, %d' % c, 's_and_b32 s35, s35, 7', 's_lshl_b32 s35, s35, 14']
                for i in range(4):
                    r += ['s_mov_b32 m0, %d' % (16384 * c + 4096 * i)] + (['s_add_u32 s35, s35, 4096'] if i else [])
                    r += [vm.op('buffer_load_dwordx4 v2, s[16:19], s35 offen offset:%d lds' % (1024 * k), tag) for k in range(4)]
                return r
            if tag[0] == 'x':
                return ['s_lshl_b32 s35, s48, 14', 's_add_u32 s35, s35, s34', 's_mov_b32 m0, s34',
                        vm.op('buffer_load_dwordx4 v2, s[16:19], s35 offen lds', tag),
                        vm.op('buffer_load_dwordx4 v2, s[16:19], s35 offen offset:1024 lds', tag)]
            if not with_w:
                return []
            return ['s_movk_i32 s36, %d' % (4096 * c)] + \
                   [vm.op('buffer_load_dwordx4 %s, v2, s[20:23], s36 offen offset:%d' % (vr(W + 16 * c + 4 * k, 4), 1024 * k), tag) for k in range(4)]
        return issue

    def xreads(u):
        kk, hh = u >> 1, u & 1
        f = XB + 16 * (u % 3)
        o = (kk & 7) * 8192
        r = []
        if u in (16, 17):
            r += ['v_add_u32 v%d, 0x10000, v%d' % (4 + 4 * hh + j, 4 + 4 * hh + j) for j in range(4)]
        for j in range(4):
            r.append('ds_read_b64_tr_b16 %s, v%d offset:%d' % (vr(f + 4 * j, 2), 4 + 4 * hh + j, o))
            r.append('ds_read_b64_tr_b16 %s, v%d offset:%d' % (vr(f + 4 * j + 2, 2), 4 + 4 * hh + j, o + 1024))
        return r

    def phase2_setup():
        b('s_lshr_b32 s37, s30, 3')
        b('s_lshl_b32 s37, s37, 2')
        b('s_and_b32 s38, s30, 3')
        b('s_add_u32 s37, s37, s38')
        b('s_bfe_u32 s38, s30, 0x10002')
        b('s_and_b32 s39, s33, 1')
        b('s_bfe_u32 s42, s33, 0x10001')
        b('s_lshr_b32 s43, s33, 2')
        b('s_and_b32 s49, s30, 3')
        b('s_mul_i32 s49, s49, %d' % (ROT2 * 1024))
        b('s_mul_i32 s12, s37, %d' % (2 * 114688))
        b('s_mul_i32 s13, s33, %d' % (14 * 1024))
        b('s_add_u32 s12, s12, s13')
        b('s_add_u32 s12, s12, %s' % hex(WS_WD))
        srd(b, 24, 4, 's12', 114688 + 14 * 1024)
        b('s_lshl_b32 s12, s43, 8')
        b('v_xor_b32 v12, s12, v2')
        b('s_mul_i32 s12, s39, 114688')
        b('v_add_u32 v3, s12, v12')
        b('s_sub_u32 s12, 114688, s12')
        b('v_add_u32 v12, s12, v12')

    def wdload(vm, i):
        j = i >> 1
        r = []
        if i & 1 == 0:
            r += ['s_add_u32 s44, s49, %d' % (1024 * j), 's_sub_u32 s47, s44, 14336', 's_cselect_b32 s44, s44, s47']
        r.append('buffer_load_dwordx4 %s, v%d, s[24:27], s44 offen' % (vr(W + 4 * i, 4), 12 if i & 1 else 3))
        return r

    vm = VM(b)
    issue = make_issue(vm, True)

    def wl(i):
        r = []
        if i & 3 == 0:
            r += ['s_add_u32 s36, s48, %d' % (i >> 2), 's_and_b32 s36, s36, 7', 's_lshl_b32 s36, s36, 12']
        r.append(vm.op('buffer_load_dwordx4 %s, v2, s[20:23], s36 offen offset:%d' % (vr(W + 4 * i, 4), 1024 * (i & 3)), 'w%d' % (i >> 1)))
        return r
    E(b, issue('x0'))
    for i in range(W0):
        E(b, wl(i))
    b('s_barrier')
    b('v_lshrrev_b32 v12, 4, v1')
    b('v_bfe_u32 v13, v1, 2, 2')
    b('v_and_b32 v14, 3, v1')
    b('v_lshl_add_u32 v15, v12, 3, v13')
    b('v_lshlrev_b32 v15, 8, v15')
    b('v_lshl_add_u32 v15, v14, 3, v15')
    b('v_and_b32 v14, 1, v12')
    b('v_lshl_add_u32 v14, v13, 1, v14')
    b('v_lshl_add_u32 v4, v14, 5, v15')
    for tt in range(1, 8):
        b('v_xor_b32 v%d, %d, v4' % (4 + tt, 32 * tt))
    for i in range(W0, WP):
        E(b, wl(i))
    b('v_and_b32 v13, 15, v1')
    b('s_lshl_b32 s35, s33, 8')
    b('s_add_u32 s35, s35, %d' % CBL)
    b('v_lshl_add_u32 v14, v13, 3, s35')
    b('s_mov_b32 s35, %d' % ST)
    b('v_lshl_add_u32 v13, v13, 5, s35')
    b('v_cmp_gt_u32 s[40:41], 16, v1')
    b('s_mul_i32 s12, s8, 448')
    b('s_add_u32 s12, s12, s11')
    b('s_lshl_b32 s12, s12, 10')
    b('s_add_u32 s12, s12, %s' % hex(WS_HF))
    b(add64(14, 4, 's12'))
    phase2_setup()
    stamp(b, 1)
    b(vm.wait('x0', 'w0'))
    b('s_barrier')
    stamp(b, 2)
    if OLDPRIO:
        b('s_cmp_ge_u32 s33, 4')
        b('s_cbranch_scc1 K2_NP')
        b('s_setprio 1')
        b.label('K2_NP')
    if LPRIO:
        b('s_setprio %d' % LPRIO)
    E(b, xreads(0) + xreads(1))
    nw = WP
    for u in range(32):
        c = u >> 2
        if u & 1 == 0 and u:
            b(vm.wait('w%d' % (u >> 1)))
        if u & 3 == 2:
            if c + 1 in BARS:
                b('s_barrier')
            stamp(b, 3 + c)
        if u == CORR:
            A0, B0 = W + 32, W
            b('ds_read_b64 %s, v14' % vr(A0, 2))
            b('ds_read_b64 %s, v14 offset:128' % vr(A0 + 4, 2))
            for tt in range(8):
                b('ds_read_b128 %s, v13 offset:%d' % (vr(B0 + 4 * tt, 4), 512 * tt))
            b('v_pk_mov_b32 %s, 0, 0' % vr(A0 + 2, 2))
            b('v_pk_mov_b32 %s, 0, 0' % vr(A0 + 6, 2))
            b('s_waitcnt lgkmcnt(8)')
            for r in (0, 1, 4, 5):
                b('v_cndmask_b32 v%d, 0, v%d, s[40:41]' % (A0 + r, A0 + r))
            b('s_waitcnt lgkmcnt(0)')
            for tt in range(8):
                for m in range(2):
                    a = vr(ACC + 8 * tt + 4 * m, 4)
                    b('v_mfma_f32_16x16x32_bf16 %s, %s, %s, %s' % (a, vr(A0 + 4 * m, 4), vr(B0 + 4 * tt, 4), a))
        if u == YB:
            assert nw == 32
            b('s_cmp_lt_u32 s33, 4')
            b('s_cbranch_scc1 K2_NY')
            for i in range(YN):
                E(b, wdload(None, i))
            b.label('K2_NY')
        pend = []
        for _ in range(int(WPAT[u % len(WPAT)])):
            if nw < 32:
                pend += wl(nw)
                nw += 1
        if u == 31:
            pend += ['ds_read_b128 %s, v13 offset:%d' % (vr(48 + 4 * tt, 4), 512 * tt + 16) for tt in range(4)]
        fill = (xreads(u + 2) if u < 30 else []) + pend
        b('s_waitcnt lgkmcnt(%d)' % (8 if u < 31 else 0))
        f = XB + 16 * (u % 3)
        mm = []
        for j in range(4):
            for m in range(2):
                a = vr(ACC + 8 * (4 * (u & 1) + j) + 4 * m, 4)
                mm.append('v_mfma_f32_16x16x32_bf16 %s, %s, %s, %s' % (a, vr(W + 8 * (u >> 1) + 4 * m, 4), vr(f + 4 * j, 4), a if u > 1 else '0'))
        E(b, spread(mm, fill, 2))
    stamp(b, 11)
    if LPRIO:
        b('s_setprio 0')
    wdq = []
    if ILV:
        for i in range(0, YN, 2):
            wdq.append(['s_cmp_ge_u32 s33, 4', 's_cbranch_scc1 K2_S%d' % i] + wdload(None, i) + wdload(None, i + 1) + ['K2_S%d:' % i])
        rest = [wdload(None, i) + wdload(None, i + 1) for i in range(YN, 28 - NL, 2)]
        wdq = (rest + wdq) if RESTF else (wdq + rest)
    else:
        b('s_cmp_ge_u32 s33, 4')
        b('s_cbranch_scc1 K2_NO')
        for i in range(YN):
            E(b, wdload(None, i))
        b.label('K2_NO')
        for i in range(YN, 28 - NL):
            E(b, wdload(None, i))
    CO = lambda tt: 48 + 4 * tt if tt < 4 else 240 + 4 * (tt - 4)
    for tt in range(4, 8):
        b('ds_read_b128 %s, v13 offset:%d' % (vr(CO(tt), 4), 512 * tt + 16))
    b('s_waitcnt lgkmcnt(4)')
    cnt = [0]

    def ep(t):
        b(t)
        cnt[0] += 1
        if cnt[0] % EPI == 0 and wdq:
            E(b, wdq.pop(0))
    for p in range(4):
        T = 16 + 16 * (p & 1)
        if p == 2:
            b('s_waitcnt lgkmcnt(0)')
        tl = [(ACC + 8 * (2 * p + e) + 2 * k, T + 4 * e + 2 * k, CO(2 * p + e)) for e in range(2) for k in range(2)]
        for g, t, c in tl:
            ep(pk('mul', t, [('p', g), ('p', g)]))
        for g, t, c in tl:
            ep(pk('fma', t, [('p', t), ('b', c + 1), ('b', c)]))
        for g, t, c in tl:
            ep(pk('mul', t, [('p', t), ('p', g)]))
        for g, t, c in tl:
            ep('v_exp_f32 v%d, v%d' % (t, t))
            ep('v_exp_f32 v%d, v%d' % (t + 1, t + 1))
            ep(pk('mul', g, [('p', g), ('p', g + 4)]))
        for g, t, c in tl:
            ep(pk('fma', t, [('p', t), ('b', c + 2), ('b', c + 2)]))
        for k in range(8):
            ep('v_rcp_f32 v%d, v%d' % (T + k, T + k))
        for g, t, c in tl:
            ep(pk('mul', g, [('p', g), ('p', t)]))
        for n, (g, t, c) in enumerate(tl):
            ep('v_cvt_pk_bf16_f32 v%d, v%d, v%d' % (T + 8 + n, g, g + 1))
        ep('v_permlane16_swap_b32 v%d, v%d' % (T + 8, T + 10))
        ep('v_permlane16_swap_b32 v%d, v%d' % (T + 9, T + 11))
        ep('global_store_dwordx4 v2, %s, s[14:15] sc1' % vr(T + 8, 4))
        if p < 3:
            ep(add64(14, 14, '114688'))
    assert not wdq
    stamp(b, 12)
    for i in range(28 - NL, 28):
        E(b, wdload(None, i))
    NLATE = NL

    b.label('K2_P2')
    RS, GBR = 240, 248
    b('s_lshl_b32 s45, s37, 6')
    b('s_lshl_b32 s12, s39, 5')
    b('s_add_u32 s45, s45, s12')
    b('s_lshl_b32 s12, s43, 4')
    b('s_add_u32 s45, s45, s12')
    b('s_lshl_b32 s46, s38, 6')
    b('s_lshl_b32 s12, s42, 5')
    b('s_add_u32 s46, s46, s12')
    b('v_lshrrev_b32 v6, 5, v1')
    b('v_and_b32 v7, 31, v1')
    b('s_lshl_b32 s12, s45, 2')
    b('s_add_u32 s12, s12, %s' % hex(WS_GB))
    b(add64(14, 4, 's12'))
    b('v_lshlrev_b32 v8, 4, v6')
    b('global_load_dwordx4 %s, v8, s[14:15]' % vr(GBR, 4))
    b('global_load_dwordx4 %s, v8, s[14:15] offset:32' % vr(GBR + 4, 4))
    b('v_add_lshl_u32 v9, v7, s46, 1')
    b('v_lshl_add_u32 v9, v6, 10, v9')
    b('s_sub_u32 s12, s37, s48')
    b('s_and_b32 s12, s12, 7')
    b('s_lshl_b32 s12, s12, 6')
    b('s_and_b32 s13, s45, 63')
    b('s_add_u32 s12, s12, s13')
    b('s_lshl_b32 s12, s12, 8')
    b('v_add_u32 v9, s12, v9')
    for q in range(2):
        for i in range(4):
            b('v_xor_b32 v%d, %d, v9' % (10 + (i & 1), 64 * i + 32 * q))
            b('ds_read_u16 v%d, v%d offset:%d' % (RS + 4 * q + i, 10 + (i & 1), 2048 * q + 256 * i))
    b('s_lshl_b32 s12, s8, 7')
    b('s_add_u32 s12, s12, s46')
    b('s_lshl_b32 s12, s12, 10')
    b('s_lshl_b32 s13, s45, 1')
    b('s_add_u32 s12, s12, s13')
    b(add64(50, 50, 's12'))
    b('v_lshl_add_u32 v15, v7, 10, v8')
    b('s_lshl_b32 s12, s8, 1')
    b('s_add_u32 s12, s12, s38')
    b('s_mul_i32 s12, s12, %d' % (2 * 114688))
    b('s_mul_i32 s13, s33, %d' % (14 * 1024))
    b('s_add_u32 s12, s12, s13')
    b('s_add_u32 s12, s12, %s' % hex(WS_HF))
    srd(b, 20, 4, 's12', 114688 + 14 * 1024)
    b('s_mul_i32 s12, s42, 114688')
    b('v_add_u32 v13, s12, v2')
    b('s_sub_u32 s12, 114688, s12')
    b('v_add_u32 v14, s12, v2')
    b('s_waitcnt vmcnt(%d) lgkmcnt(0)' % (NLATE + 2))
    stamp(b, 9)
    b('s_cmp_lg_u32 s33, 7')
    b('s_barrier')
    stamp(b, 10)
    b('s_cbranch_scc1 K2_GO2')
    b('s_lshl_b32 s12, s8, 11')
    b('s_add_u32 s12, s12, %s' % hex(WS_FLG))
    b(add64(28, 4, 's12'))
    b('s_lshl_b32 s12, s30, 7')
    b('v_mov_b32 v4, s12')
    b('v_mov_b32 v5, 1')
    b('global_store_dword v4, v5, s[28:29] sc1')
    b('v_and_b32 v4, 15, v1')
    b('v_lshlrev_b32 v4, 7, v4')
    b('s_mov_b32 s36, %d' % SPIN)
    b.label('K2_POLL2')
    b('global_load_dword v16, v4, s[28:29] sc1')
    b('s_waitcnt vmcnt(0)')
    b('v_cmp_ne_u32 vcc, 1, v16')
    b('s_cmp_eq_u64 vcc, 0')
    b('s_cbranch_scc1 K2_GO2')
    b('s_sleep %d' % opt('SLP', 1))
    b('s_sub_u32 s36, s36, 1')
    b('s_cmp_lg_u32 s36, 0')
    b('s_cbranch_scc1 K2_POLL2')
    b.label('K2_GO2')
    b('s_barrier')
    stamp(b, 13)
    vm = VM(b)

    def hload(j):
        f = XB + 8 * (j % HD)
        r = []
        r += ['s_add_u32 s44, s49, %d' % (1024 * j), 's_sub_u32 s47, s44, 14336', 's_cselect_b32 s44, s44, s47']
        for h in range(2):
            r.append(vm.op('buffer_load_dwordx4 %s, v%d, s[20:23], s44 offen sc1' % (vr(f + 4 * h, 4), 13 + h), 'h%d' % j))
        return r
    for j in range(HD):
        E(b, hload(j))
    for x in range(1, 8):
        b('s_xor_b32 s12, s33, %d' % x)
        b('s_mul_i32 s12, s12, %d' % (7 * 2048))
        b('s_add_u32 s12, s12, %d' % (2048 * (x - 1)))
        b('v_add_u32 v%d, s12, v2' % (3 + x))
    b('s_mul_i32 s12, s33, %d' % (7 * 2048))
    b('v_add_u32 v3, s12, v2')
    for k in range(8):
        b('v_lshlrev_b32 v%d, 16, v%d' % (RS + k, RS + k))
    for j in range(14):
        f = XB + 8 * (j % HD)
        b(vm.wait('h%d' % j))
        for sl in range(4):
            a = vr(ACC + 16 * sl, 16)
            b('v_mfma_f32_32x32x16_bf16 %s, %s, %s, %s' % (a, vr(W + 8 * j + 4 * (sl & 1), 4), vr(f + 4 * (sl >> 1), 4), a if j else '0'))
        if j + HD < 14:
            E(b, hload(j + HD))
    stamp(b, 14)
    for x in (1, 2, 3, 5, 6, 7, 4):
        r = ACC + 16 * (x & 3) + 8 * (x >> 2)
        b('ds_write_b128 v%d, %s' % (3 + x, vr(r, 4)))
        b('ds_write_b128 v%d, %s offset:1024' % (3 + x, vr(r + 4, 4)))
    for k in range(0, 8, 2):
        b(pk('fma', RS + k, [('p', ACC + k), ('p', GBR + k), ('p', RS + k)]))
    b('s_waitcnt lgkmcnt(0)')
    b('s_barrier')
    for x in range(7):
        for h in range(2):
            b('ds_read_b128 %s, v3 offset:%d' % (vr(ACC + 8 * x + 4 * h, 4), 2048 * x + 1024 * h))
    b('s_waitcnt lgkmcnt(6)')
    for k in range(0, 8, 2):
        b(pk('add', ACC + k, [('p', ACC + k), ('p', ACC + 8 + k)]))
        b(pk('add', ACC + 16 + k, [('p', ACC + 16 + k), ('p', ACC + 24 + k)]))
    b('s_waitcnt lgkmcnt(2)')
    for k in range(0, 8, 2):
        b(pk('add', ACC + k, [('p', ACC + k), ('p', ACC + 16 + k)]))
        b(pk('add', ACC + 32 + k, [('p', ACC + 32 + k), ('p', ACC + 40 + k)]))
    b('s_waitcnt lgkmcnt(0)')
    for k in range(0, 8, 2):
        b(pk('add', ACC + k, [('p', ACC + k), ('p', ACC + 48 + k)]))
    for k in range(0, 8, 2):
        b(pk('add', ACC + k, [('p', ACC + k), ('p', ACC + 32 + k)]))
    for k in range(0, 8, 2):
        b(pk('fma', RS + k, [('p', ACC + k), ('p', GBR + k), ('p', RS + k)]))
    for k in range(4):
        b('v_cvt_pk_bf16_f32 v%d, v%d, v%d' % (ACC + k, RS + 2 * k, RS + 2 * k + 1))
    b('v_permlane32_swap_b32 v%d, v%d' % (ACC, ACC + 2))
    b('v_permlane32_swap_b32 v%d, v%d' % (ACC + 1, ACC + 3))
    b('global_store_dwordx4 v15, %s, s[50:51] %s' % (vr(ACC, 4), ST_OUT))
    stamp_end(b, 2)
    b('s_endpgm')

    b.label('K2_AUX')
    srd(b, 16, 4, 's10', 131072)
    vm = VM(b)
    issue = make_issue(vm, False)
    for t in PLAN[-2]:
        E(b, issue(t))
    b('s_barrier')
    b('s_setprio 3')
    for t in PLAN[-1]:
        E(b, issue(t))
    b('s_lshr_b32 s12, s30, 1')
    b('s_lshl_b32 s12, s12, 5')
    b('v_lshrrev_b32 v20, 1, v1')
    b('v_and_b32 v21, 3, v20')
    b('v_lshlrev_b32 v21, 6, v21')
    b('v_bfe_u32 v22, v20, 3, 1')
    b('v_lshl_add_u32 v21, v22, 5, v21')
    b('v_xor_b32 v21, s12, v21')
    b('v_lshl_add_u32 v21, v20, 8, v21')
    b('v_and_b32 v22, 1, v1')
    b('v_lshl_add_u32 v21, v22, 4, v21')
    b('s_and_b32 s13, s30, 1')
    b('s_lshl_b32 s31, s13, 16')
    b('s_lshl_b32 s12, s9, 7')
    b('s_add_u32 s12, s12, %s' % hex(WS_CB))
    b(add64(14, 4, 's12'))
    b('v_min_u32 v23, 55, v1')
    b('v_lshlrev_b32 v27, 4, v23')
    b('v_lshlrev_b32 v104, 5, v23')
    b('v_add_u32 v104, %d, v104' % CBL)
    b('v_lshlrev_b32 v105, 5, v1')
    b('v_add_u32 v105, %d, v105' % ST)
    b('v_mov_b32 v28, v21')
    b('v_lshrrev_b32 v20, 4, v1')
    b('v_bfe_u32 v21, v1, 2, 2')
    b('v_and_b32 v22, 3, v1')
    b('v_cmp_eq_u32 s[46:47], v20, v21')
    b('v_cmp_eq_u32 s[40:41], 1, v22')
    b('v_cmp_eq_u32 s[42:43], 2, v22')
    b('v_cmp_eq_u32 s[44:45], 3, v22')
    b('v_lshl_add_u32 v24, v20, 3, v21')
    b('v_lshlrev_b32 v24, 5, v24')
    b('v_lshl_add_u32 v24, v22, 3, v24')
    b('v_add_u32 v24, %d, v24' % SCR)
    for i in range(4):
        b('v_mov_b32 v%d, 0x3f803f80' % (112 + i))
    b('s_lshl_b32 s12, s8, 11')
    b('s_add_u32 s12, s12, %s' % hex(WS_SST))
    b(add64(28, 4, 's12'))
    b('s_lshl_b32 s13, s13, 10')
    b('s_lshr_b32 s12, s30, 1')
    b('s_lshl_b32 s12, s12, 7')
    b('s_add_u32 s12, s12, s13')
    b('v_and_b32 v25, 15, v1')
    b('v_lshl_add_u32 v25, v25, 3, s12')
    b('v_lshlrev_b32 v26, 3, v1')
    stamp(b, 1)
    b(vm.wait('x0') + ' lgkmcnt(0)')
    b('s_barrier')
    for i in range(8):
        b('s_mov_b32 m0, %d' % (SCR + 1024 * i))
        b(vm.op('buffer_load_dwordx4 v28, s[16:19], s31 offen lds', 'sh'))
        b('s_add_u32 s31, s31, 8192')
    for q in range(4):
        for w in range(2):
            if q or w:
                b(add64(14, 14, str(3584 * 4)))
            b(vm.op('global_load_dwordx4 %s, v27, s[14:15]' % vr(64 + 16 * w + 4 * q, 4), 'cb'))

    def share():
        b(vm.wait('sh'))
        for kk in range(8):
            for e in range(2):
                b('ds_read_b64_tr_b16 %s, v24 offset:%d' % (vr(32 + 4 * kk + 2 * e, 2), 1024 * kk + 128 * e))
        for kk in range(8):
            b('s_waitcnt lgkmcnt(%d)' % (14 - 2 * kk))
            f = vr(32 + 4 * kk, 4)
            b('v_mfma_f32_16x16x32_bf16 v[120:123], %s, %s, %s' % (f, f, 'v[120:123]' if kk else '0'))
            b('v_mfma_f32_16x16x32_bf16 v[116:119], v[112:115], %s, %s' % (f, 'v[116:119]' if kk else '0'))
        b('v_cndmask_b32 v117, v120, v121, s[40:41]')
        b('v_cndmask_b32 v117, v117, v122, s[42:43]')
        b('v_cndmask_b32 v117, v117, v123, s[44:45]')
        b('v_and_b32 v117, 0x7fffffff, v117')
        b('s_mov_b64 exec, s[46:47]')
        b(vm.op('global_store_dwordx2 v25, v[116:117], s[28:29] sc1', 'pub'))
        b('s_mov_b64 exec, -1')
        stamp(b, 2)

    def cbprep():
        b(vm.wait('cb'))
        for w in range(2):
            p = 64 + 16 * w
            for k in (0, 2):
                b(pk('add', p + k, [('p', p + k), ('p', p + 4 + k)]))
                b(pk('add', p + 8 + k, [('p', p + 8 + k), ('p', p + 12 + k)]))
            for k in (0, 2):
                b(pk('add', p + k, [('p', p + k), ('p', p + 8 + k)]))
        for j in range(4):
            for w in range(2):
                x = 64 + 16 * w + j
                t = 96 + 2 * j + w
                E(b, ['v_cvt_pk_bf16_f32 v%d, v%d, v%d' % (t, x, x), 'v_and_b32 v%d, 0xffff0000, v%d' % (x + 4, t),
                      'v_sub_f32 v%d, v%d, v%d' % (x, x, x + 4), 'v_cvt_pk_bf16_f32 v%d, v%d, v%d' % (t, x + 4, x)])
        b('ds_write_b128 v104, v[96:99]')
        b('ds_write_b128 v104, v[100:103] offset:16')
        phase2_setup()

    def gather():
        K0c = -2.0 * math.sqrt(2.0 / math.pi) * LOG2E
        b('s_mov_b32 s36, %d' % SPIN)
        b('s_mov_b32 s12, %s' % fhex(1.0 / 512))
        b('s_mov_b32 s14, %s' % fhex(1e-5))
        b.label('K2_POLLS')
        for i in range(4):
            b('global_load_dwordx2 %s, v26, s[28:29] offset:%d sc1' % (vr(64 + 2 * i, 2), 512 * i))
        b('s_waitcnt vmcnt(0)')
        b('v_or_b32 v72, v65, v67')
        b('v_or3_b32 v72, v72, v69, v71')
        b('v_cmp_gt_i32 vcc, 0, v72')
        b('s_cmp_eq_u64 vcc, 0')
        b('s_cbranch_scc1 K2_GOS')
        b('s_sleep 2')
        b('s_sub_u32 s36, s36, 1')
        b('s_cmp_lg_u32 s36, 0')
        b('s_cbranch_scc1 K2_POLLS')
        b.label('K2_GOS')
        b('v_add_f32 v82, v64, v68')
        b('v_add_f32 v83, v66, v70')
        b('v_add_f32 v80, v65, v69')
        b('v_add_f32 v81, v67, v71')
        b(pk('mul', 82, [('p', 82), ('sl', 12)]))
        b(pk('mul', 80, [('p', 80), ('sl', 12)]))
        b(pk('fma', 80, [('p', 82), ('p', 82), ('p', 80)], neg_lo=[1, 0, 0], neg_hi=[1, 0, 0]))
        B0, B1 = 88, 96
        b('v_cvt_pk_bf16_f32 v%d, -v82, -v82' % B0)
        b('v_cvt_pk_bf16_f32 v%d, -v83, -v83' % B1)
        b('v_max_f32 v80, 0, v80')
        b('v_max_f32 v81, 0, v81')
        E(b, rnd_pair(80, 84))
        b(pk('add', 80, [('p', 80), ('sl', 14)]))
        E(b, rnd_pair(80, 84))
        b('v_sqrt_f32 v80, v80')
        b('v_sqrt_f32 v81, v81')
        b('v_pk_mov_b32 %s, 0, 0' % vr(B0 + 2, 2))
        b('v_pk_mov_b32 %s, 0, 0' % vr(B1 + 2, 2))
        b('v_cvt_pk_bf16_f32 v%d, v80, v80' % (B0 + 1))
        b('v_cvt_pk_bf16_f32 v%d, v81, v81' % (B1 + 1))
        b('v_lshlrev_b32 v80, 16, v%d' % (B0 + 1))
        b('v_lshlrev_b32 v81, 16, v%d' % (B1 + 1))
        b('v_rcp_f32 v82, v80')
        b('v_rcp_f32 v83, v81')
        b('ds_write_b128 v105, %s' % vr(B0, 4))
        b('ds_write_b128 v105, %s offset:2048' % vr(B1, 4))
        b('v_mul_f32 v%d, v80, v80' % (B0 + 6))
        b('v_mul_f32 v%d, v81, v81' % (B1 + 6))
        b('v_mul_f32 v%d, %s, v82' % (B0 + 4, fhex(K0c)))
        b('v_mul_f32 v%d, %s, v83' % (B1 + 4, fhex(K0c)))
        b(pk('mul', 82, [('p', 82), ('p', 82)]))
        b('v_mul_f32 v82, %s, v82' % fhex(0.044715))
        b('v_mul_f32 v83, %s, v83' % fhex(0.044715))
        b('v_mul_f32 v%d, v82, v%d' % (B0 + 5, B0 + 4))
        b('v_mul_f32 v%d, v83, v%d' % (B1 + 5, B1 + 4))
        b('ds_write_b128 v105, %s offset:16' % vr(B0 + 4, 4))
        b('ds_write_b128 v105, %s offset:2064' % vr(B1 + 4, 4))
        stamp(b, 11)
    for c in range(8):
        for t in PLAN.get(c, []):
            E(b, issue(t))
        if c == 1:
            share()
        if c == 2:
            cbprep()
        if c + 1 in BARS:
            if c == GATHER:
                gather()
                b('s_waitcnt lgkmcnt(0)')
            else:
                b(vm.wait(*BARS[c + 1]))
            stamp(b, 3 + c)
            b('s_barrier')
    if GATHER + 1 not in BARS:
        gather()
    for i in range(28):
        E(b, wdload(vm, i))
    b('s_setprio 0')
    stamp(b, 12)
    b('s_waitcnt vmcnt(0)')
    b('s_branch K2_P2')
    b.label('K2_END')
    b('s_endpgm')
    return b.text(), 256, NSG
```

```python
import sys
from common import *
import g01, g23


def build(kernels, data):
    head = open('cdna_kernels/%s.s.ref' % NAME).read().split('\n')
    out = [l for l in head if l.startswith(';') and '@launch' not in l and 'Override launch' not in l and 'grid=ceil' not in l]
    for name, fn, grid, block, lds in kernels:
        out.append('; @launch kernel=%s grid=(%d,1,1) block=(%d,1,1) lds=%d' % (name, grid, block, lds))
    out.append('.amdgcn_target "amdgcn-amd-amdhsa--gfx950"')
    out.append('.text')
    desc = []
    for name, fn, grid, block, lds in kernels:
        text, nv, ns = fn()
        out.append('.globl %s\n.p2align 8\n.type %s,@function\n%s:' % (name, name, name))
        if WS_BASE:
            text = text.replace('s_load_dwordx2 s[4:5], s[0:1], 136', 's_load_dwordx2 s[4:5], s[0:1], 136\n  s_waitcnt lgkmcnt(0)\n  s_add_u32 s4, s4, 0x%x\n  s_addc_u32 s5, s5, 0' % WS_BASE)
        out.append(text)
        desc.append('.p2align 6\n.amdhsa_kernel %s\n  .amdhsa_next_free_vgpr %d\n  .amdhsa_next_free_sgpr %d\n  .amdhsa_accum_offset %d\n'
                    '  .amdhsa_group_segment_fixed_size 0\n  .amdhsa_kernarg_size 144\n  .amdhsa_user_sgpr_count 2\n'
                    '  .amdhsa_user_sgpr_kernarg_segment_ptr 1\n  .amdhsa_system_sgpr_workgroup_id_x 1\n.end_amdhsa_kernel'
                    % (name, nv, ns, (min(nv, 256) + 3) // 4 * 4))
    out.append('CODE_END:')
    out.append('.section .rodata,"a"')
    out += desc
    out += data
    return '\n'.join(out) + '\n'


if __name__ == '__main__':
    ks = [('prep_kernel', g01.k01, g01.WGS, 512, g01.LDS),
          ('gemm1_kernel', g23.k23, g23.K2_WGS, 512, g23.K2_LDS)]
    n = int(sys.argv[2]) if len(sys.argv) > 2 else len(ks)
    open(sys.argv[1], 'w').write(build(ks[:n], [g01.gather_table()]))
```

```python
import math, os, struct
import numpy as np
from asmlib import Builder, vr, sr, fhex

NAME = 'adaLN_cond__ssm_conv_s4__glu_gated_geglu__prompt'

WS_MODP = 0x0
WS_GB = 0x10000
WS_CB = 0x11000
WS_SST = 0x40000
WS_FLG = 0x48000
WS_WDF = 0x58000
WS_LST = 0x50000
WS_G3 = 0x60000
WS_G1 = 0x5A000
WS_LNT = 0x100000
WS_XT = 0x300000
WS_KC = 0x500000
KCS = 4352
WS_X1T = 0xA00000
WS_WF = 0xC00000
WS_WD = 0x1000000
WS_HF = 0x1200000
WS_STAMP = 0x2000000
if os.environ.get('LAY') == '1':
    WS_XT, WS_KC, WS_HF, WS_X1T, WS_WF, WS_WD = 0x100000, 0x300000, 0x100000, 0x800000, 0xA00000, 0xD80000
if os.environ.get('LAY') == '2':
    WS_XT, WS_KC, WS_X1T, WS_WF, WS_WD, WS_HF = 0x60000, 0x260000, 0x480000, 0x680000, 0xA00000, 0xBC0000

WS_BASE = int(os.environ.get('WS_BASE', '0')) << 20
LOG2E = 1.4426950408889634
KA = dict(u=0, are=8, aim=16, bre=24, bim=32, cre=40, cim=48, ldt=56, dsk=64, bx=72, wg=80, wu=88, wd=96, c=104, wm=112,
          out=120, dbg=128, ws=136)
STAMPS = bool(os.environ.get('STAMPS'))
ONE = os.environ.get('ONE', '0') != '0'
CNT_ADDR = 105728
NSG = 100 if STAMPS else 60


def opt(name, default):
    v = os.environ.get(name)
    if v is None:
        return default
    return type(default)(v) if not isinstance(default, bool) else v not in ('0', '')


def pk(op, d, srcs, neg_lo=None, neg_hi=None):
    cross = lambda s_: s_[0] == 'x' or (s_[0] == 'b' and s_[1] & 1)
    srcs = list(srcs)
    if cross(srcs[1]):
        srcs[0], srcs[1] = srcs[1], srcs[0]
        for n_ in (neg_lo, neg_hi):
            if n_:
                n_[0], n_[1] = n_[1], n_[0]
    assert not any(cross(s_) for s_ in srcs[1:]), (op, d, srcs)
    ops, sl, sh = [], [], []
    for kind, r in srcs:
        if kind == 'p':
            assert r % 2 == 0
            ops.append(vr(r, 2)); sl.append(0); sh.append(1)
        elif kind == 'x':
            ops.append(vr(r, 2)); sl.append(1); sh.append(0)
        elif kind == 'b':
            ops.append(vr(r & ~1, 2)); sl.append(r & 1); sh.append(r & 1)
        elif kind == 'sl':
            ops.append(sr(r, 2)); sl.append(0); sh.append(0)
        elif kind == 'sh':
            ops.append(sr(r, 2)); sl.append(1); sh.append(1)
        else:
            ops.append(r); sl.append(0); sh.append(0)
    assert d % 2 == 0
    s = 'v_pk_%s_f32 %s, %s op_sel:[%s] op_sel_hi:[%s]' % (op, vr(d, 2), ', '.join(ops), ','.join(map(str, sl)), ','.join(map(str, sh)))
    if neg_lo:
        s += ' neg_lo:[%s]' % ','.join(map(str, neg_lo))
    if neg_hi:
        s += ' neg_hi:[%s]' % ','.join(map(str, neg_hi))
    return s


def cmul(d, a, b, bim):
    assert bim % 2 == 0
    return [pk('mul', d, [('p', a), ('b', b)]),
            pk('fma', d, [('x', a), ('b', bim), ('p', d)], neg_lo=[1, 0, 0])]


def weave(*seqs):
    out = []
    seqs = [list(s) for s in seqs]
    while any(seqs):
        for s in seqs:
            if s:
                out.append(s.pop(0))
    return out


def spread(main, fill, per):
    out = []
    fill = list(fill)
    for m in main:
        out.append(m)
        out += fill[:per]
        fill = fill[per:]
    return out + fill


def row_reduce(op, regs):
    out = []
    for m in ('row_ror:8', 'row_ror:4', 'row_ror:2', 'row_ror:1'):
        for r in regs:
            out.append('v_%s_f32_dpp v%d, v%d, v%d %s row_mask:0xf bank_mask:0xf' % (op, r, r, r, m))
    return out


def wave_reduce(op, regs):
    out = row_reduce(op, regs)
    for m, rm in (('row_bcast:15', '0xa'), ('row_bcast:31', '0xc')):
        for r in regs:
            out.append('v_%s_f32_dpp v%d, v%d, v%d %s row_mask:%s bank_mask:0xf' % (op, r, r, r, m, rm))
    return out


def rnd_bf16(r):
    return ['v_cvt_pk_bf16_f32 v%d, v%d, v%d' % (r, r, r), 'v_lshlrev_b32 v%d, 16, v%d' % (r, r)]


def rnd_pair(a, t):
    return ['v_cvt_pk_bf16_f32 v%d, v%d, v%d' % (t, a, a + 1),
            'v_lshlrev_b32 v%d, 16, v%d' % (a, t),
            'v_and_b32 v%d, 0xffff0000, v%d' % (a + 1, t)]


def unpack(dst, src):
    return ['v_lshlrev_b32 v%d, 16, v%d' % (dst, src), 'v_and_b32 v%d, 0xffff0000, v%d' % (dst + 1, src)]


def add64(d, b, off):
    return 's_add_u32 s%d, s%d, %s\ns_addc_u32 s%d, s%d, 0' % (d, b, off, d + 1, b + 1)


def srd(b, d, base, off, nbytes):
    b('s_add_u32 s%d, s%d, %s' % (d, base, off))
    b('s_addc_u32 s%d, s%d, 0' % (d + 1, base + 1))
    b('s_mov_b32 s%d, %d' % (d + 2, nbytes))
    b('s_mov_b32 s%d, 0x20000' % (d + 3))


def E(b, seq):
    for s in seq:
        b(s)


class VM:
    def __init__(self, b):
        self.b = b
        self.tags = []

    def op(self, text, tag):
        self.tags.append(tag)
        return text

    def cnt(self, *need):
        last = max(i for i, t in enumerate(self.tags) if t in need)
        n = len(self.tags) - 1 - last
        n = min(n, 62)
        return n

    def wait(self, *need):
        return 's_waitcnt vmcnt(%d)' % self.cnt(*need)


_dbgn = 0
DBGSEL = {0: [(100, 0, [(0, 0), (1, 2), (2, 15)]), (300, 0, [(3, 15)]), (500, 0, [(4, 15)])],
          1: [(100, 0, [(5, 0), (6, 4), (7, 15)]), (356, 0, [(8, 2), (9, 15)])],
          2: [(100, 5, [(10, 0), (11, 2), (12, 11), (13, 12), (14, 13), (15, 15)])]}


def stamp(b, i):
    if STAMPS:
        b('%s s[%d:%d]' % ('s_memtime' if os.environ.get('STAMP_CLK') else 's_memrealtime', 64 + 2 * i, 65 + 2 * i))


def stamp_init(b):
    if STAMPS:
        for i in range(32):
            b('s_mov_b32 s%d, 0' % (64 + i))
        b('v_lshrrev_b32 v1, 6, v0')
        b('s_nop 1')
        b('v_readfirstlane_b32 s62, v1')
        stamp(b, 0)


def stamp_end(b, kern, more=False):
    if STAMPS:
        b('s_waitcnt vmcnt(0)')
        stamp(b, 15)
        b('s_lshl_b32 s60, s2, 3')
        b('s_add_u32 s60, s60, s62')
        b('s_lshl_b32 s60, s60, 7')
        b('s_add_u32 s60, s60, %d' % (WS_STAMP + kern * 1024 * 8 * 128))
        b('s_add_u32 s60, s4, s60')
        b('s_addc_u32 s61, s5, 0')
        b('s_mov_b64 exec, 1')
        b('v_mov_b32 v0, 0')
        b('s_waitcnt lgkmcnt(0)')
        if os.environ.get('DBG') and kern == 2:
            b('s_cmp_lg_u32 s2, 100')
            b('s_cbranch_scc1 DBGX')
            b('s_cmp_lg_u32 s62, 5')
            b('s_cbranch_scc1 DBGX')
            b('s_load_dwordx2 s[58:59], s[0:1], 128')
            b('s_waitcnt lgkmcnt(0)')
            off = int(os.environ['DBG'])
            b('s_sub_u32 s58, s58, %d' % off)
            b('s_subb_u32 s59, s59, 0')
            for kk in range(3):
                for wg, wv, items in DBGSEL[kk]:
                    for slot, st in items:
                        if kk == 2:
                            b('v_mov_b32 v4, s%d' % (64 + 2 * st))
                        else:
                            b('v_mov_b32 v5, %d' % (WS_STAMP + kk * 1024 * 8 * 128 + (wg * 8 + wv) * 128 + 8 * st))
                            b('global_load_dword v4, v5, s[4:5]')
                            b('s_waitcnt vmcnt(0)')
                        b('global_store_dword v0, v4, s[58:59] offset:%d' % (4 * slot))
            b.label('DBGX')
        for i in range(32):
            b('v_mov_b32 v%d, s%d' % (4 + i, 64 + i))
        for i in range(8):
            b('global_store_dwordx4 v0, %s, s[60:61] offset:%d' % (vr(4 + 4 * i, 4), 16 * i))
        if more:
            b('s_mov_b64 exec, -1')
            for i in range(32):
                b('s_mov_b32 s%d, 0' % (64 + i))
            stamp(b, 0)


def bf16_round_int(l):
    if l < 0:
        return l
    u = struct.unpack('<I', struct.pack('<f', float(l)))[0]
    u = ((u + 0x7FFF + ((u >> 16) & 1)) >> 16) << 16
    return int(struct.unpack('<f', struct.pack('<I', u))[0])


CODE_PF = opt('CODE_PF', True)


def code_prefetch(b, tag, first, vidx, vt, st, back=False):
    b('s_getpc_b64 s[%d:%d]' % (st, st + 1))
    b.label('PF_%s' % tag)
    if back:
        b('s_sub_u32 s%d, s%d, PF_%s-%s' % (st, st, tag, first))
        b('s_subb_u32 s%d, s%d, 0' % (st + 1, st + 1))
    else:
        b('s_add_u32 s%d, s%d, %s-PF_%s' % (st, st, first, tag))
        b('s_addc_u32 s%d, s%d, 0' % (st + 1, st + 1))
    b('v_lshlrev_b32 v%d, 7, v%d' % (vt, vidx))
    b('v_min_u32 v%d, CODE_END-%s-4, v%d' % (vt, first, vt))
    b('global_load_dword v%d, v%d, s[%d:%d]' % (vt, vt, st, st + 1))


def load_ws(b):
    b('s_load_dwordx2 s[4:5], s[0:1], %d' % KA['ws'])


def rebase_ws(b):
    if WS_BASE:
        b(add64(4, 4, hex(WS_BASE)))

POLL = opt('POLL', 'sc1')
```

```python
from common import *

WGS = 256
KNAME = NAME + '_kernel' if ONE else 'prep_kernel'
TW = 8768
KB = 256
HB = KB + 2 * 8448
CS_ = 5760
PB = HB + 4 * CS_
BB = PB + 4 * 9216
FB_ = BB + 16384
CNT = FB_ + 12288
MC = CNT + 64
SB = CNT + 128
XS = SB + 16384 + 32
LDS = XS + 512
ST_X1 = opt('ST_X1', 'sc1')
ST_WF = opt('ST_WF', 'sc1')
FOLD_PRIO = opt('FOLD_PRIO', 3)
SPIN = 0x20000
NTM = opt('NT', 0)
ntf = lambda bit: ' nt' if NTM & bit else ''
FW_GO = opt('FW_GO', True)
MOD_LATE = opt('MOD_LATE', True)
G2_FIRST = False
BFIRST = opt('BFIRST', True)
SWAP = opt('SWAP', True)
SCANL = opt('SCANL', True)
EPOLL = opt('EPOLL', False)
ORD2 = opt('ORD2', True)
TABL = opt('TABL', True)
N_XT, N_MOD, N_FOLD = 128, 96, 224


def gather_table():
    rows = []
    for j4 in range(4):
        for tau in range(128):
            e = []
            for j in range(4 * j4, 4 * j4 + 4):
                v = bf16_round_int(2047 - 8 * tau - (j & 7) - 1024 * (j >> 3))
                e.append(PB + 4 * (v + (v >> 4)))
            rows.append('.long ' + ','.join(map(str, e)))
    return '.p2align 8\nK0_TAB:\n' + '\n'.join(rows)


def transpose_write_addr(b, va, lane, wave_v, t):
    b('v_lshlrev_b32 v%d, 8, v%d' % (t, lane))
    b('v_lshl_add_u32 v%d, v%d, 3, v%d' % (t, wave_v, t))
    b('v_and_b32 v%d, 7, v%d' % (va, lane))
    b('v_lshlrev_b32 v%d, 4, v%d' % (va, va))
    b('v_xor_b32 v%d, v%d, v%d' % (va, va, t))
    for j in range(1, 4):
        b('v_xor_b32 v%d, %d, v%d' % (va + j, 32 * j, va))


def perm_writes(WA, off):
    xs = []
    for j in range(8):
        sel = 's15' if j & 1 else 's14'
        t = 84 + 2 * (j & 1)
        xs.append('v_perm_b32 v%d, v%d, v%d, %s' % (t, 8 + (j >> 1), 4 + (j >> 1), sel))
        xs.append('v_perm_b32 v%d, v%d, v%d, %s' % (t + 1, 16 + (j >> 1), 12 + (j >> 1), sel))
        xs.append('ds_write_b64 v%d, %s offset:%d' % (WA + (j & 3), vr(t, 2), off + 128 * (j >> 2)))
    return xs


def lds_wait(b, tag, vaddr, off, val, vt, sleep, sc=46, st=45):
    b('s_mov_b32 s%d, %d' % (sc, 16 * SPIN))
    b.label('K1_L' + tag)
    b('ds_read_b32 v%d, v%d offset:%d' % (vt, vaddr, off))
    b('s_sub_u32 s%d, s%d, 1' % (sc, sc))
    b('s_waitcnt lgkmcnt(0)')
    b('v_readfirstlane_b32 s%d, v%d' % (st, vt))
    b('s_cmp_eq_u32 s%d, %d' % (st, val))
    b('s_cbranch_scc1 K1_X' + tag)
    if sleep:
        b('s_sleep %d' % sleep)
    b('s_cmp_lg_u32 s%d, 0' % sc)
    b('s_cbranch_scc1 K1_L' + tag)
    b.label('K1_X' + tag)


def k01():
    b = Builder()
    b('s_cmp_ge_u32 s2, %d' % WGS)
    b('s_cbranch_scc1 %s' % ('K2_END' if ONE else 'K1_END'))
    b('s_load_dwordx2 s[4:5], s[0:1], %d' % KA['ws'])
    stamp_init(b)
    if SWAP:
        b('v_xor_b32 v0, 256, v0')
    b('v_lshrrev_b32 v87, 6, v0')
    b('v_and_b32 v1, 63, v0')
    b('v_readfirstlane_b32 s33, v87')
    b('s_cmp_ge_u32 s33, 4')
    b('s_cbranch_scc1 K1_B')
    if not BFIRST:
        b('s_setprio 3')
    b('s_load_dwordx2 s[50:51], s[0:1], %d' % KA['dbg'])
    b('s_load_dwordx4 s[8:11], s[0:1], %d' % KA['are'])
    b('s_load_dwordx4 s[12:15], s[0:1], %d' % KA['bre'])
    b('s_load_dwordx4 s[16:19], s[0:1], %d' % KA['cre'])
    b('s_load_dwordx2 s[20:21], s[0:1], %d' % KA['ldt'])
    b('s_getpc_b64 s[30:31]')
    b('s_add_u32 s30, s30, K0_TAB@rel32@lo+4')
    b('s_addc_u32 s31, s31, K0_TAB@rel32@hi+12')
    b('s_and_b32 s6, s2, 7\ns_lshl_b32 s6, s6, 5\ns_lshr_b32 s7, s2, 3\ns_add_u32 s6, s6, s7\ns_lshl_b32 s6, s6, 1')
    b('s_lshl_b32 s7, s6, 8')
    b('v_and_b32 v160, 127, v0')
    b('v_lshlrev_b32 v161, 4, v160')
    G = 124
    b('v_lshl_add_u32 v2, v0, 1, s7')
    b('v_lshrrev_b32 v3, 7, v0')
    b('v_add_lshl_u32 v11, v3, s6, 1')
    b('s_waitcnt lgkmcnt(0)')
    if not ORD2:
        b('s_barrier')
    b('global_load_ushort v10, v11, s[20:21]')
    for i in range(6):
        b('global_load_ushort v%d, v2, s[%d:%d]%s' % (4 + i, 8 + 2 * i, 9 + 2 * i, ntf(1)))
    if ORD2:
        b('s_barrier')
    b('s_add_u32 s34, s30, 4096\ns_addc_u32 s35, s31, 0')
    def tabload():
        for i in range(4):
            b('global_load_dwordx4 %s, v161, s[%d:%d] offset:%d' % (vr(G + 4 * i, 4), 30 + 4 * (i >> 1), 31 + 4 * (i >> 1), 2048 * (i & 1)))
    if not TABL:
        tabload()
    b('s_mul_i32 s36, s33, %d' % TW)
    b('s_add_u32 s36, s36, %d' % PB)
    WB, RB = 164, 75
    b('v_lshl_add_u32 v%d, v1, 2, s36' % WB)
    for k in range(1, 4):
        b('v_add_u32 v%d, %d, v%d' % (WB + k, 1088 * k, WB))
    b('v_and_b32 v85, 15, v1')
    b('v_lshrrev_b32 v86, 4, v1')
    b('v_mul_u32_u24 v88, 272, v85')
    b('v_lshl_add_u32 v88, v86, 4, v88')
    b('v_add_u32 v%d, s36, v88' % RB)
    b('v_mul_u32_u24 v85, 68, v85')
    b('v_add_u32 v85, s36, v85')
    b('v_lshl_add_u32 v120, v86, 4, v85')
    b('v_mul_u32_u24 v87, 1088, v86')
    b('v_lshlrev_b32 v88, 3, v86')
    b('v_add_u32 v88, 1088, v88')
    b('v_max_u32 v87, v87, v88')
    b('v_add_u32 v121, v87, v85')
    b('v_lshrrev_b32 v87, 1, v86')
    b('v_mul_u32_u24 v87, 4352, v87')
    b('v_and_b32 v88, 1, v86')
    b('v_lshl_add_u32 v87, v88, 5, v87')
    b('v_add_u32 v122, v87, v85')
    b('v_mul_u32_u24 v2, 8448, v3')
    b('v_add_u32 v2, v161, v2')
    stamp(b, 1)
    b('s_waitcnt vmcnt(%d)' % (6 if TABL else 10))
    b('v_lshlrev_b32 v10, 16, v10')
    b('v_mul_f32 v10, %s, v10' % fhex(LOG2E))
    b('v_exp_f32 v10, v10')
    b('s_waitcnt vmcnt(%d)' % (0 if TABL else 4))
    if TABL:
        tabload()
    b('v_mov_b32 v80, %d' % CNT)
    b('v_mov_b32 v81, 1')
    b('ds_write_b32 v80, v81 offset:28')
    b('s_setprio 3')
    stamp(b, 2)
    for i in range(4, 10):
        b('v_lshlrev_b32 v%d, 16, v%d' % (i, i))
    E(b, rnd_bf16(10))
    b(pk('mul', 12, [('p', 4), ('b', 10)]))
    b(pk('mul', 6, [('p', 6), ('b', 10)]))
    b('v_mul_f32 v12, %s, v12' % fhex(LOG2E))
    b('v_mul_f32 v13, %s, v13' % fhex(1.0 / (2 * math.pi)))
    b('v_mov_b32 v4, v7')
    E(b, cmul(14, 8, 6, 4))

    def zpow(d, p, ta, tb):
        s = []
        if p == 1:
            s += ['v_exp_f32 v%d, v12' % ta, 'v_fract_f32 v%d, v13' % tb]
        else:
            s += ['v_mul_f32 v%d, %s, v12' % (ta, fhex(float(p))), 'v_mul_f32 v%d, %s, v13' % (tb, fhex(float(p))),
                  'v_exp_f32 v%d, v%d' % (ta, ta), 'v_fract_f32 v%d, v%d' % (tb, tb)]
        s += ['v_cos_f32 v%d, v%d' % (d, tb), 'v_sin_f32 v%d, v%d' % (d + 1, tb)]
        return s, [pk('mul', d, [('p', d), ('b', ta)])]
    Z1, Z16, ZB, US, VA, VB = 16, 18, 20, 36, 68, 70
    mx = ['v_max_f32 v72, abs(v14), abs(v15)'] + wave_reduce('max', [72]) + ['v_frexp_exp_i32_f32 v72, v72', 'v_readlane_b32 s22, v72, 63']
    a1, f1 = zpow(Z1, 1, 6, 7)
    a2, f2 = zpow(Z16, 16, 4, 5)
    a3, f3 = zpow(ZB, 256, 8, 9)
    zs = a1 + a2 + f1 + a3 + f2 + ['v_mov_b32 v%d, 0x43800000' % US] + f3 + ['v_mov_b32 v%d, 0' % (US + 1)]
    E(b, spread(mx, zs, 2))
    b('s_sub_i32 s23, 13, s22')
    b('s_sub_i32 s24, s22, 21')
    I1, I16, IZ1, IZ2, IZ3, IU8 = 4, 6, 8, 10, 12, 14
    b(pk('mul', US + 2, [('p', Z1), ('b', US)]))
    b('v_ldexp_f32 v%d, v14, s23' % VA)
    b('v_ldexp_f32 v%d, v15, s23' % (VA + 1))
    b('v_mov_b32 v%d, v%d' % (I16, Z16 + 1))
    b('v_mov_b32 v%d, v%d' % (I1, Z1 + 1))
    b('v_mov_b32 v%d, v%d' % (IZ1, ZB + 1))

    def cvt(src, row, neg=False):
        s = ['v_cvt_pk_f16_f32 v%d, v%d, %sv%d' % (72 + (row & 1), src, '-' if neg else '', src + 1)]
        if row & 1:
            s.append('ds_write2_b32 v%d, v72, v73 offset0:%d offset1:%d' % (WB + (row >> 2), 68 * ((row - 1) & 3), 68 * (row & 3)))
        return s

    def read_frags(d):
        return ['ds_read_b128 %s, v%d offset:%d' % (vr(d + 4 * j, 4), RB, 64 * j) for j in range(4)]
    VF, UF, DA, UF1 = 76, 92, 108, 144

    def mf(tile, uf):
        return ['v_mfma_f32_16x16x32_f16 %s, %s, %s, %s' % (vr(DA + 4 * tile, 4), vr(uf + 4 * j, 4), vr(VF + 4 * j, 4),
                                                         vr(DA + 4 * tile, 4) if j else '0') for j in range(4)]
    cv = []
    cur, nxt = VA, VB
    for i in range(16):
        if i < 15:
            cv += cmul(nxt, cur, Z16, I16)
        cv += cvt(cur, i, True)
        cur, nxt = nxt, cur
    cu = []
    for i in range(2, 16):
        cu += cmul(US + 2 * i, US + 2 * (i - 1), Z1, I1)
    cz = []
    for m in range(1, 8):
        cz += cmul(ZB + 2 * m, ZB + 2 * (m - 1), ZB, IZ1)
    cz += ['v_mov_b32 v%d, v%d' % (IZ2, ZB + 3), 'v_mov_b32 v%d, v%d' % (IZ3, ZB + 5), 'v_mov_b32 v%d, v%d' % (IU8, US + 17)]
    E(b, weave(cv, cu + cz))
    E(b, read_frags(VF))
    r0 = []
    for i in range(16):
        r0 += cvt(US + 2 * i, i)
    E(b, r0)
    E(b, read_frags(UF))
    def pair(ma, mb, row):
        return weave(ma, mb) + cvt(VA, row) + cvt(VB, row + 1)
    t1 = []
    for g, (zi, uo) in enumerate(((0, 0), (0, 2), (1, 0), (2, 0))):
        ms = []
        for rho in range(4):
            d = VA if (rho & 1) == 0 else VB
            if rho == 0 and uo == 0:
                ms.append([pk('mul', d, [('p', ZB + 2 * zi), ('b', US)])])
            else:
                ms.append(cmul(d, US + 2 * (4 * rho + uo), ZB + 2 * zi, (IZ1, IZ2, IZ3)[zi]))
        t1 += pair(ms[0], ms[1], 4 * g) + pair(ms[2], ms[3], 4 * g + 2)
    E(b, t1)
    E(b, read_frags(UF1))
    b('s_waitcnt lgkmcnt(12)')
    m0 = mf(0, UF)
    t2 = []
    for rho in (0, 2):
        t2 += pair([pk('mul', VA, [('p', ZB + 2 * (3 + rho)), ('b', US)])], [pk('mul', VB, [('p', ZB + 2 * (4 + rho)), ('b', US)])], rho)
    for rho in (0, 2):
        t2 += pair(cmul(VA, ZB + 2 * (3 + rho), US + 16, IU8), cmul(VB, ZB + 2 * (4 + rho), US + 16, IU8), 4 + rho)
    t2 += [pk('mul', VA, [('p', ZB + 14), ('b', US)]), 'v_cvt_pk_f16_f32 v72, v%d, v%d' % (VA, VA + 1),
           'ds_write_b32 v%d, v72' % (WB + 2)]
    E(b, spread(m0, t2, 3))
    E(b, read_frags(UF))
    b('s_waitcnt lgkmcnt(9)')
    E(b, mf(1, UF1))
    for rho in range(4):
        b('v_ldexp_f32 v%d, v%d, s24' % (DA + rho, DA + rho))
    b('s_waitcnt lgkmcnt(0)')
    E(b, mf(2, UF))
    stamp(b, 3)
    for rho in range(4):
        b('ds_write_b32 v120, v%d offset:%d' % (DA + rho, 4 * rho))
    for rho in range(4):
        b('v_ldexp_f32 v%d, v%d, s24' % (DA + 4 + rho, DA + 4 + rho))
    for rho in range(4):
        b('ds_write_b32 v121, v%d offset:%d' % (DA + 4 + rho, 16 * rho))
    for rho in range(4):
        b('v_ldexp_f32 v%d, v%d, s24' % (DA + 8 + rho, DA + 8 + rho))
    b('s_mov_b32 exec_hi, 1')
    b('ds_write_b32 v122, v%d offset:4352' % (DA + 8))
    b('s_mov_b32 exec_hi, 0')
    for rho in range(1, 4):
        b('ds_write_b32 v122, v%d offset:%d' % (DA + 8 + rho, 4352 + 1088 * rho))
    b('s_mov_b32 exec_hi, -1')
    b('v_add_u32 v3, %d, v2' % (KB + 4224 - 4))
    b('v_mov_b32 v111, 0')
    b('s_waitcnt vmcnt(0)')
    b('global_load_dword v112, v111, s[50:51] sc1')
    b('v_mov_b32 v80, %d' % CNT)
    b('v_mov_b32 v81, 1')
    b('s_waitcnt lgkmcnt(0)')
    b('s_mov_b64 exec, 1')
    b('ds_add_u32 v80, v81 offset:20')
    b('s_mov_b64 exec, -1')
    lds_wait(b, 'T', 80, 20, 4, 81, 0)
    b('s_cmp_ge_u32 s33, 2')
    stamp(b, 4)
    b('s_cbranch_scc1 K0_G1')
    for cc in range(2):
        if cc:
            b.label('K0_G1')
        for j in range(16):
            b('ds_read_b32 v%d, v%d offset:%d' % (36 + j, G + j, (2 * cc + 1) * TW))
            b('ds_read_b32 v%d, v%d offset:%d' % (G + j, G + j, 2 * cc * TW))
        if cc == 0:
            b('s_branch K0_G2')
    b.label('K0_G2')
    for h in range(2):
        b('s_waitcnt lgkmcnt(%d)' % (14 if h == 0 else 0))
        for m in range(4 * h, 4 * h + 4):
            b(pk('add', G + 2 * m, [('p', G + 2 * m), ('p', 36 + 2 * m)]))
        for m in range(4 * h, 4 * h + 4):
            b('v_cvt_pk_bf16_f32 v%d, v%d, v%d' % (56 + m, G + 2 * m, G + 2 * m + 1))
        b('ds_write_b128 v2, %s offset:%d' % (vr(56 + 4 * h, 4), KB + 2048 * h))
        if h:
            b('v_add_u32 v3, 2048, v3')
        b('ds_write2_b32 v3, v%d, v%d offset0:0 offset1:1' % (56 + 4 * h, 57 + 4 * h))
        b('ds_write2_b32 v3, v%d, v%d offset0:2 offset1:3' % (58 + 4 * h, 59 + 4 * h))
    def scan():
        Q = 64
        for h in range(2):
            b('v_mov_b32 v%d, v%d' % (Q + 8 * h, G + 8 * h + 7))
        for k in range(1, 8):
            for h in range(2):
                b('v_add_f32 v%d, v%d, v%d' % (Q + 8 * h + k, Q + 8 * h + k - 1, G + 8 * h + 7 - k))
        b('v_mov_b32 v80, v%d' % (Q + 7))
        b('v_mov_b32 v82, v%d' % (Q + 15))
        for m, rm in (('row_shr:1', '0xf'), ('row_shr:2', '0xf'), ('row_shr:4', '0xf'), ('row_shr:8', '0xf'), ('row_bcast:15', '0xa'), ('row_bcast:31', '0xc')):
            for r in (80, 82):
                b('v_add_f32_dpp v%d, v%d, v%d %s row_mask:%s bank_mask:0xf' % (r, r, r, m, rm))
        b('v_readlane_b32 s40, v80, 63')
        b('v_readlane_b32 s41, v82, 63')
        b('v_lshrrev_b32 v88, 7, v0')
        b('v_lshlrev_b32 v84, 13, v88')
        b('v_lshlrev_b32 v85, 1, v161')
        b('v_sub_u32 v84, v84, v85')
        b('v_add_u32 v84, %d, v84' % (SB + 4 * 1016))
        b('v_sub_f32 v80, s40, v80')
        b('v_sub_f32 v82, s41, v82')
        b('s_and_b32 s42, s33, 1')
        b('s_xor_b32 s42, s42, 1')
        b('s_lshl_b32 s42, s42, 2')
        b('s_add_u32 s42, s42, %d' % (SB + 16384))
        b('v_lshl_add_u32 v85, v88, 4, s42')
        b('v_mov_b32 v86, s41')
        b('v_mov_b32 v87, s40')
        for h in range(2):
            for k in range(0, 8, 2):
                b(pk('add', Q + 8 * h + k, [('p', Q + 8 * h + k), ('b', 80 + 2 * h)]))
            b('ds_write_b128 v84, %s offset:%d' % (vr(Q + 8 * h, 4), 4096 * (1 - h)))
            b('ds_write_b128 v84, %s offset:%d' % (vr(Q + 8 * h + 4, 4), 4096 * (1 - h) + 16))
        b('ds_write2_b32 v85, v86, v87 offset0:0 offset1:2')
    if not SCANL:
        scan()
    if EPOLL:
        b('s_cmp_lg_u32 s33, 0')
        b('s_cbranch_scc1 K1_EP')
        b(add64(22, 4, hex(WS_G1)))
        b('v_and_b32 v113, 31, v1')
        b('v_lshlrev_b32 v113, 7, v113')
        b('global_load_dwordx4 v[116:119], v113, s[22:23] ' + POLL)
        b.label('K1_EP')
    b('s_waitcnt lgkmcnt(0)')
    b('v_lshrrev_b32 v61, 2, v0')
    b('v_and_b32 v3, 3, v0')
    b('v_lshlrev_b32 v2, 14, v61')
    b('v_lshl_add_u32 v2, v3, 4, v2')
    b('v_bfe_u32 v3, v0, 1, 1')
    b('s_lshl_b32 s7, s6, 5')
    b('s_add_u32 s7, s7, %s' % hex(WS_XT))
    b(add64(10, 4, 's7'))
    b(add64(12, 10, '0x100000'))
    srd(b, 24, 4, hex(WS_LST), 16384)
    b('v_and_b32 v63, 1, v0')
    b('v_lshlrev_b32 v61, 4, v61')
    b('v_lshl_add_u32 v61, v63, 3, v61')
    b('v_lshlrev_b32 v40, 4, v1')
    b('s_lshl_b32 s28, s33, 11')
    b('s_mul_i32 s29, s33, 9216')
    b('s_add_u32 s29, s29, %d' % PB)
    b('v_lshrrev_b32 v42, 2, v1')
    b('v_lshlrev_b32 v42, 7, v42')
    b('v_lshl_add_u32 v42, v63, 5, v42')
    b('v_add_u32 v42, s29, v42')
    b('v_mov_b32 v39, %d' % CNT)
    b('v_mov_b32 v48, 1')
    b('s_lshr_b32 s35, s33, 1')
    b('s_and_b32 s36, s33, 1')
    b('s_mul_i32 s34, s33, 4224')
    b('s_add_u32 s34, s34, %d' % KB)
    b('v_min_u32 v51, 34, v0')
    b('v_lshlrev_b32 v51, 4, v51')
    b('v_pk_mov_b32 v[52:53], 0, 0')
    b('v_pk_mov_b32 v[54:55], 0, 0')
    for i in range(4):
        b('ds_write_b128 v51, v[52:55] offset:%d' % (HB + CS_ * i))
    b('v_mul_u32_u24 v51, %d, v3' % (2 * CS_))
    b('ds_write_b16 v51, v52 offset:%d' % (HB + CS_ + 560))
    b('v_and_b32 v46, 15, v1')
    b('v_lshl_add_u32 v46, v46, 3, s34')
    b('ds_write_b64 v46, v[52:53] offset:4096')
    b('v_mul_u32_u24 v46, 8448, v3')
    b('ds_write_b32 v46, v52 offset:%d' % (KB + 4224 + 4092))
    b('v_lshrrev_b32 v60, 5, v61')
    b('v_lshl_add_u32 v54, v61, 1, v51')
    b('v_lshl_add_u32 v54, v60, 4, v54')
    b('v_add_u32 v55, 8, v61')
    b('v_lshrrev_b32 v55, 5, v55')
    b('v_sub_u32 v55, v55, v60')
    b('v_lshl_add_u32 v55, v55, 4, v54')
    b('v_and_b32 v58, 1, v1')
    b('v_bfe_u32 v59, v1, 1, 3')
    b('v_lshrrev_b32 v50, 4, v1')
    b('s_mul_i32 s37, s35, 8448')
    b('s_lshl_b32 s38, s36, 8')
    b('s_sub_u32 s37, s37, s38')
    b('s_add_u32 s37, s37, %d' % (KB + 2 * 2044 - 7 * 512 - 3 * 64))
    b('v_xor_b32 v38, 1, v58')
    b('v_mul_u32_u24 v56, 4224, v38')
    b('v_sub_u32 v37, v50, v59')
    b('v_lshl_add_u32 v56, v37, 3, v56')
    b('v_add_u32 v56, s37, v56')
    b('s_mul_i32 s37, s35, %d' % (2 * CS_))
    b('s_mul_i32 s38, s36, 320')
    b('s_sub_u32 s37, s37, s38')
    b('s_add_u32 s37, s37, %d' % (HB + 4 * 80))
    b('v_mul_u32_u24 v57, %d, v58' % CS_)
    b('v_lshl_add_u32 v57, v50, 3, v57')
    b('v_mul_u32_u24 v37, 80, v59')
    b('v_add3_u32 v57, v57, v37, s37')
    b('s_waitcnt lgkmcnt(0)')
    b('s_mov_b64 exec, 1')
    b('ds_add_u32 v39, v48 offset:32')
    b('s_mov_b64 exec, -1')
    b('s_cmp_lg_u32 s33, 0')
    b('s_cbranch_scc1 K1_GW')
    b('s_mov_b32 s46, %d' % SPIN)
    b('s_waitcnt vmcnt(0)')
    b.label('K1_P1')
    b('v_readfirstlane_b32 s47, v112')
    b('s_cmp_lg_u32 s47, 0')
    b('s_cbranch_scc1 K1_P1X')
    b('global_load_dword v112, v111, s[50:51] sc1')
    b('s_sub_u32 s46, s46, 1')
    b('s_cmp_lg_u32 s46, 0')
    b('s_waitcnt vmcnt(0)')
    b('s_cbranch_scc1 K1_P1')
    b.label('K1_P1X')
    b('ds_write_b32 v39, v112 offset:52')
    b(add64(22, 4, hex(WS_G1)))
    b('v_lshlrev_b32 v113, 7, v1')
    b('s_mov_b32 exec_hi, 0')
    b('s_mov_b32 s46, %d' % SPIN)
    if EPOLL:
        b('s_branch K1_P4')
    b.label('K1_P3')
    b('global_load_dwordx4 v[116:119], v113, s[22:23] ' + POLL)
    b('s_waitcnt vmcnt(0)')
    b.label('K1_P4')
    for i in range(4):
        b('v_xor_b32 v%d, v%d, v112' % (116 + i, 116 + i))
    b('v_or3_b32 v116, v116, v117, v118')
    b('v_or_b32 v116, v116, v119')
    b('v_cmp_ne_u32 vcc, 0, v116')
    b('s_cmp_eq_u64 vcc, 0')
    b('s_cbranch_scc1 K1_GO')
    b('s_mov_b64 exec, vcc')
    if opt('PSL', 4):
        b('s_sleep %d' % opt('PSL', 4))
    b('s_sub_u32 s46, s46, 1')
    b('s_cmp_lg_u32 s46, 0')
    b('s_cbranch_scc1 K1_P3')
    b.label('K1_GO')
    b('s_mov_b64 exec, 1')
    b('ds_add_u32 v39, v48 offset:32')
    b('s_mov_b64 exec, -1')
    b.label('K1_GW')
    stamp(b, 5)
    lds_wait(b, 'A', 39, 32, 5, 49, opt('GSL', 1))
    stamp(b, 6)
    vm = VM(b)
    b(vm.op('global_load_dwordx4 v[4:7], v2, s[10:11] sc1', 'ln'))
    b(vm.op('global_load_dwordx4 v[8:11], v2, s[12:13] sc1', 'ln'))
    b('s_mov_b32 m0, s29')
    for i in range(2):
        b(vm.op('buffer_load_dwordx4 v40, s[24:27], s28 offen offset:%d sc1 lds' % (1024 * i), 'st'))
    b('s_add_u32 m0, s29, 2048')
    b('s_add_u32 s28, s28, 8192')
    for i in range(2):
        b(vm.op('buffer_load_dwordx4 v40, s[24:27], s28 offen offset:%d sc1 lds' % (1024 * i), 'st'))
    b('s_mov_b64 exec, 1')
    b('ds_add_u32 v39, v48 offset:44')
    b('s_mov_b64 exec, -1')
    if SCANL:
        scan()
    RS, CC_ = 96, 112
    b(vm.wait('st'))
    for i in range(2):
        for a in range(2):
            for k in range(2):
                b('ds_read_b128 %s, v42 offset:%d' % (vr(RS + 16 * a + 8 * i + 4 * k, 4), 2048 * i + 64 * a + 16 * k))
    stamp(b, 7)
    HF_, XF_ = 160, 176
    for i in range(2):
        for k in range(4):
            E(b, unpack(XF_ + 8 * i + 2 * k, 4 + 4 * i + k))
        if i == 0:
            b('s_waitcnt lgkmcnt(0)')
        for k in range(4):
            o_ = 8 * i + 2 * k
            b(pk('fma', HF_ + o_, [('p', XF_ + o_), ('p', RS + o_), ('p', CC_ + o_)]))
        h = 40 + 4 * i
        for k in range(4):
            b('v_cvt_pk_bf16_f32 v%d, v%d, v%d' % (h + k, HF_ + 8 * i + 2 * k, HF_ + 8 * i + 2 * k + 1))
        o = HB + 560 + 2560 * i
        b('ds_write_b128 v54, %s offset:%d' % (vr(h, 4), o))
        for k in range(3):
            b('v_cvt_pk_bf16_f32 v%d, v%d, v%d' % (5 + 4 * i + k, HF_ + 8 * i + 2 * k + 1, HF_ + 8 * i + 2 * k + 2))
        b('ds_write_b16 v54, v%d offset:%d' % (h, o + CS_ + 2))
        b('ds_write_b16_d16_hi v55, v%d offset:%d' % (h + 3, o + CS_ + 16))
        b('ds_write_b32 v54, v%d offset:%d' % (5 + 4 * i, o + CS_ + 4))
        b('ds_write_b64 v54, %s offset:%d' % (vr(6 + 4 * i, 2), o + CS_ + 8))
    b('s_waitcnt lgkmcnt(0)')
    b('s_mov_b64 exec, 1')
    b('ds_add_u32 v39, v48 offset:8')
    b('s_mov_b64 exec, -1')
    lds_wait(b, 'H', 39, 8, 4, 48, 0)
    stamp(b, 8)

    def reads(rho):
        f = 96 if rho & 1 == 0 else 192
        r = []
        for n in range(8):
            for e in range(2):
                r.append('ds_read_b64 %s, v57 offset:%d' % (vr(f + 32 + 4 * n + 2 * e, 2), (3 - rho) * 80 + 640 * n + 32 * e))
            for e in range(2):
                r.append('ds_read_b64 %s, v56 offset:%d' % (vr(f + 4 * n + 2 * e, 2), (3 - rho) * 64 + (7 - n) * 512 + 32 * e))
        return r
    E(b, reads(0))
    fill = []
    fill += ['s_mul_i32 s37, s33, 9216', 's_add_u32 s37, s37, %d' % PB,
             'v_mul_u32_u24 v62, 144, v59', 'v_lshl_add_u32 v62, v50, 5, v62',
             'v_lshl_add_u32 v62, v38, 2, v62', 'v_add_u32 v62, s37, v62',
             'v_lshl_add_u32 v63, v60, 2, v61', 'v_mul_u32_u24 v58, %d, v3' % (2 * 9216), 'v_lshl_add_u32 v63, v63, 2, v58',
             'v_add_u32 v63, %d, v63' % PB,
             'v_add_u32 v37, s6, v3', 'v_lshrrev_b32 v2, 7, v61', 'v_lshlrev_b32 v2, 17, v2', 'v_lshl_add_u32 v2, v37, 8, v2',
             'v_and_b32 v58, 127, v61', 'v_and_b32 v59, 3, v37', 'v_lshlrev_b32 v59, 5, v59', 'v_xor_b32 v58, v58, v59',
             'v_bfe_u32 v59, v37, 3, 1', 'v_lshlrev_b32 v59, 4, v59', 'v_xor_b32 v58, v58, v59', 'v_lshl_add_u32 v2, v58, 1, v2',
             'v_lshlrev_b32 v36, 13, v3', 'v_lshl_add_u32 v36, v61, 2, v36', 'v_add_u32 v36, %d, v36' % SB,
             'v_lshlrev_b32 v38, 4, v3', 'v_add_u32 v38, %d, v38' % MC] + add64(10, 4, hex(WS_X1T)).split('\n') + add64(12, 4, hex(WS_X1T + 0x100000)).split('\n')
    order = sorted([(p, m) for p in range(8) for m in range(8 - p)], key=lambda pm: (max(pm) > 3, max(pm), (pm[0] + pm[1]) & 1, pm))
    seq = []
    for grp in ([x for x in order if max(x) <= 3], [x for x in order if max(x) > 3]):
        grp = list(grp)
        while grp:
            pick = next((x for x in grp if not seq or sum(x) != sum(seq[-1])), grp[0])
            grp.remove(pick)
            seq.append(pick)
    touched = set()
    for rho in range(4):
        f = 96 if rho & 1 == 0 else 192
        nxt = reads(rho + 1) if rho < 3 else \
            ['ds_read_b128 %s, v36 offset:%d' % (vr(96 + 8 * i + 4 * k, 4), 4096 * i + 16 * k) for i in range(2) for k in range(2)] + \
            ['ds_read_b128 v[112:115], v38 offset:%d' % (SB + 16384 - MC)]
        b('s_waitcnt lgkmcnt(%d)' % (14 if rho == 0 else 0))
        for n, (p, m) in enumerate(seq):
            if rho == 0 and n == 16:
                b('s_waitcnt lgkmcnt(14)')
            a = vr(64 + 4 * (p + m), 4)
            b('v_mfma_f32_16x16x32_bf16 %s, %s, %s, %s' % (a, vr(f + 4 * p, 4), vr(f + 32 + 4 * m, 4), a if p + m in touched else '0'))
            touched.add(p + m)
            if nxt and not (rho == 0 and n in (14, 15)):
                b(nxt.pop(0))
            if fill:
                b(fill.pop(0))
        E(b, nxt)
    assert not fill
    stamp(b, 9)
    for j in range(8):
        if j:
            b('v_add_u32 v62, 1152, v62')
        b('ds_write2_b32 v62, v%d, v%d offset0:0 offset1:2' % (64 + 4 * j, 65 + 4 * j))
        b('ds_write2_b32 v62, v%d, v%d offset0:4 offset1:6' % (66 + 4 * j, 67 + 4 * j))
    b('v_mov_b32 v48, 1')
    b('s_waitcnt lgkmcnt(0)')
    b('s_mov_b64 exec, 1')
    b('ds_add_u32 v39, v48 offset:36')
    b('s_mov_b64 exec, -1')
    lds_wait(b, 'M', 39, 12, 1, 48, 1)
    b('ds_read_b128 v[20:23], v38')
    b('s_cmp_ge_u32 s33, 2')
    b('s_cselect_b32 s40, 1.0, 0')
    b('v_mul_f32 v24, s40, v112')
    b('v_add_f32 v26, v112, v113')
    b('v_fma_f32 v26, s40, v114, v26')
    b('s_waitcnt lgkmcnt(0)')
    b('v_fma_f32 v24, v24, v22, v23')
    b('v_fma_f32 v26, v26, v22, v23')
    for k in range(8):
        b(pk('fma', HF_ + 2 * k, [('p', HF_ + 2 * k), ('b', 21), ('p', XF_ + 2 * k)]))
        b(pk('fma', 96 + 2 * k, [('p', 96 + 2 * k), ('b', 22), ('b', 24 + 2 * (k >> 2))]))
    for k in range(8):
        b(pk('add', HF_ + 2 * k, [('p', HF_ + 2 * k), ('p', 96 + 2 * k)]))
    lds_wait(b, 'P', 39, 36, 4, 48, 0)
    stamp(b, 10)
    for i in range(2):
        for part in range(2):
            for k in range(2):
                b('ds_read_b128 %s, v63 offset:%d' % (vr(64 + 16 * i + 8 * part + 4 * k, 4), 4608 * i + 9216 * part + 16 * k))
    for i in range(2):
        b('s_waitcnt lgkmcnt(%d)' % (4 - 4 * i))
        Y = 64 + 16 * i
        for k in range(4):
            b(pk('add', Y + 2 * k, [('p', Y + 2 * k), ('p', Y + 2 * k + 8)]))
        for k in range(4):
            b(pk('fma', Y + 2 * k, [('p', Y + 2 * k), ('b', 20), ('p', HF_ + 8 * i + 2 * k)]))
        for k in range(4):
            b('v_cvt_pk_bf16_f32 v%d, v%d, v%d' % (116 + 4 * i + k, Y + 2 * k, Y + 2 * k + 1))
        b('global_store_dwordx4 v2, %s, s[%d:%d] %s' % (vr(116 + 4 * i, 4), 10 + 2 * i, 11 + 2 * i, ST_X1))
    if ONE:
        stamp_end(b, 0, more=True)
        b('s_branch K2_ENTRY')
    else:
        stamp_end(b, 0)
        b('s_endpgm')

    b.label('K1_B')
    if BFIRST:
        b('s_setprio 3')
    b('s_load_dwordx2 s[8:9], s[0:1], %d' % KA['u'])
    b('s_load_dwordx4 s[40:43], s[0:1], %d' % KA['c'])
    b('s_load_dwordx4 s[44:47], s[0:1], %d' % KA['wg'])
    b('s_load_dwordx2 s[48:49], s[0:1], %d' % KA['wd'])
    b('s_load_dwordx2 s[50:51], s[0:1], %d' % KA['dbg'])
    b('s_load_dwordx2 s[54:55], s[0:1], %d' % KA['dsk'])
    b('s_memrealtime s[52:53]')
    b('v_and_b32 v0, 255, v0')
    b('v_lshrrev_b32 v3, 6, v0')
    b('v_mov_b32 v110, %d' % CNT)
    b('v_mov_b32 v111, 0')
    for i in range(0, 14, 2):
        b('ds_write2_b32 v110, v111, v111 offset0:%d offset1:%d' % (i, i + 1))
    b('s_cmp_ge_u32 s2, %d' % N_XT)
    b('s_cbranch_scc1 K1_NOTXT')
    b('s_lshl_b32 s6, s2, 14')
    b('v_lshrrev_b32 v60, 4, v1')
    b('v_lshlrev_b32 v61, 2, v60')
    b('v_xor_b32 v61, v61, v1')
    b('v_and_b32 v61, 15, v61')
    b('v_lshlrev_b32 v61, 4, v61')
    b('v_lshl_add_u32 v61, v60, 10, v61')
    b('s_sub_u32 s30, s33, 4')
    b('s_lshl_b32 s28, s30, 12')
    b('s_add_u32 s28, s28, %d' % BB)
    b('s_lshl_b32 s29, s30, 8')
    b('s_lshl_b32 s7, s2, 3')
    b('s_add_u32 s7, s7, s33')
    b('s_cmp_lg_u32 s7, 4')
    b('s_waitcnt lgkmcnt(0)')
    if not SWAP:
        b('s_barrier')
    b('s_cbranch_scc1 K1_NOTAG')
    b('s_or_b32 s52, s52, 1')
    b('v_mov_b32 v114, s52')
    b('global_store_dword v111, v114, s[50:51] sc1')
    b.label('K1_NOTAG')
    srd(b, 24, 8, 's6', 16384)
    for i in range(4):
        b('s_add_u32 m0, s28, %d' % (1024 * i))
        b('buffer_load_dwordx4 v61, s[24:27], s29 offen%s lds' % ntf(2))
        b('s_add_u32 s29, s29, 4096')
    if ORD2:
        b('s_barrier')
    if SWAP and not ORD2:
        b('s_barrier')
    b('v_bfe_u32 v62, v1, 2, 2')
    b('v_and_b32 v63, 1, v60')
    b('v_lshl_add_u32 v64, v63, 3, v62')
    b('v_lshlrev_b32 v64, 8, v64')
    b('v_lshrrev_b32 v65, 5, v1')
    b('v_bfe_u32 v66, v1, 1, 1')
    b('v_lshl_add_u32 v66, v65, 1, v66')
    b('v_lshl_add_u32 v66, v62, 2, v66')
    b('v_lshl_add_u32 v64, v66, 4, v64')
    b('v_and_b32 v66, 1, v1')
    b('v_lshl_add_u32 v64, v66, 3, v64')
    b('v_add_u32 v64, s28, v64')
    for i in range(1, 4):
        b('v_xor_b32 v%d, %d, v64' % (88 + i, 64 * i))
    b('v_mov_b32 v88, v64')
    b('v_and_b32 v66, 15, v1')
    b('v_lshl_add_u32 v66, v65, 4, v66')
    b('v_lshlrev_b32 v66, 5, v66')
    b('v_lshl_add_u32 v65, v63, 4, v66')
    b('s_lshl_b32 s7, s30, 12')
    b('s_add_u32 s7, s7, s6')
    b('s_add_u32 s7, s7, %s' % hex(WS_XT))
    b(add64(10, 4, 's7'))
    b('s_lshl_b32 s7, s2, 7')
    b('s_add_u32 s7, s7, %s' % hex(WS_LST))
    b(add64(16, 4, 's7'))
    b('v_and_b32 v67, 15, v1')
    b('v_and_b32 v68, 3, v1')
    b('v_lshl_add_u32 v68, v68, 2, v60')
    b('v_lshlrev_b32 v68, 4, v68')
    b('v_lshl_add_u32 v68, v67, 8, v68')
    b('v_add_u32 v68, s28, v68')
    for j in range(1, 4):
        b('v_xor_b32 v%d, %d, v68' % (68 + j, 64 * j))
    for i in range(4):
        b('v_mov_b32 v%d, 0x3f803f80' % (20 + i))
    b('v_cmp_eq_u32 s[20:21], v60, v62')
    b('v_and_b32 v72, 3, v1')
    b('v_cmp_eq_u32 s[12:13], 1, v72')
    b('v_cmp_eq_u32 s[14:15], 2, v72')
    b('v_cmp_eq_u32 s[18:19], 3, v72')
    b('v_lshlrev_b32 v72, 3, v67')
    b('v_add_u32 v73, %d, v72' % XS)
    b('v_lshl_add_u32 v72, v3, 7, v73')
    b('v_lshlrev_b32 v67, 2, v67')
    b('s_setprio %d' % opt('XPRIO', 3))
    stamp(b, 1)
    b('s_waitcnt vmcnt(0)')
    stamp(b, 2)
    for i in range(4):
        for e in range(2):
            b('ds_read_b64_tr_b16 %s, v%d offset:%d' % (vr(92 + 4 * i + 2 * e, 2), 88 + i, 1024 * e))
    for j in range(4):
        b('ds_read_b128 %s, v%d' % (vr(4 + 4 * j, 4), 68 + j))
    for i in range(4):
        b('s_waitcnt lgkmcnt(%d)' % (10 - 2 * i))
        b('global_store_dwordx4 v65, %s, s[10:11] offset:%d sc1' % (vr(92 + 4 * i, 4), 1024 * i))
    for j in range(4):
        b('s_waitcnt lgkmcnt(%d)' % (3 - j))
        f = vr(4 + 4 * j, 4)
        b('v_mfma_f32_16x16x32_bf16 v[28:31], %s, %s, %s' % (f, f, 'v[28:31]' if j else '0'))
        b('v_mfma_f32_16x16x32_bf16 v[24:27], v[20:23], %s, %s' % (f, 'v[24:27]' if j else '0'))
    b('v_mov_b32 v113, 1')
    b('v_cndmask_b32 v25, v28, v29, s[12:13]')
    b('v_cndmask_b32 v25, v25, v30, s[14:15]')
    b('v_cndmask_b32 v25, v25, v31, s[18:19]')
    b('s_mov_b64 exec, s[20:21]')
    b('ds_write_b64 v72, v[24:25]')
    b('s_mov_b64 exec, 1')
    b('ds_add_rtn_u32 v114, v110, v113 offset:24')
    b('s_mov_b64 exec, -1')
    b('s_waitcnt lgkmcnt(0)')
    b('v_readfirstlane_b32 s35, v114')
    b('s_cmp_lg_u32 s35, 3')
    b('s_cbranch_scc1 K1_PUB')
    for w in range(4):
        b('ds_read_b64 %s, v73 offset:%d' % (vr(52 + 2 * w, 2), 128 * w))
    b('s_mov_b32 s12, %s' % fhex(1.0 / 512))
    b('s_waitcnt lgkmcnt(0)')
    b(pk('add', 52, [('p', 52), ('p', 54)]))
    b(pk('add', 56, [('p', 56), ('p', 58)]))
    b(pk('add', 52, [('p', 52), ('p', 56)]))
    b(pk('mul', 52, [('p', 52), ('sl', 12)]))
    E(b, ['v_fma_f32 v56, -v52, v52, v53', 'v_max_f32 v56, 0, v56', 'v_cvt_pk_bf16_f32 v53, v56, v52',
          'v_lshlrev_b32 v56, 16, v53', 'v_and_b32 v52, 0xffff0000, v53',
          'v_add_f32 v56, %s, v56' % fhex(1e-5)] + rnd_bf16(56) + ['v_sqrt_f32 v56, v56'] + rnd_bf16(56) +
         ['v_rcp_f32 v56, v56', 'v_cmp_gt_u32 vcc, 16, v1', 'v_lshlrev_b32 v67, 2, v1', 'v_mul_f32 v52, -v52, v56', 'v_cndmask_b32 v56, v52, v56, vcc'])
    b('s_mov_b32 exec_hi, 0')
    b('global_store_dword v67, v56, s[16:17] sc1')
    b('s_mov_b64 exec, -1')
    stamp(b, 3)
    b('s_branch K1_PUB')
    b.label('K1_NOTXT')
    b('s_cmp_ge_u32 s2, %d' % (N_XT + N_MOD))
    b('s_cbranch_scc1 K1_IDLE')
    b('s_sub_u32 s6, s2, %d' % N_XT)
    b('s_and_b32 s7, s6, 1')
    b('s_lshr_b32 s6, s6, 1')
    b('v_lshrrev_b32 v2, 3, v0')
    b('v_mul_u32_u24 v4, 6144, v2')
    b('v_and_b32 v5, 7, v0')
    b('v_lshl_add_u32 v60, v5, 4, v4')
    b('v_lshlrev_b32 v2, 1, v2')
    b('s_mul_i32 s12, s7, %d' % (256 * 6144))
    b('s_lshl_b32 s13, s6, 7')
    b('s_add_u32 s12, s12, s13')
    b('s_lshl_b32 s13, s7, 9')
    b('s_waitcnt lgkmcnt(0)')
    b('s_barrier')
    b(add64(42, 42, 's12'))
    b(add64(40, 40, 's13'))
    for i in range(8):
        b('global_load_ushort v%d, v2, s[40:41] offset:%d' % (4 + i, 64 * i))
    b('s_setprio 0')
    if MOD_LATE:
        lds_wait(b, 'Q', 110, 28, 1, 113, 2, 36, 35)
    for i in range(8):
        b('global_load_dwordx4 %s, v60, s[42:43]%s' % (vr(64 + 4 * i, 4), ntf(4)))
        if i < 7:
            b(add64(42, 42, str(32 * 6144)))
    b('v_lshlrev_b32 v2, 5, v0')
    b('v_add_u32 v2, %d, v2' % BB)
    stamp(b, 1)
    b('s_waitcnt vmcnt(8)')
    for i in range(8):
        b('v_lshlrev_b32 v%d, 16, v%d' % (4 + i, 4 + i))
    for i in range(8):
        b('v_mul_f32 v%d, %s, v%d' % (24 + i, fhex(-LOG2E), 4 + i))
    for i in range(8):
        b('v_exp_f32 v%d, v%d' % (24 + i, 24 + i))
    for i in range(0, 8, 2):
        b(pk('add', 24 + i, [('p', 24 + i), ('k', '1.0')]))
    for i in range(8):
        b('v_rcp_f32 v%d, v%d' % (24 + i, 24 + i))
    for i in range(0, 8, 2):
        b(pk('mul', 4 + i, [('p', 4 + i), ('p', 24 + i)]))
    for i in range(0, 8, 2):
        E(b, rnd_pair(4 + i, 24))
    for i in range(8):
        b('s_waitcnt vmcnt(%d)' % (7 - i))
        for k in range(4):
            E(b, unpack(24 + 2 * k, 64 + 4 * i + k))
        for k in range(4):
            if i == 0:
                b(pk('mul', 32 + 2 * k, [('p', 24 + 2 * k), ('b', 4 + i)]))
            else:
                b(pk('fma', 32 + 2 * k, [('p', 24 + 2 * k), ('b', 4 + i), ('p', 32 + 2 * k)]))
    stamp(b, 2)
    b('ds_write_b128 v2, v[32:35]')
    b('ds_write_b128 v2, v[36:39] offset:16')
    b('v_mov_b32 v113, 1')
    b('s_cmp_lg_u32 s33, 4')
    b('s_waitcnt lgkmcnt(0)')
    stamp(b, 3)
    b('s_cbranch_scc0 K1_M4')
    b('s_mov_b64 exec, 1')
    b('ds_add_u32 v110, v113 offset:24')
    b('s_mov_b64 exec, -1')
    b('s_mov_b32 s36, %d' % SPIN)
    b.label('K1_MW')
    b('ds_read_b32 v113, v110 offset:4')
    b('s_sub_u32 s36, s36, 1')
    b('s_waitcnt lgkmcnt(0)')
    b('v_readfirstlane_b32 s35, v113')
    b('s_cmp_lg_u32 s35, 0')
    b('s_cbranch_scc1 K1_PUB')
    b('s_sleep 1')
    b('s_cmp_lg_u32 s36, 0')
    b('s_cbranch_scc1 K1_MW')
    b('s_branch K1_PUB')
    b.label('K1_M4')
    lds_wait(b, 'R', 110, 24, 3, 113, 0, 36, 35)
    b('v_lshlrev_b32 v2, 2, v0')
    b('v_add_u32 v2, %d, v2' % BB)
    for k in range(16):
        b('ds_read2st64_b32 %s, v2 offset0:%d offset1:%d' % (vr(4 + 2 * k, 2), 2 * k, 2 * k + 1))
    b('s_lshl_b32 s6, s6, 8')
    b('s_mul_i32 s7, s7, 12288')
    b('s_add_u32 s6, s6, s7')
    b('v_lshl_add_u32 v2, v0, 2, s6')
    b('s_waitcnt lgkmcnt(0)')
    for w in (16, 8, 4, 2):
        for k in range(0, w, 2):
            b(pk('add', 4 + k, [('p', 4 + k), ('p', 4 + w + k)]))
    b('v_add_f32 v4, v4, v5')
    b('global_store_dword v2, v4, s[4:5] sc1')
    b('global_load_dword v115, v111, s[50:51] sc1')
    b('ds_write_b32 v110, v110 offset:4')
    b('s_branch K1_PUB2')
    b.label('K1_IDLE')
    if CODE_PF:
        code_prefetch(b, 'a', KNAME, 0, 150, 22, back=True)
    b('s_waitcnt lgkmcnt(0)')
    b('s_barrier')
    b.label('K1_PUB')
    WR = 120

    def wprep():
        b('s_and_b32 s12, s2, 3')
        b('s_bfe_u32 s13, s2, 0x10002')
        b('s_lshr_b32 s14, s2, 3')
        b('v_bfe_u32 v52, v0, 2, 1')
        b('v_and_b32 v53, 3, v0')
        b('v_lshl_add_u32 v52, v52, 3, v53')
        b('v_lshl_add_u32 v2, v3, 5, v52')
        b('v_mul_u32_u24 v2, 3584, v2')
        b('v_lshrrev_b32 v54, 4, v1')
        b('v_lshl_add_u32 v2, v54, 4, v2')
        b('v_bfe_u32 v52, v0, 3, 1')
        b('v_lshl_add_u32 v2, v52, 6, v2')
        b('s_mul_i32 s15, s12, %d' % (128 * 3584))
        b('s_lshl_b32 s16, s14, 7')
        b('s_add_u32 s15, s15, s16')
        b('s_cmp_eq_u32 s13, 0')
        b('s_cselect_b32 s8, s44, s46')
        b('s_cselect_b32 s9, s45, s47')
        b(add64(8, 8, 's15'))
        b('s_sub_u32 s30, s33, 4')
        b('s_lshl_b32 s28, s2, 13')
        srd(b, 24, 48, 's28', 8192)
        b('v_lshrrev_b32 v58, 3, v1')
        b('v_lshlrev_b32 v58, 10, v58')
        b('v_and_b32 v59, 7, v1')
        b('v_lshl_add_u32 v58, v59, 4, v58')
        b('s_lshl_b32 s29, s30, 8')
        b('s_lshl_b32 s28, s30, 11')
        b('s_add_u32 s28, s28, %d' % (FB_ + 4096))
        b('v_and_b32 v60, 1, v1')
        b('v_lshlrev_b32 v60, 4, v60')
        b('v_lshlrev_b32 v60, v60, 0x3f80' if False else 'v_mov_b32 v61, 0x3f80')
        b('v_lshlrev_b32 v60, v60, v61')
        b('v_bfe_u32 v61, v1, 1, 3')
        b('v_lshlrev_b32 v62, 2, v54')
        b('v_sub_u32 v61, v62, v61')
        for s_ in range(2):
            for p in range(4):
                b('v_cmp_eq_u32 vcc, %d, v61' % (8 * s_ - p))
                b('v_cndmask_b32 v%d, 0, v60, vcc' % (32 + 4 * s_ + p))
        for i in range(4):
            b('v_mov_b32 v%d, 0x3f803f80' % (48 + i))
        b('v_lshlrev_b32 v45, 2, v0')
        b('v_add_u32 v45, %d, v45' % FB_)
        b('v_lshlrev_b32 v63, 8, v3')
        b('v_lshl_add_u32 v63, v54, 5, v63')
        b('v_add_u32 v63, %d, v63' % FB_)
        b('v_lshlrev_b32 v44, 11, v3')
        b('v_lshl_add_u32 v44, v1, 4, v44')
        b('s_lshl_b32 s15, s14, 17')
        b('s_lshl_b32 s16, s12, 13')
        b('s_add_u32 s15, s15, s16')
        b('s_lshl_b32 s16, s13, 10')
        b('s_add_u32 s15, s15, s16')
        b('s_add_u32 s15, s15, %s' % hex(WS_WF))
        b(add64(56, 4, 's15'))
        b('v_bfe_u32 v47, v1, 2, 2')
        b('v_lshlrev_b32 v46, 5, v54')
        b('v_lshl_add_u32 v46, v47, 7, v46')
        b('v_lshl_add_u32 v46, v53, 3, v46')
        b('v_add_u32 v46, s28, v46')
        b('v_lshrrev_b32 v47, 5, v1')
        b('v_mul_u32_u24 v47, 114688, v47')
        b('v_and_b32 v60, 31, v1')
        b('v_lshl_add_u32 v47, v60, 4, v47')
        b('s_mul_i32 s38, s30, %d' % (4 * 114688))
        b('s_lshl_b32 s39, s2, 9')
        b('s_add_u32 s38, s38, s39')
        b('s_add_u32 s38, s38, %s' % hex(WS_WD))
        b(add64(40, 4, 's38'))
        b(add64(42, 40, str(2 * 114688)))

    def wreq():
        for hi in range(2):
            for ab in range(2):
                b('global_load_dwordx4 %s, v2, s[8:9]%s' % (vr(WR + 8 * hi + 4 * ab, 4), ntf(8)))
                if hi + ab < 2:
                    b(add64(8, 8, str((12 if ab else 4) * 3584)))
        b('s_mov_b32 m0, s28')
        b('buffer_load_dwordx4 v58, s[24:27], s29 offen%s lds' % ntf(8))
        b('s_add_u32 m0, s28, 1024')
        b('s_add_u32 s29, s29, 128')
        b('buffer_load_dwordx4 v58, s[24:27], s29 offen%s lds' % ntf(8))
    b('global_load_dword v115, v111, s[50:51] sc1')
    b.label('K1_PUB2')
    b.label('K1_NOW')
    b('v_mov_b32 v112, 1')
    b('s_lshr_b32 s34, s2, 2')
    b('s_lshl_b32 s34, s34, 7')
    b('s_and_b32 s35, s2, 3')
    b('s_lshl_b32 s35, s35, 2')
    b('s_add_u32 s34, s34, s35')
    b('v_mov_b32 v113, s34')
    b(add64(22, 4, hex(WS_G1)))
    b('s_waitcnt vmcnt(0)')
    stamp(b, 4)
    b('s_mov_b64 exec, 1')
    b('ds_add_rtn_u32 v114, v110, v112')
    b('s_mov_b32 s36, %d' % SPIN)
    b('s_waitcnt lgkmcnt(0)')
    b('v_readfirstlane_b32 s35, v114')
    b('s_cmp_lg_u32 s35, 3')
    b('s_cbranch_scc1 K1_NL')
    b.label('K1_T0')
    b('v_readfirstlane_b32 s35, v115')
    b('s_cmp_lg_u32 s35, 0')
    b('s_cbranch_scc1 K1_T1')
    b('global_load_dword v115, v111, s[50:51] sc1')
    b('s_sub_u32 s36, s36, 1')
    b('s_cmp_lg_u32 s36, 0')
    b('s_waitcnt vmcnt(0)')
    b('s_cbranch_scc1 K1_T0')
    b.label('K1_T1')
    b('global_store_dword v113, v115, s[22:23] sc1')
    b.label('K1_NL')
    b('s_mov_b64 exec, -1')
    b('s_and_b32 s6, s2, 7\ns_lshl_b32 s6, s6, 5\ns_lshr_b32 s7, s2, 3\ns_add_u32 s6, s6, s7\ns_lshl_b32 s6, s6, 1')
    b('v_and_b32 v42, 1, v1')
    b('v_add_u32 v40, s6, v42')
    b('v_lshlrev_b32 v41, 1, v40')
    b('v_lshlrev_b32 v40, 2, v40')
    stamp(b, 5)
    b('s_setprio 0')
    wprep()
    if FW_GO:
        if opt('FW_XT', False):
            b('s_cmp_ge_u32 s2, %d' % N_XT)
            b('s_cbranch_scc1 K1_XB')
        lds_wait(b, 'B', 110, 44, 4, 113, 2, 36, 35)
    b('s_cmp_ge_u32 s2, %d' % N_FOLD)
    b('s_cbranch_scc1 K1_NOW2')
    if G2_FIRST:
        b('s_cmp_eq_u32 s33, 7')
        b('s_cbranch_scc1 K1_NOW2')
    wreq()
    b.label('K1_NOW2')
    if opt('BP3', True):
        b('s_setprio 3')
    stamp(b, 10)
    b('s_cmp_lg_u32 s33, 7')
    stamp(b, 6)
    b('s_cbranch_scc1 K1_N7')
    b('v_min_u32 v113, 23, v1')
    b('v_lshlrev_b32 v113, 7, v113')
    b('v_add_u32 v113, 4096, v113')
    b('global_load_ushort v43, v41, s[54:55]')
    b(add64(18, 4, '2048'))
    b(add64(20, 18, '12288'))
    b('s_mov_b32 s36, %d' % SPIN)
    b('s_mov_b64 exec, 0xffffff')
    b.label('K1_G2')
    b('global_load_dword v115, v111, s[50:51] sc1')
    b('global_load_dwordx4 v[116:119], v113, s[22:23] ' + POLL)
    b('s_waitcnt vmcnt(0)')
    for i in range(4):
        b('v_xor_b32 v%d, v%d, v115' % (116 + i, 116 + i))
    b('v_not_b32 v117, v115' if False else 'v_or3_b32 v116, v116, v117, v118')
    b('v_and_b32 v117, 1, v115')
    b('v_xor_b32 v117, 1, v117')
    b('v_or3_b32 v116, v116, v119, v117')
    b('v_cmp_ne_u32 vcc, 0, v116')
    b('s_cmp_eq_u64 vcc, 0')
    b('s_cbranch_scc1 K1_G2X')
    b('s_mov_b64 exec, vcc')
    b('s_sleep 4')
    b('s_sub_u32 s36, s36, 1')
    b('s_cmp_lg_u32 s36, 0')
    b('s_cbranch_scc1 K1_G2')
    b.label('K1_G2X')
    b('s_mov_b64 exec, -1')
    b('ds_write_b32 v110, v112 offset:16')
    for p_ in range(2):
        for s_, (v_, o_) in enumerate(((40, -2048), (40, 0), (40, 2048))):
            b('global_load_dword v%d, v%d, s[%d:%d] offset:%d sc1' % (24 + 4 * p_ + s_, v_, 18 + 2 * p_, 19 + 2 * p_, o_))
    b('s_branch K1_N7X')
    b.label('K1_N7')
    b('s_cmp_lg_u32 s33, 6')
    b('s_cbranch_scc1 K1_N6')
    b('s_lshl_b32 s20, s2, 7')
    b('v_lshrrev_b32 v31, 5, v1')
    b('v_and_b32 v28, 31, v1')
    b('v_lshlrev_b32 v29, 2, v28')
    b('v_mul_u32_u24 v30, %d, v31' % (WS_FLG - WS_SST))
    b('v_add3_u32 v29, v29, v30, s20')
    b('v_and_b32 v28, 33, v1')
    b('v_cmp_eq_u32 vcc, 1, v28')
    b('v_mov_b32 v31, 0xbf800000')
    b(add64(20, 4, hex(WS_SST)))
    b('v_cndmask_b32 v28, 0, v31, vcc')
    b('global_store_dword v29, v28, s[20:21] sc1')
    b.label('K1_N6')
    lds_wait(b, 'G', 110, 16, 1, 113, 2)
    b.label('K1_N7X')
    stamp(b, 11)
    b('s_cmp_ge_u32 s2, %d' % N_FOLD)
    b('s_cbranch_scc1 K1_NF0')
    b('s_lshl_b32 s16, s12, 9')
    b('s_lshl_b32 s17, s30, 7')
    b('s_add_u32 s16, s16, s17')
    b('s_add_u32 s16, s16, %d' % (3 * 2048))
    b('v_and_b32 v55, 31, v1')
    b('v_lshlrev_b32 v56, 2, v55')
    b('v_lshrrev_b32 v57, 5, v1')
    b('v_lshl_add_u32 v56, v57, 11, v56')
    b(add64(18, 4, 's16'))
    b('global_load_dword v20, v56, s[18:19] sc1')
    b(add64(18, 18, '12288'))
    b('global_load_dword v21, v56, s[18:19] sc1')
    b.label('K1_NF0')
    b('s_cmp_lg_u32 s33, 7')
    b('s_cbranch_scc1 K1_NC')
    b('v_lshlrev_b32 v42, 4, v42')
    b('s_waitcnt vmcnt(0)')
    b(pk('add', 24, [('p', 24), ('p', 28)]))
    b(pk('add', 26, [('p', 26), ('p', 30)]))
    E(b, rnd_pair(24, 28) + rnd_pair(26, 29))
    b('v_add_f32 v25, 1.0, v25')
    E(b, rnd_bf16(25))
    b('v_lshlrev_b32 v43, 16, v43')
    b('v_mul_f32 v28, v26, v25')
    b('v_mul_f32 v30, v26, v24')
    b('v_mul_f32 v29, v28, v43')
    b('v_mul_f32 v31, v30, v43')
    b('v_add_u32 v42, %d, v42' % MC)
    b('ds_write_b128 v42, v[28:31]')
    b('ds_write_b32 v110, v112 offset:12')
    b.label('K1_NC')
    b('s_cmp_lt_u32 s2, %d' % N_FOLD)
    b('s_cbranch_scc1 K1_FOLD')
    b('s_branch K1_FIN')
    b.label('K1_FOLD')
    b('s_setprio %d' % FOLD_PRIO)
    b('v_cvt_f32_u32 v57, v57')
    stamp(b, 12)
    b('s_waitcnt vmcnt(0)')
    stamp(b, 13)
    b('v_add_f32 v20, v20, v21')
    E(b, rnd_bf16(20))
    b('v_add_f32 v20, v20, v57')
    E(b, rnd_bf16(20))
    b('ds_write_b32 v45, v20')
    SBR, OCR, D = 64, 72, 80
    b('ds_read_b128 %s, v63' % vr(SBR, 4))
    b('ds_read_b128 %s, v63 offset:16' % vr(SBR + 4, 4))
    b('ds_read_b128 %s, v63 offset:128' % vr(OCR, 4))
    b('ds_read_b128 %s, v63 offset:144' % vr(OCR + 4, 4))
    stamp(b, 7)
    b('s_waitcnt vmcnt(0)')
    stamp(b, 8)
    for i in range(4):
        b('ds_read_b64_tr_b16 %s, v46 offset:%d' % (vr(24 + 2 * i, 2), 512 * i))
    for nt in range(4):
        for ab in range(2):
            b('v_mfma_f32_16x16x32_bf16 %s, %s, %s, 0' % (vr(D + 8 * nt + 4 * ab, 4), vr(WR + 8 * (nt >> 1) + 4 * ab, 4), vr(32 + 4 * (nt & 1), 4)))
    b('s_waitcnt lgkmcnt(0)')
    b('global_store_dwordx4 v47, v[24:27], s[40:41] %s' % ST_WF)
    b('global_store_dwordx4 v47, v[28:31], s[42:43] %s' % ST_WF)
    for k in range(16):
        b('v_permlane32_swap_b32 v%d, v%d' % (D + k, D + 16 + k))
    for nt in range(4):
        d = D + 8 * nt
        o = 4 + 4 * nt
        b(pk('mul', 128 + 2 * nt, [('p', d), ('p', SBR)]))
        for k in range(1, 4):
            b(pk('fma', 128 + 2 * nt, [('p', d + 2 * k), ('p', SBR + 2 * k), ('p', 128 + 2 * nt)]))
        for k in range(4):
            b(pk('mul', d + 2 * k, [('p', d + 2 * k), ('p', OCR + 2 * k)]))
        for k in range(4):
            b('v_cvt_pk_bf16_f32 v%d, v%d, v%d' % (o + k, d + 2 * k, d + 2 * k + 1))
        b('global_store_dwordx4 v44, %s, s[56:57] %s' % (vr(o, 4), ST_WF))
        if nt < 3:
            b(add64(56, 56, '32768'))
        b('v_mfma_f32_16x16x32_bf16 %s, v[48:51], %s, 0' % (vr(136 + 4 * nt, 4), vr(o, 4)))
    for nt in range(4):
        b('v_add_f32 v%d, v%d, v%d' % (128 + nt, 128 + 2 * nt, 129 + 2 * nt))
    b('v_permlane32_swap_b32 v128, v129')
    b('v_permlane32_swap_b32 v130, v131')
    b('v_cmp_eq_u32 s[26:27], 1, v54')
    b('v_cmp_eq_u32 s[28:29], 2, v54')
    b('v_cmp_eq_u32 s[30:31], 3, v54')
    b('v_add_f32 v128, v128, v129')
    b('v_add_f32 v130, v130, v131')
    b('v_cndmask_b32 v136, v136, v144, s[26:27]')
    b('v_permlane16_swap_b32 v128, v130')
    b('v_cndmask_b32 v136, v136, v140, s[28:29]')
    b('v_add_f32 v137, v128, v130')
    b('v_cndmask_b32 v136, v136, v148, s[30:31]')
    b('v_lshlrev_b32 v56, 3, v0')
    b('v_add_u32 v56, %d, v56' % FB_)
    b('ds_write_b64 v56, v[136:137] offset:1024')
    stamp(b, 9)
    b('v_mov_b32 v110, %d' % CNT)
    b('s_waitcnt lgkmcnt(0)')
    b('s_mov_b64 exec, 1')
    b('ds_add_rtn_u32 v114, v110, v112 offset:40')
    b('s_mov_b64 exec, -1')
    b('s_waitcnt lgkmcnt(0)')
    b('v_readfirstlane_b32 s22, v114')
    b('s_cmp_lg_u32 s22, 3')
    b('s_cbranch_scc1 K1_FIN')
    b('v_lshlrev_b32 v56, 3, v1')
    b('v_add_u32 v56, %d, v56' % FB_)
    for w in range(4):
        b('ds_read_b64 %s, v56 offset:%d' % (vr(64 + 2 * w, 2), 1024 + 512 * w))
    b('v_and_b32 v2, 1, v54')
    b('v_lshlrev_b32 v2, 1, v2')
    b('v_lshrrev_b32 v3, 1, v54')
    b('v_add_u32 v2, v2, v3')
    b('v_lshlrev_b32 v2, 4, v2')
    b('v_and_b32 v3, 15, v1')
    b('v_add_lshl_u32 v2, v2, v3, 2')
    b('s_lshl_b32 s15, s2, 9')
    b('s_add_u32 s15, s15, %s' % hex(WS_CB))
    b(add64(20, 4, 's15'))
    b('s_waitcnt lgkmcnt(0)')
    b(pk('add', 64, [('p', 64), ('p', 66)]))
    b(pk('add', 68, [('p', 68), ('p', 70)]))
    b(pk('add', 64, [('p', 64), ('p', 68)]))
    b('global_store_dword v2, v64, s[20:21] sc1')
    b('global_store_dword v2, v65, s[20:21] offset:256 sc1')
    b.label('K1_FIN')
    if ONE:
        assert CNT == CNT_ADDR
        stamp_end(b, 0, more=True)
        return b
    stamp_end(b, 0)
    b.label('K1_END')
    b('s_endpgm')
    return b.text(), 256, NSG
```

```python
from common import *

K2_WGS = 256
ST = 131072
CBL = ST + 4096
FLAG = CBL + 7 * 32 * 8
SCR = FLAG + 256
K2_LDS = SCR + 8192
PLANS = [
    ({-2: ['x0'], -1: ['x1', 'x2'], 0: ['x3'], 1: ['x4'], 2: ['x5'], 3: ['x6'], 4: ['x7']},
     {0: ['x0'], 1: ['x1'], 2: ['x2'], 3: ['x3'], 4: ['x4'], 5: ['x5'], 6: ['x6', 'x7']}),
    ({-2: ['x0'], -1: ['x1', 'x2'], 0: ['x3'], 1: ['x4'], 2: ['x5', 'x6'], 3: ['x7']},
     {0: ['x0'], 1: ['x1'], 2: ['x2'], 3: ['x3'], 4: ['x4'], 5: ['x5', 'x6', 'x7']}),
    ({-2: ['x0'], -1: ['x1', 'x2'], 0: ['x3', 'x4'], 1: ['x5', 'x6'], 2: ['x7']},
     {0: ['x0'], 1: ['x1'], 2: ['x2'], 3: ['x3'], 4: ['x4', 'x5', 'x6', 'x7']}),
    ({-2: ['x0'], -1: ['x1', 'x2'], 0: ['x3'], 1: ['x4'], 2: ['x5'], 3: ['x6'], 4: ['x7']},
     {0: ['x0'], 1: ['x1'], 2: ['x2'], 3: ['x3'], 4: ['x4'], 5: ['x5'], 6: ['x6'], 7: ['x7']}),
    ({-2: ['x0'], -1: ['x1', 'x2', 'x3'], 0: ['x4'], 1: ['x5'], 2: ['x6', 'x7']},
     {0: ['x0'], 1: ['x1'], 2: ['x2'], 3: ['x3'], 4: ['x4'], 5: ['x5', 'x6', 'x7']}),
]
PLAN, BARS = PLANS[opt('PLAN', 1)]
GATHER = max(BARS) - 1
WD0 = opt('WD0', 18)
AUXX = True
W0 = opt('W0', 2)
WP = opt('WP', 6)
_n, _u = WP, 0
WPAT = opt('WPAT', '12')
while _n < 32:
    _n += int(WPAT[_u % len(WPAT)])
    _u += 1
YB = max(4 * GATHER + 2, _u + (_u & 1), opt('YB', 0))
YN = min(YB, 28)
EPI = opt('EPI', 12)
NB = opt('NB', 2)
HD = 6
LPRIO = opt('LPRIO', 2)
CORR = 4 * GATHER + 2
NL = opt('NL', 4)
ILV = opt('ILV', False)
RESTF = opt('RESTF', True)
ROT = opt('ROT', 0)
ROT2 = opt('ROT2', 0)
OLDPRIO = opt('OLDPRIO', False)
SPIN = 0x8000
ST_OUT = opt('ST_OUT', '')
W, XB, ACC = 128, 16, 64
SC1 = ' sc1' if ONE and opt('SC1', True) else ''


def k23(b=None):
    if b is None:
        b = Builder()
        b('s_cmp_ge_u32 s2, %d' % K2_WGS)
        b('s_cbranch_scc1 K2_END')
        b('s_load_dwordx2 s[4:5], s[0:1], %d' % KA['ws'])
        b('s_load_dwordx2 s[50:51], s[0:1], %d' % KA['out'])
        stamp_init(b)
        b('v_lshrrev_b32 v2, 6, v0')
        b('v_and_b32 v1, 63, v0')
        b('v_readfirstlane_b32 s33, v2')
    else:
        b.label('K2_ENTRY')
        b('s_setprio 0')
        if opt('SWAP', True):
            b('s_xor_b32 s33, s33, 4')
        b('s_load_dwordx2 s[50:51], s[0:1], %d' % KA['out'])
    b('s_and_b32 s6, s2, 7')
    b('s_lshr_b32 s7, s2, 3')
    b('s_lshr_b32 s8, s6, 1')
    b('s_lshl_b32 s8, s8, 2')
    b('s_lshr_b32 s9, s7, 3')
    b('s_add_u32 s8, s8, s9')
    b('s_and_b32 s30, s6, 1')
    b('s_lshl_b32 s30, s30, 3')
    b('s_and_b32 s10, s7, 7')
    b('s_add_u32 s30, s30, s10')
    if opt('MAP2', False):
        b('s_lshl_b32 s8, s6, 1')
        b('s_lshr_b32 s9, s7, 4')
        b('s_add_u32 s8, s8, s9')
        b('s_and_b32 s30, s7, 15')
    b('s_mul_i32 s9, s30, 7')
    b('v_lshlrev_b32 v2, 4, v1')
    b('s_lshl_b32 s10, s8, 17')
    b('s_add_u32 s10, s10, %s' % hex(WS_X1T))
    b('s_add_u32 s11, s9, s33')
    b('s_lshl_b32 s12, s11, 15')
    b('s_add_u32 s12, s12, %s' % hex(WS_WF))
    b('s_lshl_b32 s34, s33, 11')
    b('s_and_b32 s48, s8, 3')
    b('s_lshl_b32 s48, s48, 1')
    b('s_add_u32 s48, s48, s30')
    b('s_and_b32 s48, s48, %d' % ROT)
    if ONE:
        b('v_mov_b32 v4, %d' % CNT_ADDR)
        b('v_mov_b32 v5, 1')
        b('s_lshr_b32 s35, s2, 2')
        b('s_lshl_b32 s35, s35, 7')
        b('s_and_b32 s36, s2, 3')
        b('s_lshl_b32 s36, s36, 2')
        b('s_add_u32 s35, s35, s36')
        b('v_mov_b32 v7, s35')
        b(add64(14, 4, hex(WS_G3)))
        b('ds_read_b32 v6, v4 offset:52')
        b('v_lshlrev_b32 v12, 7, v1')
        b('s_waitcnt vmcnt(0) lgkmcnt(0)')
        b('s_mov_b64 exec, 1')
        b('ds_add_rtn_u32 v5, v4, v5 offset:48')
        b('s_mov_b64 exec, -1')
        b('s_mov_b32 s36, %d' % SPIN)
        b('s_waitcnt lgkmcnt(0)')
        b('v_readfirstlane_b32 s35, v5')
        b('s_cmp_lg_u32 s35, 7')
        b('s_cbranch_scc1 K2_G3X')
        b('ds_read_b32 v6, v4 offset:52')
        b('s_waitcnt lgkmcnt(0)')
        b('global_store_dword v7, v6, s[14:15] sc1')
        b.label('K2_G3')
        b('global_load_dwordx4 v[8:11], v12, s[14:15] ' + POLL)
        b('s_waitcnt vmcnt(0)')
        for i in range(4):
            b('v_xor_b32 v%d, v%d, v6' % (8 + i, 8 + i))
        b('v_or3_b32 v8, v8, v9, v10')
        b('v_or_b32 v8, v8, v11')
        b('v_cmp_ne_u32 vcc, 0, v8')
        b('s_cmp_eq_u64 vcc, 0')
        b('s_cbranch_scc1 K2_G3X')
        b('s_mov_b64 exec, vcc')
        b('s_sleep %d' % opt('SL3', 4))
        b('s_sub_u32 s36, s36, 1')
        b('s_cmp_lg_u32 s36, 0')
        b('s_cbranch_scc1 K2_G3')
        b.label('K2_G3X')
        b('s_mov_b64 exec, -1')
        b('s_barrier')
        stamp(b, 0)
    b('s_cmp_eq_u32 s33, 7')
    b('s_waitcnt lgkmcnt(0)')
    b('s_cbranch_scc1 K2_AUX')
    srd(b, 16, 4, 's10', 131072)
    srd(b, 20, 4, 's12', 32768)

    def make_issue(vm, with_w):
        def issue(tag):
            c = int(tag[1])
            if tag[0] == 'x' and AUXX and c > 0:
                if with_w:
                    return []
                r = ['s_add_u32 s35, s48, %d' % c, 's_and_b32 s35, s35, 7', 's_lshl_b32 s35, s35, 14']
                for i in range(4):
                    r += ['s_mov_b32 m0, %d' % (16384 * c + 4096 * i)] + (['s_add_u32 s35, s35, 4096'] if i else [])
                    r += [vm.op('buffer_load_dwordx4 v2, s[16:19], s35 offen offset:%d%s lds' % (1024 * k, SC1), tag) for k in range(4)]
                return r
            if tag[0] == 'x':
                return ['s_lshl_b32 s35, s48, 14', 's_add_u32 s35, s35, s34', 's_mov_b32 m0, s34',
                        vm.op('buffer_load_dwordx4 v2, s[16:19], s35 offen%s lds' % SC1, tag),
                        vm.op('buffer_load_dwordx4 v2, s[16:19], s35 offen offset:1024%s lds' % SC1, tag)]
            if not with_w:
                return []
            return ['s_movk_i32 s36, %d' % (4096 * c)] + \
                   [vm.op('buffer_load_dwordx4 %s, v2, s[20:23], s36 offen offset:%d' % (vr(W + 16 * c + 4 * k, 4), 1024 * k), tag) for k in range(4)]
        return issue

    def xreads(u):
        kk, hh = u >> 1, u & 1
        f = XB + 16 * (u % 3)
        o = (kk & 7) * 8192
        r = []
        if u in (16, 17):
            r += ['v_add_u32 v%d, 0x10000, v%d' % (4 + 4 * hh + j, 4 + 4 * hh + j) for j in range(4)]
        for j in range(4):
            r.append('ds_read_b64_tr_b16 %s, v%d offset:%d' % (vr(f + 4 * j, 2), 4 + 4 * hh + j, o))
            r.append('ds_read_b64_tr_b16 %s, v%d offset:%d' % (vr(f + 4 * j + 2, 2), 4 + 4 * hh + j, o + 1024))
        return r

    def phase2_setup():
        b('s_lshr_b32 s37, s30, 3')
        b('s_lshl_b32 s37, s37, 2')
        b('s_and_b32 s38, s30, 3')
        b('s_add_u32 s37, s37, s38')
        b('s_bfe_u32 s38, s30, 0x10002')
        b('s_and_b32 s39, s33, 1')
        b('s_bfe_u32 s42, s33, 0x10001')
        b('s_lshr_b32 s43, s33, 2')
        b('s_and_b32 s49, s30, 3')
        b('s_mul_i32 s49, s49, %d' % (ROT2 * 1024))
        b('s_mul_i32 s12, s37, %d' % (2 * 114688))
        b('s_mul_i32 s13, s33, %d' % (14 * 1024))
        b('s_add_u32 s12, s12, s13')
        b('s_add_u32 s12, s12, %s' % hex(WS_WD))
        srd(b, 24, 4, 's12', 114688 + 14 * 1024)
        b('s_lshl_b32 s12, s43, 8')
        b('v_xor_b32 v12, s12, v2')
        b('s_mul_i32 s12, s39, 114688')
        b('v_add_u32 v3, s12, v12')
        b('s_sub_u32 s12, 114688, s12')
        b('v_add_u32 v12, s12, v12')

    def wdload(vm, i):
        j = i >> 1
        r = []
        if i & 1 == 0:
            r += ['s_add_u32 s44, s49, %d' % (1024 * j), 's_sub_u32 s47, s44, 14336', 's_cselect_b32 s44, s44, s47']
        r.append('buffer_load_dwordx4 %s, v%d, s[24:27], s44 offen%s' % (vr(W + 4 * i, 4), 12 if i & 1 else 3, SC1))
        return r

    vm = VM(b)
    issue = make_issue(vm, True)

    def wl(i):
        r = []
        if i & 3 == 0:
            r += ['s_add_u32 s36, s48, %d' % (i >> 2), 's_and_b32 s36, s36, 7', 's_lshl_b32 s36, s36, 12']
        r.append(vm.op('buffer_load_dwordx4 %s, v2, s[20:23], s36 offen offset:%d%s' % (vr(W + 4 * i, 4), 1024 * (i & 3), SC1), 'w%d' % (i >> 1)))
        return r
    E(b, issue('x0'))
    for i in range(W0):
        E(b, wl(i))
    b('s_barrier')
    b('v_lshrrev_b32 v12, 4, v1')
    b('v_bfe_u32 v13, v1, 2, 2')
    b('v_and_b32 v14, 3, v1')
    b('v_lshl_add_u32 v15, v12, 3, v13')
    b('v_lshlrev_b32 v15, 8, v15')
    b('v_lshl_add_u32 v15, v14, 3, v15')
    b('v_and_b32 v14, 1, v12')
    b('v_lshl_add_u32 v14, v13, 1, v14')
    b('v_lshl_add_u32 v4, v14, 5, v15')
    for tt in range(1, 8):
        b('v_xor_b32 v%d, %d, v4' % (4 + tt, 32 * tt))
    for i in range(W0, WP):
        E(b, wl(i))
    b('v_and_b32 v13, 15, v1')
    b('s_lshl_b32 s35, s33, 8')
    b('s_add_u32 s35, s35, %d' % CBL)
    b('v_lshl_add_u32 v14, v13, 3, s35')
    b('s_mov_b32 s35, %d' % ST)
    b('v_lshl_add_u32 v13, v13, 5, s35')
    b('v_cmp_gt_u32 s[40:41], 16, v1')
    b('s_mul_i32 s12, s8, 448')
    b('s_add_u32 s12, s12, s11')
    b('s_lshl_b32 s12, s12, 10')
    b('s_add_u32 s12, s12, %s' % hex(WS_HF))
    b(add64(14, 4, 's12'))
    phase2_setup()
    stamp(b, 1)
    b(vm.wait('x0', 'w0'))
    b('s_barrier')
    stamp(b, 2)
    if OLDPRIO:
        b('s_cmp_ge_u32 s33, 4')
        b('s_cbranch_scc1 K2_NP')
        b('s_setprio 1')
        b.label('K2_NP')
    if LPRIO:
        b('s_setprio %d' % LPRIO)
    E(b, xreads(0) + xreads(1))
    nw = WP
    for u in range(32):
        c = u >> 2
        if u & 1 == 0 and u:
            b(vm.wait('w%d' % (u >> 1)))
        if u & 3 == 2:
            if c + 1 in BARS:
                b('s_barrier')
            stamp(b, 3 + c)
        if u == CORR:
            A0, B0 = W + 32, W
            b('ds_read_b64 %s, v14' % vr(A0, 2))
            b('ds_read_b64 %s, v14 offset:128' % vr(A0 + 4, 2))
            for tt in range(8):
                b('ds_read_b128 %s, v13 offset:%d' % (vr(B0 + 4 * tt, 4), 512 * tt))
            b('v_pk_mov_b32 %s, 0, 0' % vr(A0 + 2, 2))
            b('v_pk_mov_b32 %s, 0, 0' % vr(A0 + 6, 2))
            b('s_waitcnt lgkmcnt(8)')
            for r in (0, 1, 4, 5):
                b('v_cndmask_b32 v%d, 0, v%d, s[40:41]' % (A0 + r, A0 + r))
            b('s_waitcnt lgkmcnt(0)')
            for tt in range(8):
                for m in range(2):
                    a = vr(ACC + 8 * tt + 4 * m, 4)
                    b('v_mfma_f32_16x16x32_bf16 %s, %s, %s, %s' % (a, vr(A0 + 4 * m, 4), vr(B0 + 4 * tt, 4), a))
        if u == YB:
            assert nw == 32
            b('s_cmp_lt_u32 s33, 4')
            b('s_cbranch_scc1 K2_NY')
            for i in range(YN):
                E(b, wdload(None, i))
            b.label('K2_NY')
        pend = []
        for _ in range(int(WPAT[u % len(WPAT)])):
            if nw < 32:
                pend += wl(nw)
                nw += 1
        if u == 31:
            pend += ['ds_read_b128 %s, v13 offset:%d' % (vr(48 + 4 * tt, 4), 512 * tt + 16) for tt in range(4)]
        fill = (xreads(u + 2) if u < 30 else []) + pend
        b('s_waitcnt lgkmcnt(%d)' % (8 if u < 31 else 0))
        f = XB + 16 * (u % 3)
        mm = []
        for j, m in ([(j, m) for m in range(2) for j in range(4)] if opt('MORD', 0) == 1 else
                     [(j, m ^ (j & 1)) for j in range(4) for m in range(2)] if opt('MORD', 0) == 2 else
                     [(j, m) for j in range(4) for m in range(2)]):
            if True:
                a = vr(ACC + 8 * (4 * (u & 1) + j) + 4 * m, 4)
                mm.append('v_mfma_f32_16x16x32_bf16 %s, %s, %s, %s' % (a, vr(W + 8 * (u >> 1) + 4 * m, 4), vr(f + 4 * j, 4), a if u > 1 else '0'))
        E(b, spread(mm, fill, 2))
    stamp(b, 11)
    if LPRIO:
        b('s_setprio 0')
    wdq = []
    if ILV:
        for i in range(0, YN, 2):
            wdq.append(['s_cmp_ge_u32 s33, 4', 's_cbranch_scc1 K2_S%d' % i] + wdload(None, i) + wdload(None, i + 1) + ['K2_S%d:' % i])
        rest = [wdload(None, i) + wdload(None, i + 1) for i in range(YN, 28 - NL, 2)]
        wdq = (rest + wdq) if RESTF else (wdq + rest)
    else:
        b('s_cmp_ge_u32 s33, 4')
        b('s_cbranch_scc1 K2_NO')
        for i in range(YN):
            E(b, wdload(None, i))
        b.label('K2_NO')
        for i in range(YN, 28 - NL):
            E(b, wdload(None, i))
    CO = lambda tt: 48 + 4 * tt if tt < 4 else 240 + 4 * (tt - 4)
    for tt in range(4, 8):
        b('ds_read_b128 %s, v13 offset:%d' % (vr(CO(tt), 4), 512 * tt + 16))
    b('s_waitcnt lgkmcnt(4)')
    cnt = [0]

    def ep(t):
        b(t)
        cnt[0] += 1
        if cnt[0] % EPI == 0 and wdq:
            E(b, wdq.pop(0))
    for p in range(4):
        T = 16 + 16 * (p & 1)
        if p == 2:
            b('s_waitcnt lgkmcnt(0)')
        tl = [(ACC + 8 * (2 * p + e) + 2 * k, T + 4 * e + 2 * k, CO(2 * p + e)) for e in range(2) for k in range(2)]
        for g, t, c in tl:
            ep(pk('mul', t, [('p', g), ('p', g)]))
        for g, t, c in tl:
            ep(pk('fma', t, [('p', t), ('b', c + 1), ('b', c)]))
        for g, t, c in tl:
            ep(pk('mul', t, [('p', t), ('p', g)]))
        for g, t, c in tl:
            ep('v_exp_f32 v%d, v%d' % (t, t))
            ep('v_exp_f32 v%d, v%d' % (t + 1, t + 1))
            ep(pk('mul', g, [('p', g), ('p', g + 4)]))
        for g, t, c in tl:
            ep(pk('fma', t, [('p', t), ('b', c + 2), ('b', c + 2)]))
        for k in range(8):
            ep('v_rcp_f32 v%d, v%d' % (T + k, T + k))
        for g, t, c in tl:
            ep(pk('mul', g, [('p', g), ('p', t)]))
        for n, (g, t, c) in enumerate(tl):
            ep('v_cvt_pk_bf16_f32 v%d, v%d, v%d' % (T + 8 + n, g, g + 1))
        ep('v_permlane16_swap_b32 v%d, v%d' % (T + 8, T + 10))
        ep('v_permlane16_swap_b32 v%d, v%d' % (T + 9, T + 11))
        ep('global_store_dwordx4 v2, %s, s[14:15] sc1' % vr(T + 8, 4))
        if p < 3:
            ep(add64(14, 14, '114688'))
    assert not wdq
    stamp(b, 12)
    for i in range(28 - NL, 28):
        E(b, wdload(None, i))
    NLATE = NL

    b.label('K2_P2')
    RS, GBR = 240, 248
    b('s_lshl_b32 s45, s37, 6')
    b('s_lshl_b32 s12, s39, 5')
    b('s_add_u32 s45, s45, s12')
    b('s_lshl_b32 s12, s43, 4')
    b('s_add_u32 s45, s45, s12')
    b('s_lshl_b32 s46, s38, 6')
    b('s_lshl_b32 s12, s42, 5')
    b('s_add_u32 s46, s46, s12')
    b('v_lshrrev_b32 v6, 5, v1')
    b('v_and_b32 v7, 31, v1')
    b('s_lshl_b32 s12, s45, 2')
    b('s_add_u32 s12, s12, %d' % (WS_MODP + 5 * 2048))
    b(add64(14, 4, 's12'))
    b(add64(28, 14, '12288'))
    b('v_lshlrev_b32 v8, 4, v6')
    for p_, (base, reg) in enumerate(((14, GBR), (28, 56))):
        b('global_load_dwordx4 %s, v8, s[%d:%d]%s' % (vr(reg, 4), base, base + 1, SC1))
        b('global_load_dwordx4 %s, v8, s[%d:%d] offset:32%s' % (vr(reg + 4, 4), base, base + 1, SC1))
    b('v_add_lshl_u32 v9, v7, s46, 1')
    b('v_lshl_add_u32 v9, v6, 10, v9')
    b('s_sub_u32 s12, s37, s48')
    b('s_and_b32 s12, s12, 7')
    b('s_lshl_b32 s12, s12, 6')
    b('s_and_b32 s13, s45, 63')
    b('s_add_u32 s12, s12, s13')
    b('s_lshl_b32 s12, s12, 8')
    b('v_add_u32 v9, s12, v9')
    for q in range(2):
        for i in range(4):
            b('v_xor_b32 v%d, %d, v9' % (10 + (i & 1), 64 * i + 32 * q))
            b('ds_read_u16 v%d, v%d offset:%d' % (RS + 4 * q + i, 10 + (i & 1), 2048 * q + 256 * i))
    b('s_lshl_b32 s12, s8, 7')
    b('s_add_u32 s12, s12, s46')
    b('s_lshl_b32 s12, s12, 10')
    b('s_lshl_b32 s13, s45, 1')
    b('s_add_u32 s12, s12, s13')
    b(add64(50, 50, 's12'))
    b('v_lshl_add_u32 v15, v7, 10, v8')
    b('s_lshl_b32 s12, s8, 1')
    b('s_add_u32 s12, s12, s38')
    b('s_mul_i32 s12, s12, %d' % (2 * 114688))
    b('s_mul_i32 s13, s33, %d' % (14 * 1024))
    b('s_add_u32 s12, s12, s13')
    b('s_add_u32 s12, s12, %s' % hex(WS_HF))
    srd(b, 20, 4, 's12', 114688 + 14 * 1024)
    b('s_mul_i32 s12, s42, 114688')
    b('v_add_u32 v13, s12, v2')
    b('s_sub_u32 s12, 114688, s12')
    b('v_add_u32 v14, s12, v2')
    b('s_waitcnt vmcnt(%d) lgkmcnt(0)' % (NLATE + 4))
    stamp(b, 9)
    b('s_cmp_lg_u32 s33, 7')
    b('s_barrier')
    stamp(b, 10)
    b('s_cbranch_scc1 K2_GO2')
    b('s_lshl_b32 s12, s8, 11')
    b('s_add_u32 s12, s12, %s' % hex(WS_FLG))
    b(add64(28, 4, 's12'))
    b('s_lshl_b32 s12, s30, 7')
    b('v_mov_b32 v4, s12')
    b('v_mov_b32 v5, 1')
    b('global_store_dword v4, v5, s[28:29] sc1')
    b('v_and_b32 v4, 15, v1')
    b('v_lshlrev_b32 v4, 7, v4')
    b('s_mov_b32 s36, %d' % SPIN)
    b.label('K2_POLL2')
    b('global_load_dword v16, v4, s[28:29] ' + POLL)
    b('s_waitcnt vmcnt(0)')
    b('v_cmp_ne_u32 vcc, 1, v16')
    b('s_cmp_eq_u64 vcc, 0')
    b('s_cbranch_scc1 K2_GO2')
    b('s_sleep %d' % opt('SLP', 1))
    b('s_sub_u32 s36, s36, 1')
    b('s_cmp_lg_u32 s36, 0')
    b('s_cbranch_scc1 K2_POLL2')
    b.label('K2_GO2')
    b('s_barrier')
    stamp(b, 13)
    vm = VM(b)

    def hload(j):
        f = XB + 8 * (j % HD)
        r = []
        r += ['s_add_u32 s44, s49, %d' % (1024 * j), 's_sub_u32 s47, s44, 14336', 's_cselect_b32 s44, s44, s47']
        for h in range(2):
            r.append(vm.op('buffer_load_dwordx4 %s, v%d, s[20:23], s44 offen sc1' % (vr(f + 4 * h, 4), 13 + h), 'h%d' % j))
        return r
    for j in range(HD - 1):
        E(b, hload(j))
    b('s_waitcnt vmcnt(%d)' % (2 * (HD - 1)))
    for k in range(0, 8, 2):
        b(pk('add', GBR + k, [('p', GBR + k), ('p', 56 + k)]))
    E(b, hload(HD - 1))
    for k in range(0, 8, 2):
        E(b, rnd_pair(GBR + k, 4))
    for x in range(1, 8):
        b('s_xor_b32 s12, s33, %d' % x)
        b('s_mul_i32 s12, s12, %d' % (7 * 2048))
        b('s_add_u32 s12, s12, %d' % (2048 * (x - 1)))
        b('v_add_u32 v%d, s12, v2' % (3 + x))
    b('s_mul_i32 s12, s33, %d' % (7 * 2048))
    b('v_add_u32 v3, s12, v2')
    for k in range(8):
        b('v_lshlrev_b32 v%d, 16, v%d' % (RS + k, RS + k))
    for j in range(14):
        f = XB + 8 * (j % HD)
        b(vm.wait('h%d' % j))
        for sl in ((0, 1, 3, 2) if opt('MORD2', 0) else range(4)):
            a = vr(ACC + 16 * sl, 16)
            b('v_mfma_f32_32x32x16_bf16 %s, %s, %s, %s' % (a, vr(W + 8 * j + 4 * (sl & 1), 4), vr(f + 4 * (sl >> 1), 4), a if j else '0'))
        if j + HD < 14:
            E(b, hload(j + HD))
    stamp(b, 14)
    for x in (1, 2, 3, 5, 6, 7, 4):
        r = ACC + 16 * (x & 3) + 8 * (x >> 2)
        b('ds_write_b128 v%d, %s' % (3 + x, vr(r, 4)))
        b('ds_write_b128 v%d, %s offset:1024' % (3 + x, vr(r + 4, 4)))
    for k in range(0, 8, 2):
        b(pk('fma', RS + k, [('p', ACC + k), ('p', GBR + k), ('p', RS + k)]))
    b('s_waitcnt lgkmcnt(0)')
    b('s_barrier')
    for x in range(7):
        for h in range(2):
            b('ds_read_b128 %s, v3 offset:%d' % (vr(ACC + 8 * x + 4 * h, 4), 2048 * x + 1024 * h))
    b('s_waitcnt lgkmcnt(6)')
    for k in range(0, 8, 2):
        b(pk('add', ACC + k, [('p', ACC + k), ('p', ACC + 8 + k)]))
        b(pk('add', ACC + 16 + k, [('p', ACC + 16 + k), ('p', ACC + 24 + k)]))
    b('s_waitcnt lgkmcnt(2)')
    for k in range(0, 8, 2):
        b(pk('add', ACC + k, [('p', ACC + k), ('p', ACC + 16 + k)]))
        b(pk('add', ACC + 32 + k, [('p', ACC + 32 + k), ('p', ACC + 40 + k)]))
    b('s_waitcnt lgkmcnt(0)')
    for k in range(0, 8, 2):
        b(pk('add', ACC + k, [('p', ACC + k), ('p', ACC + 48 + k)]))
    for k in range(0, 8, 2):
        b(pk('add', ACC + k, [('p', ACC + k), ('p', ACC + 32 + k)]))
    for k in range(0, 8, 2):
        b(pk('fma', RS + k, [('p', ACC + k), ('p', GBR + k), ('p', RS + k)]))
    for k in range(4):
        b('v_cvt_pk_bf16_f32 v%d, v%d, v%d' % (ACC + k, RS + 2 * k, RS + 2 * k + 1))
    b('v_permlane32_swap_b32 v%d, v%d' % (ACC, ACC + 2))
    b('v_permlane32_swap_b32 v%d, v%d' % (ACC + 1, ACC + 3))
    b('global_store_dwordx4 v15, %s, s[50:51] %s' % (vr(ACC, 4), ST_OUT))
    stamp_end(b, 2)
    b('s_endpgm')

    b.label('K2_AUX')
    srd(b, 16, 4, 's10', 131072)
    vm = VM(b)
    issue = make_issue(vm, False)
    for t in PLAN[-2]:
        E(b, issue(t))
    b('s_barrier')
    b('s_setprio 3')
    for t in PLAN[-1]:
        E(b, issue(t))
    b('s_lshr_b32 s12, s30, 1')
    b('s_lshl_b32 s12, s12, 5')
    b('v_lshrrev_b32 v20, 1, v1')
    b('v_and_b32 v21, 3, v20')
    b('v_lshlrev_b32 v21, 6, v21')
    b('v_bfe_u32 v22, v20, 3, 1')
    b('v_lshl_add_u32 v21, v22, 5, v21')
    b('v_xor_b32 v21, s12, v21')
    b('v_lshl_add_u32 v21, v20, 8, v21')
    b('v_and_b32 v22, 1, v1')
    b('v_lshl_add_u32 v21, v22, 4, v21')
    b('s_and_b32 s13, s30, 1')
    b('s_lshl_b32 s31, s13, 16')
    b(add64(14, 4, hex(WS_CB)))
    b('v_min_u32 v23, 55, v1')
    b('v_lshrrev_b32 v27, 3, v23')
    b('v_add_u32 v27, s9, v27')
    b('v_lshrrev_b32 v29, 2, v27')
    b('v_lshlrev_b32 v29, 12, v29')
    b('v_and_b32 v27, 3, v27')
    b('v_lshl_add_u32 v27, v27, 6, v29')
    b('v_bfe_u32 v29, v23, 2, 1')
    b('v_lshl_add_u32 v27, v29, 11, v27')
    b('v_and_b32 v29, 3, v23')
    b('v_lshl_add_u32 v27, v29, 4, v27')
    b('v_lshlrev_b32 v104, 5, v23')
    b('v_add_u32 v104, %d, v104' % CBL)
    b('v_lshlrev_b32 v105, 5, v1')
    b('v_add_u32 v105, %d, v105' % ST)
    b('v_mov_b32 v28, v21')
    b('v_lshrrev_b32 v20, 4, v1')
    b('v_bfe_u32 v21, v1, 2, 2')
    b('v_and_b32 v22, 3, v1')
    b('v_cmp_eq_u32 s[46:47], v20, v21')
    b('v_cmp_eq_u32 s[40:41], 1, v22')
    b('v_cmp_eq_u32 s[42:43], 2, v22')
    b('v_cmp_eq_u32 s[44:45], 3, v22')
    b('v_lshl_add_u32 v24, v20, 3, v21')
    b('v_lshlrev_b32 v24, 5, v24')
    b('v_lshl_add_u32 v24, v22, 3, v24')
    b('v_add_u32 v24, %d, v24' % SCR)
    for i in range(4):
        b('v_mov_b32 v%d, 0x3f803f80' % (112 + i))
    b('s_lshl_b32 s12, s8, 11')
    b('s_add_u32 s12, s12, %s' % hex(WS_SST))
    b(add64(28, 4, 's12'))
    b('s_lshl_b32 s13, s13, 10')
    b('s_lshr_b32 s12, s30, 1')
    b('s_lshl_b32 s12, s12, 7')
    b('s_add_u32 s12, s12, s13')
    b('v_and_b32 v25, 15, v1')
    b('v_lshl_add_u32 v25, v25, 3, s12')
    b('v_lshlrev_b32 v26, 3, v1')
    stamp(b, 1)
    b(vm.wait('x0') + ' lgkmcnt(0)')
    b('s_barrier')

    def shreq():
        for i in range(8):
            b('s_mov_b32 m0, %d' % (SCR + 1024 * i))
            b(vm.op('buffer_load_dwordx4 v28, s[16:19], s31 offen%s lds' % SC1, 'sh'))
            b('s_add_u32 s31, s31, 8192')

    def cbreq():
        for q in range(4):
            for w in range(2):
                b(vm.op('global_load_dwordx4 %s, v27, s[14:15] offset:%d%s' % (vr(64 + 16 * w + 4 * q, 4), 512 * q + 256 * w, SC1), 'cb'))
    SH, CBQ = opt('SH', 0), opt('CBQ', 2)
    if SH < 0:
        shreq()
    if CBQ < 0:
        cbreq()

    def share():
        b(vm.wait('sh'))
        for kk in range(8):
            for e in range(2):
                b('ds_read_b64_tr_b16 %s, v24 offset:%d' % (vr(32 + 4 * kk + 2 * e, 2), 1024 * kk + 128 * e))
        for kk in range(8):
            b('s_waitcnt lgkmcnt(%d)' % (14 - 2 * kk))
            f = vr(32 + 4 * kk, 4)
            b('v_mfma_f32_16x16x32_bf16 v[120:123], %s, %s, %s' % (f, f, 'v[120:123]' if kk else '0'))
            b('v_mfma_f32_16x16x32_bf16 v[116:119], v[112:115], %s, %s' % (f, 'v[116:119]' if kk else '0'))
        b('v_cndmask_b32 v117, v120, v121, s[40:41]')
        b('v_cndmask_b32 v117, v117, v122, s[42:43]')
        b('v_cndmask_b32 v117, v117, v123, s[44:45]')
        b('v_and_b32 v117, 0x7fffffff, v117')
        b('s_mov_b64 exec, s[46:47]')
        b(vm.op('global_store_dwordx2 v25, v[116:117], s[28:29] sc1', 'pub'))
        b('s_mov_b64 exec, -1')
        stamp(b, 2)

    def cbprep():
        b(vm.wait('cb'))
        for w in range(2):
            p = 64 + 16 * w
            for k in (0, 2):
                b(pk('add', p + k, [('p', p + k), ('p', p + 4 + k)]))
                b(pk('add', p + 8 + k, [('p', p + 8 + k), ('p', p + 12 + k)]))
            for k in (0, 2):
                b(pk('add', p + k, [('p', p + k), ('p', p + 8 + k)]))
        for j in range(4):
            for w in range(2):
                x = 64 + 16 * w + j
                t = 96 + 2 * j + w
                E(b, ['v_cvt_pk_bf16_f32 v%d, v%d, v%d' % (t, x, x), 'v_and_b32 v%d, 0xffff0000, v%d' % (x + 4, t),
                      'v_sub_f32 v%d, v%d, v%d' % (x, x, x + 4), 'v_cvt_pk_bf16_f32 v%d, v%d, v%d' % (t, x + 4, x)])
        b('ds_write_b128 v104, v[96:99]')
        b('ds_write_b128 v104, v[100:103] offset:16')
        phase2_setup()

    def gather():
        K0c = -2.0 * math.sqrt(2.0 / math.pi) * LOG2E
        b('s_mov_b32 s36, %d' % SPIN)
        b('s_mov_b32 s12, %s' % fhex(1.0 / 512))
        b('s_mov_b32 s14, %s' % fhex(1e-5))
        b.label('K2_POLLS')
        for i in range(4):
            b('global_load_dwordx2 %s, v26, s[28:29] offset:%d sc1' % (vr(64 + 2 * i, 2), 512 * i))
        b('s_waitcnt vmcnt(0)')
        b('v_or_b32 v72, v65, v67')
        b('v_or3_b32 v72, v72, v69, v71')
        b('v_cmp_gt_i32 vcc, 0, v72')
        b('s_cmp_eq_u64 vcc, 0')
        b('s_cbranch_scc1 K2_GOS')
        b('s_sleep 2')
        b('s_sub_u32 s36, s36, 1')
        b('s_cmp_lg_u32 s36, 0')
        b('s_cbranch_scc1 K2_POLLS')
        b.label('K2_GOS')
        b('v_add_f32 v82, v64, v68')
        b('v_add_f32 v83, v66, v70')
        b('v_add_f32 v80, v65, v69')
        b('v_add_f32 v81, v67, v71')
        b(pk('mul', 82, [('p', 82), ('sl', 12)]))
        b(pk('mul', 80, [('p', 80), ('sl', 12)]))
        b(pk('fma', 80, [('p', 82), ('p', 82), ('p', 80)], neg_lo=[1, 0, 0], neg_hi=[1, 0, 0]))
        B0, B1 = 88, 96
        b('v_cvt_pk_bf16_f32 v%d, -v82, -v82' % B0)
        b('v_cvt_pk_bf16_f32 v%d, -v83, -v83' % B1)
        b('v_max_f32 v80, 0, v80')
        b('v_max_f32 v81, 0, v81')
        E(b, rnd_pair(80, 84))
        b(pk('add', 80, [('p', 80), ('sl', 14)]))
        E(b, rnd_pair(80, 84))
        b('v_sqrt_f32 v80, v80')
        b('v_sqrt_f32 v81, v81')
        b('v_pk_mov_b32 %s, 0, 0' % vr(B0 + 2, 2))
        b('v_pk_mov_b32 %s, 0, 0' % vr(B1 + 2, 2))
        b('v_cvt_pk_bf16_f32 v%d, v80, v80' % (B0 + 1))
        b('v_cvt_pk_bf16_f32 v%d, v81, v81' % (B1 + 1))
        b('v_lshlrev_b32 v80, 16, v%d' % (B0 + 1))
        b('v_lshlrev_b32 v81, 16, v%d' % (B1 + 1))
        b('v_rcp_f32 v82, v80')
        b('v_rcp_f32 v83, v81')
        b('ds_write_b128 v105, %s' % vr(B0, 4))
        b('ds_write_b128 v105, %s offset:2048' % vr(B1, 4))
        b('v_mul_f32 v%d, v80, v80' % (B0 + 6))
        b('v_mul_f32 v%d, v81, v81' % (B1 + 6))
        b('v_mul_f32 v%d, %s, v82' % (B0 + 4, fhex(K0c)))
        b('v_mul_f32 v%d, %s, v83' % (B1 + 4, fhex(K0c)))
        b(pk('mul', 82, [('p', 82), ('p', 82)]))
        b('v_mul_f32 v82, %s, v82' % fhex(0.044715))
        b('v_mul_f32 v83, %s, v83' % fhex(0.044715))
        b('v_mul_f32 v%d, v82, v%d' % (B0 + 5, B0 + 4))
        b('v_mul_f32 v%d, v83, v%d' % (B1 + 5, B1 + 4))
        b('ds_write_b128 v105, %s offset:16' % vr(B0 + 4, 4))
        b('ds_write_b128 v105, %s offset:2064' % vr(B1 + 4, 4))
        stamp(b, 11)
    for c in range(8):
        for t in PLAN.get(c, []):
            E(b, issue(t))
        if c == SH:
            shreq()
        if c == CBQ:
            cbreq()
        if c == max(SH, 0) + 1:
            share()
        if c == max(CBQ, 1) + 1:
            cbprep()
        if c + 1 in BARS:
            if c == GATHER:
                gather()
                b('s_waitcnt lgkmcnt(0)')
            else:
                b(vm.wait(*BARS[c + 1]))
            stamp(b, 3 + c)
            b('s_barrier')
    if GATHER + 1 not in BARS:
        gather()
    for i in range(28):
        E(b, wdload(vm, i))
    b('s_setprio 0')
    stamp(b, 12)
    b('s_waitcnt vmcnt(0)')
    b('s_branch K2_P2')
    b.label('K2_END')
    b('s_endpgm')
    return b.text(), 256, NSG
```

```python
import sys
from common import *
import g01, g23


def build(kernels, data):
    head = open('cdna_kernels/%s.s.ref' % NAME).read().split('\n')
    out = [l for l in head if l.startswith(';') and '@launch' not in l and 'Override launch' not in l and 'grid=ceil' not in l]
    for name, fn, grid, block, lds in kernels:
        out.append('; @launch kernel=%s grid=(%d,1,1) block=(%d,1,1) lds=%d' % (name, grid, block, lds))
    out.append('.amdgcn_target "amdgcn-amd-amdhsa--gfx950"')
    out.append('.text')
    desc = []
    for name, fn, grid, block, lds in kernels:
        text, nv, ns = fn()
        out.append('.globl %s\n.p2align 8\n.type %s,@function\n%s:' % (name, name, name))
        if WS_BASE:
            text = text.replace('s_load_dwordx2 s[4:5], s[0:1], 136', 's_load_dwordx2 s[4:5], s[0:1], 136\n  s_waitcnt lgkmcnt(0)\n  s_add_u32 s4, s4, 0x%x\n  s_addc_u32 s5, s5, 0' % WS_BASE)
        out.append(text)
        desc.append('.p2align 6\n.amdhsa_kernel %s\n  .amdhsa_next_free_vgpr %d\n  .amdhsa_next_free_sgpr %d\n  .amdhsa_accum_offset %d\n'
                    '  .amdhsa_group_segment_fixed_size 0\n  .amdhsa_kernarg_size 144\n  .amdhsa_user_sgpr_count 2\n'
                    '  .amdhsa_user_sgpr_kernarg_segment_ptr 1\n  .amdhsa_system_sgpr_workgroup_id_x 1\n.end_amdhsa_kernel'
                    % (name, nv, ns, (min(nv, 256) + 3) // 4 * 4))
    out.append('CODE_END:')
    out.append('.section .rodata,"a"')
    out += desc
    out += data
    return '\n'.join(out) + '\n'


if __name__ == '__main__':
    if ONE:
        ks = [(NAME + '_kernel', lambda: g23.k23(g01.k01()), 256, 512, max(g01.LDS, g23.K2_LDS))]
    else:
        ks = [('prep_kernel', g01.k01, g01.WGS, 512, g01.LDS), ('gemm1_kernel', g23.k23, g23.K2_WGS, 512, g23.K2_LDS)]
    open(sys.argv[1], 'w').write(build(ks, [g01.gather_table()]))
```

```python
from common import *

K2_WGS = 256
ST = 131072
CBL = ST + 4096
FLAG = CBL + 7 * 32 * 8
SCR = FLAG + 256
K2_LDS = SCR + 8192
PLANS = [
    ({-2: ['x0'], -1: ['x1', 'x2'], 0: ['x3'], 1: ['x4'], 2: ['x5'], 3: ['x6'], 4: ['x7']},
     {0: ['x0'], 1: ['x1'], 2: ['x2'], 3: ['x3'], 4: ['x4'], 5: ['x5'], 6: ['x6', 'x7']}),
    ({-2: ['x0'], -1: ['x1', 'x2'], 0: ['x3'], 1: ['x4'], 2: ['x5', 'x6'], 3: ['x7']},
     {0: ['x0'], 1: ['x1'], 2: ['x2'], 3: ['x3'], 4: ['x4'], 5: ['x5', 'x6', 'x7']}),
    ({-2: ['x0'], -1: ['x1', 'x2'], 0: ['x3', 'x4'], 1: ['x5', 'x6'], 2: ['x7']},
     {0: ['x0'], 1: ['x1'], 2: ['x2'], 3: ['x3'], 4: ['x4', 'x5', 'x6', 'x7']}),
    ({-2: ['x0'], -1: ['x1', 'x2'], 0: ['x3'], 1: ['x4'], 2: ['x5'], 3: ['x6'], 4: ['x7']},
     {0: ['x0'], 1: ['x1'], 2: ['x2'], 3: ['x3'], 4: ['x4'], 5: ['x5'], 6: ['x6'], 7: ['x7']}),
    ({-2: ['x0'], -1: ['x1', 'x2', 'x3'], 0: ['x4'], 1: ['x5'], 2: ['x6', 'x7']},
     {0: ['x0'], 1: ['x1'], 2: ['x2'], 3: ['x3'], 4: ['x4'], 5: ['x5', 'x6', 'x7']}),
]
PLAN, BARS = PLANS[opt('PLAN', 1)]
GATHER = max(BARS) - 1
WD0 = opt('WD0', 18)
AUXX = True
W0 = opt('W0', 2)
WP = opt('WP', 6)
_n, _u = WP, 0
WPAT = opt('WPAT', '12')
while _n < 32:
    _n += int(WPAT[_u % len(WPAT)])
    _u += 1
YB = max(4 * GATHER + 2, _u + (_u & 1), opt('YB', 0))
YN = min(YB, 28)
EPI = opt('EPI', 12)
NB = opt('NB', 2)
HD = 6
LPRIO = opt('LPRIO', 2)
CORR = 4 * GATHER + 2
NL = opt('NL', 4)
ILV = opt('ILV', False)
RESTF = opt('RESTF', True)
ROT = opt('ROT', 0)
ROT2 = opt('ROT2', 0)
OLDPRIO = opt('OLDPRIO', False)
SPIN = 0x20000
ST_OUT = opt('ST_OUT', '')
W, XB, ACC = 128, 16, 64
SC1 = ' sc1' if ONE and opt('SC1', True) else ''


def k23(b=None):
    if b is None:
        b = Builder()
        b('s_cmp_ge_u32 s2, %d' % K2_WGS)
        b('s_cbranch_scc1 K2_END')
        b('s_load_dwordx2 s[4:5], s[0:1], %d' % KA['ws'])
        b('s_load_dwordx2 s[50:51], s[0:1], %d' % KA['out'])
        stamp_init(b)
        b('v_lshrrev_b32 v2, 6, v0')
        b('v_and_b32 v1, 63, v0')
        b('v_readfirstlane_b32 s33, v2')
    else:
        b.label('K2_ENTRY')
        b('s_setprio 0')
        if opt('SWAP', True):
            b('s_xor_b32 s33, s33, 4')
        b('s_load_dwordx2 s[50:51], s[0:1], %d' % KA['out'])
    b('s_and_b32 s6, s2, 7')
    b('s_lshr_b32 s7, s2, 3')
    b('s_lshr_b32 s8, s6, 1')
    b('s_lshl_b32 s8, s8, 2')
    b('s_lshr_b32 s9, s7, 3')
    b('s_add_u32 s8, s8, s9')
    b('s_and_b32 s30, s6, 1')
    b('s_lshl_b32 s30, s30, 3')
    b('s_and_b32 s10, s7, 7')
    b('s_add_u32 s30, s30, s10')
    if opt('MAP2', False):
        b('s_lshl_b32 s8, s6, 1')
        b('s_lshr_b32 s9, s7, 4')
        b('s_add_u32 s8, s8, s9')
        b('s_and_b32 s30, s7, 15')
    b('s_mul_i32 s9, s30, 7')
    b('v_lshlrev_b32 v2, 4, v1')
    b('s_lshl_b32 s10, s8, 17')
    b('s_add_u32 s10, s10, %s' % hex(WS_X1T))
    b('s_add_u32 s11, s9, s33')
    b('s_lshl_b32 s12, s11, 15')
    b('s_add_u32 s12, s12, %s' % hex(WS_WF))
    b('s_lshl_b32 s34, s33, 11')
    b('s_and_b32 s48, s8, 3')
    b('s_lshl_b32 s48, s48, 1')
    b('s_add_u32 s48, s48, s30')
    b('s_and_b32 s48, s48, %d' % ROT)
    if ONE:
        b('v_mov_b32 v4, %d' % CNT_ADDR)
        b('v_mov_b32 v5, 1')
        b('s_lshr_b32 s35, s2, 2')
        b('s_lshl_b32 s35, s35, 7')
        b('s_and_b32 s36, s2, 3')
        b('s_lshl_b32 s36, s36, 2')
        b('s_add_u32 s35, s35, s36')
        b('v_mov_b32 v7, s35')
        b(add64(14, 4, hex(WS_G3)))
        b('ds_read_b32 v6, v4 offset:52')
        b('v_lshlrev_b32 v12, 7, v1')
        b('s_waitcnt vmcnt(0) lgkmcnt(0)')
        b('s_mov_b64 exec, 1')
        b('ds_add_rtn_u32 v5, v4, v5 offset:48')
        b('s_mov_b64 exec, -1')
        b('s_mov_b32 s36, %d' % SPIN)
        b('s_waitcnt lgkmcnt(0)')
        b('v_readfirstlane_b32 s35, v5')
        b('s_cmp_lg_u32 s35, 7')
        b('s_cbranch_scc1 K2_G3X')
        b('ds_read_b32 v6, v4 offset:52')
        b('s_waitcnt lgkmcnt(0)')
        b('global_store_dword v7, v6, s[14:15] sc1')
        b.label('K2_G3')
        b('global_load_dwordx4 v[8:11], v12, s[14:15] ' + POLL)
        b('s_waitcnt vmcnt(0)')
        for i in range(4):
            b('v_xor_b32 v%d, v%d, v6' % (8 + i, 8 + i))
        b('v_or3_b32 v8, v8, v9, v10')
        b('v_or_b32 v8, v8, v11')
        b('v_cmp_ne_u32 vcc, 0, v8')
        b('s_cmp_eq_u64 vcc, 0')
        b('s_cbranch_scc1 K2_G3X')
        b('s_mov_b64 exec, vcc')
        b('s_sleep %d' % opt('SL3', 4))
        b('s_sub_u32 s36, s36, 1')
        b('s_cmp_lg_u32 s36, 0')
        b('s_cbranch_scc1 K2_G3')
        b.label('K2_G3X')
        b('s_mov_b64 exec, -1')
        b('s_barrier')
        stamp(b, 0)
    b('s_cmp_eq_u32 s33, 7')
    b('s_waitcnt lgkmcnt(0)')
    b('s_cbranch_scc1 K2_AUX')
    srd(b, 16, 4, 's10', 131072)
    srd(b, 20, 4, 's12', 32768)

    def make_issue(vm, with_w):
        def issue(tag):
            c = int(tag[1])
            if tag[0] == 'x' and AUXX and c > 0:
                if with_w:
                    return []
                r = ['s_add_u32 s35, s48, %d' % c, 's_and_b32 s35, s35, 7', 's_lshl_b32 s35, s35, 14']
                for i in range(4):
                    r += ['s_mov_b32 m0, %d' % (16384 * c + 4096 * i)] + (['s_add_u32 s35, s35, 4096'] if i else [])
                    r += [vm.op('buffer_load_dwordx4 v2, s[16:19], s35 offen offset:%d%s lds' % (1024 * k, SC1), tag) for k in range(4)]
                return r
            if tag[0] == 'x':
                return ['s_lshl_b32 s35, s48, 14', 's_add_u32 s35, s35, s34', 's_mov_b32 m0, s34',
                        vm.op('buffer_load_dwordx4 v2, s[16:19], s35 offen%s lds' % SC1, tag),
                        vm.op('buffer_load_dwordx4 v2, s[16:19], s35 offen offset:1024%s lds' % SC1, tag)]
            if not with_w:
                return []
            return ['s_movk_i32 s36, %d' % (4096 * c)] + \
                   [vm.op('buffer_load_dwordx4 %s, v2, s[20:23], s36 offen offset:%d' % (vr(W + 16 * c + 4 * k, 4), 1024 * k), tag) for k in range(4)]
        return issue

    def xreads(u):
        kk, hh = u >> 1, u & 1
        f = XB + 16 * (u % 3)
        o = (kk & 7) * 8192
        r = []
        if u in (16, 17):
            r += ['v_add_u32 v%d, 0x10000, v%d' % (4 + 4 * hh + j, 4 + 4 * hh + j) for j in range(4)]
        for j in range(4):
            r.append('ds_read_b64_tr_b16 %s, v%d offset:%d' % (vr(f + 4 * j, 2), 4 + 4 * hh + j, o))
            r.append('ds_read_b64_tr_b16 %s, v%d offset:%d' % (vr(f + 4 * j + 2, 2), 4 + 4 * hh + j, o + 1024))
        return r

    def phase2_setup():
        b('s_lshr_b32 s37, s30, 3')
        b('s_lshl_b32 s37, s37, 2')
        b('s_and_b32 s38, s30, 3')
        b('s_add_u32 s37, s37, s38')
        b('s_bfe_u32 s38, s30, 0x10002')
        b('s_and_b32 s39, s33, 1')
        b('s_bfe_u32 s42, s33, 0x10001')
        b('s_lshr_b32 s43, s33, 2')
        b('s_and_b32 s49, s30, 3')
        b('s_mul_i32 s49, s49, %d' % (ROT2 * 1024))
        b('s_mul_i32 s12, s37, %d' % (2 * 114688))
        b('s_mul_i32 s13, s33, %d' % (14 * 1024))
        b('s_add_u32 s12, s12, s13')
        b('s_add_u32 s12, s12, %s' % hex(WS_WD))
        srd(b, 24, 4, 's12', 114688 + 14 * 1024)
        b('s_lshl_b32 s12, s43, 8')
        b('v_xor_b32 v12, s12, v2')
        b('s_mul_i32 s12, s39, 114688')
        b('v_add_u32 v3, s12, v12')
        b('s_sub_u32 s12, 114688, s12')
        b('v_add_u32 v12, s12, v12')

    def wdload(vm, i):
        j = i >> 1
        r = []
        if i & 1 == 0:
            r += ['s_add_u32 s44, s49, %d' % (1024 * j), 's_sub_u32 s47, s44, 14336', 's_cselect_b32 s44, s44, s47']
        r.append('buffer_load_dwordx4 %s, v%d, s[24:27], s44 offen%s' % (vr(W + 4 * i, 4), 12 if i & 1 else 3, SC1))
        return r

    vm = VM(b)
    issue = make_issue(vm, True)

    def wl(i):
        r = []
        if i & 3 == 0:
            r += ['s_add_u32 s36, s48, %d' % (i >> 2), 's_and_b32 s36, s36, 7', 's_lshl_b32 s36, s36, 12']
        r.append(vm.op('buffer_load_dwordx4 %s, v2, s[20:23], s36 offen offset:%d%s' % (vr(W + 4 * i, 4), 1024 * (i & 3), SC1), 'w%d' % (i >> 1)))
        return r
    E(b, issue('x0'))
    for i in range(W0):
        E(b, wl(i))
    if opt('FB1', True):
        b('s_barrier')
    b('v_lshrrev_b32 v12, 4, v1')
    b('v_bfe_u32 v13, v1, 2, 2')
    b('v_and_b32 v14, 3, v1')
    b('v_lshl_add_u32 v15, v12, 3, v13')
    b('v_lshlrev_b32 v15, 8, v15')
    b('v_lshl_add_u32 v15, v14, 3, v15')
    b('v_and_b32 v14, 1, v12')
    b('v_lshl_add_u32 v14, v13, 1, v14')
    b('v_lshl_add_u32 v4, v14, 5, v15')
    for tt in range(1, 8):
        b('v_xor_b32 v%d, %d, v4' % (4 + tt, 32 * tt))
    for i in range(W0, WP):
        E(b, wl(i))
    b('v_and_b32 v13, 15, v1')
    b('s_lshl_b32 s35, s33, 8')
    b('s_add_u32 s35, s35, %d' % CBL)
    b('v_lshl_add_u32 v14, v13, 3, s35')
    b('s_mov_b32 s35, %d' % ST)
    b('v_lshl_add_u32 v13, v13, 5, s35')
    b('v_cmp_gt_u32 s[40:41], 16, v1')
    b('s_mul_i32 s12, s8, 448')
    b('s_add_u32 s12, s12, s11')
    b('s_lshl_b32 s12, s12, 10')
    b('s_add_u32 s12, s12, %s' % hex(WS_HF))
    b(add64(14, 4, 's12'))
    phase2_setup()
    stamp(b, 1)
    b(vm.wait('x0', 'w0'))
    b('s_barrier')
    stamp(b, 2)
    if OLDPRIO:
        b('s_cmp_ge_u32 s33, 4')
        b('s_cbranch_scc1 K2_NP')
        b('s_setprio 1')
        b.label('K2_NP')
    if LPRIO:
        b('s_setprio %d' % LPRIO)
    E(b, xreads(0) + xreads(1))
    nw = WP
    for u in range(32):
        c = u >> 2
        if u & 1 == 0 and u:
            b(vm.wait('w%d' % (u >> 1)))
        if u & 3 == 2:
            if c + 1 in BARS:
                b('s_barrier')
            stamp(b, 3 + c)
        if u == CORR:
            A0, B0 = W + 32, W
            b('ds_read_b64 %s, v14' % vr(A0, 2))
            b('ds_read_b64 %s, v14 offset:128' % vr(A0 + 4, 2))
            for tt in range(8):
                b('ds_read_b128 %s, v13 offset:%d' % (vr(B0 + 4 * tt, 4), 512 * tt))
            b('v_pk_mov_b32 %s, 0, 0' % vr(A0 + 2, 2))
            b('v_pk_mov_b32 %s, 0, 0' % vr(A0 + 6, 2))
            b('s_waitcnt lgkmcnt(8)')
            for r in (0, 1, 4, 5):
                b('v_cndmask_b32 v%d, 0, v%d, s[40:41]' % (A0 + r, A0 + r))
            b('s_waitcnt lgkmcnt(0)')
            for tt in range(8):
                for m in range(2):
                    a = vr(ACC + 8 * tt + 4 * m, 4)
                    b('v_mfma_f32_16x16x32_bf16 %s, %s, %s, %s' % (a, vr(A0 + 4 * m, 4), vr(B0 + 4 * tt, 4), a))
        if u == YB:
            assert nw == 32
            b('s_cmp_lt_u32 s33, 4')
            b('s_cbranch_scc1 K2_NY')
            for i in range(YN):
                E(b, wdload(None, i))
            b.label('K2_NY')
        pend = []
        for _ in range(int(WPAT[u % len(WPAT)])):
            if nw < 32:
                pend += wl(nw)
                nw += 1
        if u == 31:
            pend += ['ds_read_b128 %s, v13 offset:%d' % (vr(48 + 4 * tt, 4), 512 * tt + 16) for tt in range(4)]
        fill = (xreads(u + 2) if u < 30 else []) + pend
        b('s_waitcnt lgkmcnt(%d)' % (8 if u < 31 else 0))
        f = XB + 16 * (u % 3)
        mm = []
        for j, m in ([(j, m) for m in range(2) for j in range(4)] if opt('MORD', 0) == 1 else
                     [(j, m ^ (j & 1)) for j in range(4) for m in range(2)] if opt('MORD', 0) == 2 else
                     [(j, m) for j in range(4) for m in range(2)]):
            if True:
                a = vr(ACC + 8 * (4 * (u & 1) + j) + 4 * m, 4)
                mm.append('v_mfma_f32_16x16x32_bf16 %s, %s, %s, %s' % (a, vr(W + 8 * (u >> 1) + 4 * m, 4), vr(f + 4 * j, 4), a if u > 1 else '0'))
        E(b, spread(mm, fill, 2))
    stamp(b, 11)
    if LPRIO:
        b('s_setprio 0')
    wdq = []
    if ILV:
        for i in range(0, YN, 2):
            wdq.append(['s_cmp_ge_u32 s33, 4', 's_cbranch_scc1 K2_S%d' % i] + wdload(None, i) + wdload(None, i + 1) + ['K2_S%d:' % i])
        rest = [wdload(None, i) + wdload(None, i + 1) for i in range(YN, 28 - NL, 2)]
        wdq = (rest + wdq) if RESTF else (wdq + rest)
    else:
        b('s_cmp_ge_u32 s33, 4')
        b('s_cbranch_scc1 K2_NO')
        for i in range(YN):
            E(b, wdload(None, i))
        b.label('K2_NO')
        for i in range(YN, 28 - NL):
            E(b, wdload(None, i))
    CO = lambda tt: 48 + 4 * tt if tt < 4 else 240 + 4 * (tt - 4)
    for tt in range(4, 8):
        b('ds_read_b128 %s, v13 offset:%d' % (vr(CO(tt), 4), 512 * tt + 16))
    b('s_waitcnt lgkmcnt(4)')
    cnt = [0]

    def ep(t):
        b(t)
        cnt[0] += 1
        if cnt[0] % EPI == 0 and wdq:
            E(b, wdq.pop(0))
    for p in range(4):
        T = 16 + 16 * (p & 1)
        if p == 2:
            b('s_waitcnt lgkmcnt(0)')
        tl = [(ACC + 8 * (2 * p + e) + 2 * k, T + 4 * e + 2 * k, CO(2 * p + e)) for e in range(2) for k in range(2)]
        for g, t, c in tl:
            ep(pk('mul', t, [('p', g), ('p', g)]))
        for g, t, c in tl:
            ep(pk('fma', t, [('p', t), ('b', c + 1), ('b', c)]))
        for g, t, c in tl:
            ep(pk('mul', t, [('p', t), ('p', g)]))
        for g, t, c in tl:
            ep('v_exp_f32 v%d, v%d' % (t, t))
            ep('v_exp_f32 v%d, v%d' % (t + 1, t + 1))
            ep(pk('mul', g, [('p', g), ('p', g + 4)]))
        for g, t, c in tl:
            ep(pk('fma', t, [('p', t), ('b', c + 2), ('b', c + 2)]))
        for k in range(8):
            ep('v_rcp_f32 v%d, v%d' % (T + k, T + k))
        for g, t, c in tl:
            ep(pk('mul', g, [('p', g), ('p', t)]))
        for n, (g, t, c) in enumerate(tl):
            ep('v_cvt_pk_bf16_f32 v%d, v%d, v%d' % (T + 8 + n, g, g + 1))
        ep('v_permlane16_swap_b32 v%d, v%d' % (T + 8, T + 10))
        ep('v_permlane16_swap_b32 v%d, v%d' % (T + 9, T + 11))
        ep('global_store_dwordx4 v2, %s, s[14:15] sc1' % vr(T + 8, 4))
        if p < 3:
            ep(add64(14, 14, '114688'))
    assert not wdq
    stamp(b, 12)
    for i in range(28 - NL, 28):
        E(b, wdload(None, i))
    NLATE = NL

    b.label('K2_P2')
    RS, GBR = 240, 248
    b('s_lshl_b32 s45, s37, 6')
    b('s_lshl_b32 s12, s39, 5')
    b('s_add_u32 s45, s45, s12')
    b('s_lshl_b32 s12, s43, 4')
    b('s_add_u32 s45, s45, s12')
    b('s_lshl_b32 s46, s38, 6')
    b('s_lshl_b32 s12, s42, 5')
    b('s_add_u32 s46, s46, s12')
    b('v_lshrrev_b32 v6, 5, v1')
    b('v_and_b32 v7, 31, v1')
    b('s_lshl_b32 s12, s45, 2')
    b('s_add_u32 s12, s12, %d' % (WS_MODP + 5 * 2048))
    b(add64(14, 4, 's12'))
    b(add64(28, 14, '12288'))
    b('v_lshlrev_b32 v8, 4, v6')
    for p_, (base, reg) in enumerate(((14, GBR), (28, 56))):
        b('global_load_dwordx4 %s, v8, s[%d:%d]%s' % (vr(reg, 4), base, base + 1, SC1))
        b('global_load_dwordx4 %s, v8, s[%d:%d] offset:32%s' % (vr(reg + 4, 4), base, base + 1, SC1))
    b('v_add_lshl_u32 v9, v7, s46, 1')
    b('v_lshl_add_u32 v9, v6, 10, v9')
    b('s_sub_u32 s12, s37, s48')
    b('s_and_b32 s12, s12, 7')
    b('s_lshl_b32 s12, s12, 6')
    b('s_and_b32 s13, s45, 63')
    b('s_add_u32 s12, s12, s13')
    b('s_lshl_b32 s12, s12, 8')
    b('v_add_u32 v9, s12, v9')
    for q in range(2):
        for i in range(4):
            b('v_xor_b32 v%d, %d, v9' % (10 + (i & 1), 64 * i + 32 * q))
            b('ds_read_u16 v%d, v%d offset:%d' % (RS + 4 * q + i, 10 + (i & 1), 2048 * q + 256 * i))
    b('s_lshl_b32 s12, s8, 7')
    b('s_add_u32 s12, s12, s46')
    b('s_lshl_b32 s12, s12, 10')
    b('s_lshl_b32 s13, s45, 1')
    b('s_add_u32 s12, s12, s13')
    b(add64(50, 50, 's12'))
    b('v_lshl_add_u32 v15, v7, 10, v8')
    b('s_lshl_b32 s12, s8, 1')
    b('s_add_u32 s12, s12, s38')
    b('s_mul_i32 s12, s12, %d' % (2 * 114688))
    b('s_mul_i32 s13, s33, %d' % (14 * 1024))
    b('s_add_u32 s12, s12, s13')
    b('s_add_u32 s12, s12, %s' % hex(WS_HF))
    srd(b, 20, 4, 's12', 114688 + 14 * 1024)
    b('s_mul_i32 s12, s42, 114688')
    b('v_add_u32 v13, s12, v2')
    b('s_sub_u32 s12, 114688, s12')
    b('v_add_u32 v14, s12, v2')
    b('s_waitcnt vmcnt(%d) lgkmcnt(0)' % (NLATE + 4))
    stamp(b, 9)
    b('s_cmp_lg_u32 s33, 7')
    b('s_barrier')
    stamp(b, 10)
    b('s_cbranch_scc1 K2_GO2')
    b('s_lshl_b32 s12, s8, 11')
    b('s_add_u32 s12, s12, %s' % hex(WS_FLG))
    b(add64(28, 4, 's12'))
    b('s_lshl_b32 s12, s30, 7')
    b('v_mov_b32 v4, s12')
    b('v_mov_b32 v5, 1')
    b('global_store_dword v4, v5, s[28:29] sc1')
    b('v_and_b32 v4, 15, v1')
    b('v_lshlrev_b32 v4, 7, v4')
    b('s_mov_b32 s36, %d' % SPIN)
    b.label('K2_POLL2')
    b('global_load_dword v16, v4, s[28:29] ' + POLL)
    b('s_waitcnt vmcnt(0)')
    b('v_cmp_ne_u32 vcc, 1, v16')
    b('s_cmp_eq_u64 vcc, 0')
    b('s_cbranch_scc1 K2_GO2')
    b('s_sleep %d' % opt('SLP', 1))
    b('s_sub_u32 s36, s36, 1')
    b('s_cmp_lg_u32 s36, 0')
    b('s_cbranch_scc1 K2_POLL2')
    b.label('K2_GO2')
    b('s_barrier')
    stamp(b, 13)
    vm = VM(b)

    def hload(j):
        f = XB + 8 * (j % HD)
        r = []
        r += ['s_add_u32 s44, s49, %d' % (1024 * j), 's_sub_u32 s47, s44, 14336', 's_cselect_b32 s44, s44, s47']
        for h in range(2):
            r.append(vm.op('buffer_load_dwordx4 %s, v%d, s[20:23], s44 offen sc1' % (vr(f + 4 * h, 4), 13 + h), 'h%d' % j))
        return r
    for j in range(HD - 1):
        E(b, hload(j))
    b('s_waitcnt vmcnt(%d)' % (2 * (HD - 1)))
    for k in range(0, 8, 2):
        b(pk('add', GBR + k, [('p', GBR + k), ('p', 56 + k)]))
    E(b, hload(HD - 1))
    for k in range(0, 8, 2):
        E(b, rnd_pair(GBR + k, 4))
    for x in range(1, 8):
        b('s_xor_b32 s12, s33, %d' % x)
        b('s_mul_i32 s12, s12, %d' % (7 * 2048))
        b('s_add_u32 s12, s12, %d' % (2048 * (x - 1)))
        b('v_add_u32 v%d, s12, v2' % (3 + x))
    b('s_mul_i32 s12, s33, %d' % (7 * 2048))
    b('v_add_u32 v3, s12, v2')
    for k in range(8):
        b('v_lshlrev_b32 v%d, 16, v%d' % (RS + k, RS + k))
    for j in range(14):
        f = XB + 8 * (j % HD)
        b(vm.wait('h%d' % j))
        for sl in ((0, 1, 3, 2) if opt('MORD2', 0) else range(4)):
            a = vr(ACC + 16 * sl, 16)
            b('v_mfma_f32_32x32x16_bf16 %s, %s, %s, %s' % (a, vr(W + 8 * j + 4 * (sl & 1), 4), vr(f + 4 * (sl >> 1), 4), a if j else '0'))
        if j + HD < 14:
            E(b, hload(j + HD))
    stamp(b, 14)
    for x in (1, 2, 3, 5, 6, 7, 4):
        r = ACC + 16 * (x & 3) + 8 * (x >> 2)
        b('ds_write_b128 v%d, %s' % (3 + x, vr(r, 4)))
        b('ds_write_b128 v%d, %s offset:1024' % (3 + x, vr(r + 4, 4)))
    for k in range(0, 8, 2):
        b(pk('fma', RS + k, [('p', ACC + k), ('p', GBR + k), ('p', RS + k)]))
    b('s_waitcnt lgkmcnt(0)')
    b('s_barrier')
    for x in range(7):
        for h in range(2):
            b('ds_read_b128 %s, v3 offset:%d' % (vr(ACC + 8 * x + 4 * h, 4), 2048 * x + 1024 * h))
    b('s_waitcnt lgkmcnt(6)')
    for k in range(0, 8, 2):
        b(pk('add', ACC + k, [('p', ACC + k), ('p', ACC + 8 + k)]))
        b(pk('add', ACC + 16 + k, [('p', ACC + 16 + k), ('p', ACC + 24 + k)]))
    b('s_waitcnt lgkmcnt(2)')
    for k in range(0, 8, 2):
        b(pk('add', ACC + k, [('p', ACC + k), ('p', ACC + 16 + k)]))
        b(pk('add', ACC + 32 + k, [('p', ACC + 32 + k), ('p', ACC + 40 + k)]))
    b('s_waitcnt lgkmcnt(0)')
    for k in range(0, 8, 2):
        b(pk('add', ACC + k, [('p', ACC + k), ('p', ACC + 48 + k)]))
    for k in range(0, 8, 2):
        b(pk('add', ACC + k, [('p', ACC + k), ('p', ACC + 32 + k)]))
    for k in range(0, 8, 2):
        b(pk('fma', RS + k, [('p', ACC + k), ('p', GBR + k), ('p', RS + k)]))
    for k in range(4):
        b('v_cvt_pk_bf16_f32 v%d, v%d, v%d' % (ACC + k, RS + 2 * k, RS + 2 * k + 1))
    b('v_permlane32_swap_b32 v%d, v%d' % (ACC, ACC + 2))
    b('v_permlane32_swap_b32 v%d, v%d' % (ACC + 1, ACC + 3))
    b('global_store_dwordx4 v15, %s, s[50:51] %s' % (vr(ACC, 4), ST_OUT))
    stamp_end(b, 2)
    b('s_endpgm')

    b.label('K2_AUX')
    srd(b, 16, 4, 's10', 131072)
    vm = VM(b)
    issue = make_issue(vm, False)
    for t in PLAN[-2]:
        E(b, issue(t))
    if opt('FB1', True):
        b('s_barrier')
    b('s_setprio 3')
    for t in PLAN[-1]:
        E(b, issue(t))
    b('s_lshr_b32 s12, s30, 1')
    b('s_lshl_b32 s12, s12, 5')
    b('v_lshrrev_b32 v20, 1, v1')
    b('v_and_b32 v21, 3, v20')
    b('v_lshlrev_b32 v21, 6, v21')
    b('v_bfe_u32 v22, v20, 3, 1')
    b('v_lshl_add_u32 v21, v22, 5, v21')
    b('v_xor_b32 v21, s12, v21')
    b('v_lshl_add_u32 v21, v20, 8, v21')
    b('v_and_b32 v22, 1, v1')
    b('v_lshl_add_u32 v21, v22, 4, v21')
    b('s_and_b32 s13, s30, 1')
    b('s_lshl_b32 s31, s13, 16')
    b(add64(14, 4, hex(WS_CB)))
    b('v_min_u32 v23, 55, v1')
    b('v_lshrrev_b32 v27, 3, v23')
    b('v_add_u32 v27, s9, v27')
    b('v_lshrrev_b32 v29, 2, v27')
    b('v_lshlrev_b32 v29, 12, v29')
    b('v_and_b32 v27, 3, v27')
    b('v_lshl_add_u32 v27, v27, 6, v29')
    b('v_bfe_u32 v29, v23, 2, 1')
    b('v_lshl_add_u32 v27, v29, 11, v27')
    b('v_and_b32 v29, 3, v23')
    b('v_lshl_add_u32 v27, v29, 4, v27')
    b('v_lshlrev_b32 v104, 5, v23')
    b('v_add_u32 v104, %d, v104' % CBL)
    b('v_lshlrev_b32 v105, 5, v1')
    b('v_add_u32 v105, %d, v105' % ST)
    b('v_mov_b32 v28, v21')
    b('v_lshrrev_b32 v20, 4, v1')
    b('v_bfe_u32 v21, v1, 2, 2')
    b('v_and_b32 v22, 3, v1')
    b('v_cmp_eq_u32 s[46:47], v20, v21')
    b('v_cmp_eq_u32 s[40:41], 1, v22')
    b('v_cmp_eq_u32 s[42:43], 2, v22')
    b('v_cmp_eq_u32 s[44:45], 3, v22')
    b('v_lshl_add_u32 v24, v20, 3, v21')
    b('v_lshlrev_b32 v24, 5, v24')
    b('v_lshl_add_u32 v24, v22, 3, v24')
    b('v_add_u32 v24, %d, v24' % SCR)
    for i in range(4):
        b('v_mov_b32 v%d, 0x3f803f80' % (112 + i))
    b('s_lshl_b32 s12, s8, 11')
    b('s_add_u32 s12, s12, %s' % hex(WS_SST))
    b(add64(28, 4, 's12'))
    b('s_lshl_b32 s13, s13, 10')
    b('s_lshr_b32 s12, s30, 1')
    b('s_lshl_b32 s12, s12, 7')
    b('s_add_u32 s12, s12, s13')
    b('v_and_b32 v25, 15, v1')
    b('v_lshl_add_u32 v25, v25, 3, s12')
    b('v_lshlrev_b32 v26, 3, v1')
    stamp(b, 1)
    b(vm.wait('x0') + ' lgkmcnt(0)')
    b('s_barrier')

    def shreq():
        for i in range(8):
            b('s_mov_b32 m0, %d' % (SCR + 1024 * i))
            b(vm.op('buffer_load_dwordx4 v28, s[16:19], s31 offen%s lds' % SC1, 'sh'))
            b('s_add_u32 s31, s31, 8192')

    def cbreq():
        for q in range(4):
            for w in range(2):
                b(vm.op('global_load_dwordx4 %s, v27, s[14:15] offset:%d%s' % (vr(64 + 16 * w + 4 * q, 4), 512 * q + 256 * w, SC1), 'cb'))
    SH, CBQ = opt('SH', 0), opt('CBQ', 2)
    if SH < 0:
        shreq()
    if CBQ < 0:
        cbreq()

    def share():
        b(vm.wait('sh'))
        for kk in range(8):
            for e in range(2):
                b('ds_read_b64_tr_b16 %s, v24 offset:%d' % (vr(32 + 4 * kk + 2 * e, 2), 1024 * kk + 128 * e))
        for kk in range(8):
            b('s_waitcnt lgkmcnt(%d)' % (14 - 2 * kk))
            f = vr(32 + 4 * kk, 4)
            b('v_mfma_f32_16x16x32_bf16 v[120:123], %s, %s, %s' % (f, f, 'v[120:123]' if kk else '0'))
            b('v_mfma_f32_16x16x32_bf16 v[116:119], v[112:115], %s, %s' % (f, 'v[116:119]' if kk else '0'))
        b('v_cndmask_b32 v117, v120, v121, s[40:41]')
        b('v_cndmask_b32 v117, v117, v122, s[42:43]')
        b('v_cndmask_b32 v117, v117, v123, s[44:45]')
        b('v_and_b32 v117, 0x7fffffff, v117')
        b('s_mov_b64 exec, s[46:47]')
        b(vm.op('global_store_dwordx2 v25, v[116:117], s[28:29] sc1', 'pub'))
        b('s_mov_b64 exec, -1')
        stamp(b, 2)

    def cbprep():
        b(vm.wait('cb'))
        for w in range(2):
            p = 64 + 16 * w
            for k in (0, 2):
                b(pk('add', p + k, [('p', p + k), ('p', p + 4 + k)]))
                b(pk('add', p + 8 + k, [('p', p + 8 + k), ('p', p + 12 + k)]))
            for k in (0, 2):
                b(pk('add', p + k, [('p', p + k), ('p', p + 8 + k)]))
        for j in range(4):
            for w in range(2):
                x = 64 + 16 * w + j
                t = 96 + 2 * j + w
                E(b, ['v_cvt_pk_bf16_f32 v%d, v%d, v%d' % (t, x, x), 'v_and_b32 v%d, 0xffff0000, v%d' % (x + 4, t),
                      'v_sub_f32 v%d, v%d, v%d' % (x, x, x + 4), 'v_cvt_pk_bf16_f32 v%d, v%d, v%d' % (t, x + 4, x)])
        b('ds_write_b128 v104, v[96:99]')
        b('ds_write_b128 v104, v[100:103] offset:16')
        phase2_setup()

    def gather():
        K0c = -2.0 * math.sqrt(2.0 / math.pi) * LOG2E
        b('s_mov_b32 s36, %d' % SPIN)
        b('s_mov_b32 s12, %s' % fhex(1.0 / 512))
        b('s_mov_b32 s14, %s' % fhex(1e-5))
        b.label('K2_POLLS')
        for i in range(4):
            b('global_load_dwordx2 %s, v26, s[28:29] offset:%d sc1' % (vr(64 + 2 * i, 2), 512 * i))
        b('s_waitcnt vmcnt(0)')
        b('v_or_b32 v72, v65, v67')
        b('v_or3_b32 v72, v72, v69, v71')
        b('v_cmp_gt_i32 vcc, 0, v72')
        b('s_cmp_eq_u64 vcc, 0')
        b('s_cbranch_scc1 K2_GOS')
        b('s_sleep 2')
        b('s_sub_u32 s36, s36, 1')
        b('s_cmp_lg_u32 s36, 0')
        b('s_cbranch_scc1 K2_POLLS')
        b.label('K2_GOS')
        b('v_add_f32 v82, v64, v68')
        b('v_add_f32 v83, v66, v70')
        b('v_add_f32 v80, v65, v69')
        b('v_add_f32 v81, v67, v71')
        b(pk('mul', 82, [('p', 82), ('sl', 12)]))
        b(pk('mul', 80, [('p', 80), ('sl', 12)]))
        b(pk('fma', 80, [('p', 82), ('p', 82), ('p', 80)], neg_lo=[1, 0, 0], neg_hi=[1, 0, 0]))
        B0, B1 = 88, 96
        b('v_cvt_pk_bf16_f32 v%d, -v82, -v82' % B0)
        b('v_cvt_pk_bf16_f32 v%d, -v83, -v83' % B1)
        b('v_max_f32 v80, 0, v80')
        b('v_max_f32 v81, 0, v81')
        E(b, rnd_pair(80, 84))
        b(pk('add', 80, [('p', 80), ('sl', 14)]))
        E(b, rnd_pair(80, 84))
        b('v_sqrt_f32 v80, v80')
        b('v_sqrt_f32 v81, v81')
        b('v_pk_mov_b32 %s, 0, 0' % vr(B0 + 2, 2))
        b('v_pk_mov_b32 %s, 0, 0' % vr(B1 + 2, 2))
        b('v_cvt_pk_bf16_f32 v%d, v80, v80' % (B0 + 1))
        b('v_cvt_pk_bf16_f32 v%d, v81, v81' % (B1 + 1))
        b('v_lshlrev_b32 v80, 16, v%d' % (B0 + 1))
        b('v_lshlrev_b32 v81, 16, v%d' % (B1 + 1))
        b('v_rcp_f32 v82, v80')
        b('v_rcp_f32 v83, v81')
        b('ds_write_b128 v105, %s' % vr(B0, 4))
        b('ds_write_b128 v105, %s offset:2048' % vr(B1, 4))
        b('v_mul_f32 v%d, v80, v80' % (B0 + 6))
        b('v_mul_f32 v%d, v81, v81' % (B1 + 6))
        b('v_mul_f32 v%d, %s, v82' % (B0 + 4, fhex(K0c)))
        b('v_mul_f32 v%d, %s, v83' % (B1 + 4, fhex(K0c)))
        b(pk('mul', 82, [('p', 82), ('p', 82)]))
        b('v_mul_f32 v82, %s, v82' % fhex(0.044715))
        b('v_mul_f32 v83, %s, v83' % fhex(0.044715))
        b('v_mul_f32 v%d, v82, v%d' % (B0 + 5, B0 + 4))
        b('v_mul_f32 v%d, v83, v%d' % (B1 + 5, B1 + 4))
        b('ds_write_b128 v105, %s offset:16' % vr(B0 + 4, 4))
        b('ds_write_b128 v105, %s offset:2064' % vr(B1 + 4, 4))
        stamp(b, 11)
    for c in range(8):
        for t in PLAN.get(c, []):
            E(b, issue(t))
        if c == SH:
            shreq()
        if c == CBQ:
            cbreq()
        if c == max(SH, 0) + 1:
            share()
        if c == max(CBQ, 1) + 1:
            cbprep()
        if c + 1 in BARS:
            if c == GATHER:
                gather()
                b('s_waitcnt lgkmcnt(0)')
            else:
                b(vm.wait(*BARS[c + 1]))
            stamp(b, 3 + c)
            b('s_barrier')
    if GATHER + 1 not in BARS:
        gather()
    for i in range(28):
        E(b, wdload(vm, i))
    b('s_setprio 0')
    stamp(b, 12)
    b('s_waitcnt vmcnt(0)')
    b('s_branch K2_P2')
    b.label('K2_END')
    b('s_endpgm')
    return b.text(), 256, NSG
```

```python
import sys
from common import *
import g01, g23


DOC = """
"""


def build(kernels, data):
    head = open('cdna_kernels/%s.s.ref' % NAME).read().split('\n')
    out = [l for l in head if l.startswith(';') and '@launch' not in l and 'Override launch' not in l and 'grid=ceil' not in l]
    for name, fn, grid, block, lds in kernels:
        out.append('; @launch kernel=%s grid=(%d,1,1) block=(%d,1,1) lds=%d' % (name, grid, block, lds))
    out += DOC.strip('\n').split('\n')
    out.append('.amdgcn_target "amdgcn-amd-amdhsa--gfx950"')
    out.append('.text')
    desc = []
    for name, fn, grid, block, lds in kernels:
        text, nv, ns = fn()
        out.append('.globl %s\n.p2align 8\n.type %s,@function\n%s:' % (name, name, name))
        if WS_BASE:
            text = text.replace('s_load_dwordx2 s[4:5], s[0:1], 136', 's_load_dwordx2 s[4:5], s[0:1], 136\n  s_waitcnt lgkmcnt(0)\n  s_add_u32 s4, s4, 0x%x\n  s_addc_u32 s5, s5, 0' % WS_BASE)
        out.append(text)
        desc.append('.p2align 6\n.amdhsa_kernel %s\n  .amdhsa_next_free_vgpr %d\n  .amdhsa_next_free_sgpr %d\n  .amdhsa_accum_offset %d\n'
                    '  .amdhsa_group_segment_fixed_size 0\n  .amdhsa_kernarg_size 144\n  .amdhsa_user_sgpr_count 2\n'
                    '  .amdhsa_user_sgpr_kernarg_segment_ptr 1\n  .amdhsa_system_sgpr_workgroup_id_x 1\n.end_amdhsa_kernel'
                    % (name, nv, ns, (min(nv, 256) + 3) // 4 * 4))
    out.append('CODE_END:')
    out.append('.section .rodata,"a"')
    out += desc
    out += data
    return '\n'.join(out) + '\n'


if __name__ == '__main__':
    if ONE:
        ks = [(NAME + '_kernel', lambda: g23.k23(g01.k01()), 256, 512, max(g01.LDS, g23.K2_LDS))]
    else:
        ks = [('prep_kernel', g01.k01, g01.WGS, 512, g01.LDS), ('gemm1_kernel', g23.k23, g23.K2_WGS, 512, g23.K2_LDS)]
    open(sys.argv[1], 'w').write(build(ks, [g01.gather_table()]))
```

```python
from common import *

WGS = 256
KNAME = NAME + '_kernel' if ONE else 'prep_kernel'
TW = 8768
KB = 256
HB = KB + 2 * 8448
CS_ = 5760
PB = HB + 4 * CS_
BB = PB + 4 * 9216
FB_ = BB + 16384
CNT = FB_ + 12288
MC = CNT + 64
SB = CNT + 128
XS = SB + 16384 + 32
LDS = XS + 512
ST_X1 = opt('ST_X1', 'sc1')
ST_WF = opt('ST_WF', 'sc1')
FOLD_PRIO = opt('FOLD_PRIO', 3)
SPIN = 0x20000
NTM = opt('NT', 0)
ntf = lambda bit: ' nt' if NTM & bit else ''
FW_GO = opt('FW_GO', True)
MOD_LATE = opt('MOD_LATE', True)
G2_FIRST = False
BFIRST = opt('BFIRST', True)
SWAP = opt('SWAP', True)
SCANL = opt('SCANL', True)
FPL = opt('FPL', 4)
EPOLL = opt('EPOLL', False)
ORD2 = opt('ORD2', True)
TABL = opt('TABL', True)
N_XT, N_MOD, N_FOLD = 128, 96, 224


def gather_table():
    rows = []
    for j4 in range(4):
        for tau in range(128):
            e = []
            for j in range(4 * j4, 4 * j4 + 4):
                v = bf16_round_int(2047 - 8 * tau - (j & 7) - 1024 * (j >> 3))
                e.append(PB + 4 * (v + (v >> 4)))
            rows.append('.long ' + ','.join(map(str, e)))
    return '.p2align 8\nK0_TAB:\n' + '\n'.join(rows)


def transpose_write_addr(b, va, lane, wave_v, t):
    b('v_lshlrev_b32 v%d, 8, v%d' % (t, lane))
    b('v_lshl_add_u32 v%d, v%d, 3, v%d' % (t, wave_v, t))
    b('v_and_b32 v%d, 7, v%d' % (va, lane))
    b('v_lshlrev_b32 v%d, 4, v%d' % (va, va))
    b('v_xor_b32 v%d, v%d, v%d' % (va, va, t))
    for j in range(1, 4):
        b('v_xor_b32 v%d, %d, v%d' % (va + j, 32 * j, va))


def perm_writes(WA, off):
    xs = []
    for j in range(8):
        sel = 's15' if j & 1 else 's14'
        t = 84 + 2 * (j & 1)
        xs.append('v_perm_b32 v%d, v%d, v%d, %s' % (t, 8 + (j >> 1), 4 + (j >> 1), sel))
        xs.append('v_perm_b32 v%d, v%d, v%d, %s' % (t + 1, 16 + (j >> 1), 12 + (j >> 1), sel))
        xs.append('ds_write_b64 v%d, %s offset:%d' % (WA + (j & 3), vr(t, 2), off + 128 * (j >> 2)))
    return xs


def lds_wait(b, tag, vaddr, off, val, vt, sleep, sc=46, st=45):
    b('s_mov_b32 s%d, %d' % (sc, 16 * SPIN))
    b.label('K1_L' + tag)
    b('ds_read_b32 v%d, v%d offset:%d' % (vt, vaddr, off))
    b('s_sub_u32 s%d, s%d, 1' % (sc, sc))
    b('s_waitcnt lgkmcnt(0)')
    b('v_readfirstlane_b32 s%d, v%d' % (st, vt))
    b('s_cmp_eq_u32 s%d, %d' % (st, val))
    b('s_cbranch_scc1 K1_X' + tag)
    if sleep:
        b('s_sleep %d' % sleep)
    b('s_cmp_lg_u32 s%d, 0' % sc)
    b('s_cbranch_scc1 K1_L' + tag)
    b.label('K1_X' + tag)


def k01():
    b = Builder()
    b('s_cmp_ge_u32 s2, %d' % WGS)
    b('s_cbranch_scc1 %s' % ('K2_END' if ONE else 'K1_END'))
    b('s_load_dwordx2 s[4:5], s[0:1], %d' % KA['ws'])
    stamp_init(b)
    if SWAP:
        b('v_xor_b32 v0, 256, v0')
    b('v_lshrrev_b32 v87, 6, v0')
    b('v_and_b32 v1, 63, v0')
    b('v_readfirstlane_b32 s33, v87')
    b('s_cmp_ge_u32 s33, 4')
    b('s_cbranch_scc1 K1_B')
    if not BFIRST:
        b('s_setprio 3')
    b('s_load_dwordx2 s[50:51], s[0:1], %d' % KA['dbg'])
    b('s_load_dwordx4 s[8:11], s[0:1], %d' % KA['are'])
    b('s_load_dwordx4 s[12:15], s[0:1], %d' % KA['bre'])
    b('s_load_dwordx4 s[16:19], s[0:1], %d' % KA['cre'])
    b('s_load_dwordx2 s[20:21], s[0:1], %d' % KA['ldt'])
    b('s_getpc_b64 s[30:31]')
    b('s_add_u32 s30, s30, K0_TAB@rel32@lo+4')
    b('s_addc_u32 s31, s31, K0_TAB@rel32@hi+12')
    b('s_and_b32 s6, s2, 7\ns_lshl_b32 s6, s6, 5\ns_lshr_b32 s7, s2, 3\ns_add_u32 s6, s6, s7\ns_lshl_b32 s6, s6, 1')
    b('s_lshl_b32 s7, s6, 8')
    b('v_and_b32 v160, 127, v0')
    b('v_lshlrev_b32 v161, 4, v160')
    G = 124
    b('v_lshl_add_u32 v2, v0, 1, s7')
    b('v_lshrrev_b32 v3, 7, v0')
    b('v_add_lshl_u32 v11, v3, s6, 1')
    b('s_waitcnt lgkmcnt(0)')
    if not ORD2:
        b('s_barrier')
    b('global_load_ushort v10, v11, s[20:21]')
    for i in range(6):
        b('global_load_ushort v%d, v2, s[%d:%d]%s' % (4 + i, 8 + 2 * i, 9 + 2 * i, ntf(1)))
    if ORD2:
        b('s_barrier')
    b('s_add_u32 s34, s30, 4096\ns_addc_u32 s35, s31, 0')
    def tabload():
        for i in range(4):
            b('global_load_dwordx4 %s, v161, s[%d:%d] offset:%d' % (vr(G + 4 * i, 4), 30 + 4 * (i >> 1), 31 + 4 * (i >> 1), 2048 * (i & 1)))
    if not TABL:
        tabload()
    b('s_mul_i32 s36, s33, %d' % TW)
    b('s_add_u32 s36, s36, %d' % PB)
    WB, RB = 164, 75
    b('v_lshl_add_u32 v%d, v1, 2, s36' % WB)
    for k in range(1, 4):
        b('v_add_u32 v%d, %d, v%d' % (WB + k, 1088 * k, WB))
    b('v_and_b32 v85, 15, v1')
    b('v_lshrrev_b32 v86, 4, v1')
    b('v_mul_u32_u24 v88, 272, v85')
    b('v_lshl_add_u32 v88, v86, 4, v88')
    b('v_add_u32 v%d, s36, v88' % RB)
    b('v_mul_u32_u24 v85, 68, v85')
    b('v_add_u32 v85, s36, v85')
    b('v_lshl_add_u32 v120, v86, 4, v85')
    b('v_mul_u32_u24 v87, 1088, v86')
    b('v_lshlrev_b32 v88, 3, v86')
    b('v_add_u32 v88, 1088, v88')
    b('v_max_u32 v87, v87, v88')
    b('v_add_u32 v121, v87, v85')
    b('v_lshrrev_b32 v87, 1, v86')
    b('v_mul_u32_u24 v87, 4352, v87')
    b('v_and_b32 v88, 1, v86')
    b('v_lshl_add_u32 v87, v88, 5, v87')
    b('v_add_u32 v122, v87, v85')
    b('v_mul_u32_u24 v2, 8448, v3')
    b('v_add_u32 v2, v161, v2')
    stamp(b, 1)
    b('s_waitcnt vmcnt(%d)' % (6 if TABL else 10))
    b('v_lshlrev_b32 v10, 16, v10')
    b('v_mul_f32 v10, %s, v10' % fhex(LOG2E))
    b('v_exp_f32 v10, v10')
    b('s_waitcnt vmcnt(%d)' % (0 if TABL else 4))
    if TABL:
        tabload()
    b('v_mov_b32 v80, %d' % CNT)
    b('v_mov_b32 v81, 1')
    b('ds_write_b32 v80, v81 offset:28')
    b('s_setprio 3')
    stamp(b, 2)
    for i in range(4, 10):
        b('v_lshlrev_b32 v%d, 16, v%d' % (i, i))
    E(b, rnd_bf16(10))
    b(pk('mul', 12, [('p', 4), ('b', 10)]))
    b(pk('mul', 6, [('p', 6), ('b', 10)]))
    b('v_mul_f32 v12, %s, v12' % fhex(LOG2E))
    b('v_mul_f32 v13, %s, v13' % fhex(1.0 / (2 * math.pi)))
    b('v_mov_b32 v4, v7')
    E(b, cmul(14, 8, 6, 4))

    def zpow(d, p, ta, tb):
        s = []
        if p == 1:
            s += ['v_exp_f32 v%d, v12' % ta, 'v_fract_f32 v%d, v13' % tb]
        else:
            s += ['v_mul_f32 v%d, %s, v12' % (ta, fhex(float(p))), 'v_mul_f32 v%d, %s, v13' % (tb, fhex(float(p))),
                  'v_exp_f32 v%d, v%d' % (ta, ta), 'v_fract_f32 v%d, v%d' % (tb, tb)]
        s += ['v_cos_f32 v%d, v%d' % (d, tb), 'v_sin_f32 v%d, v%d' % (d + 1, tb)]
        return s, [pk('mul', d, [('p', d), ('b', ta)])]
    Z1, Z16, ZB, US, VA, VB = 16, 18, 20, 36, 68, 70
    mx = ['v_max_f32 v72, abs(v14), abs(v15)'] + wave_reduce('max', [72]) + ['v_frexp_exp_i32_f32 v72, v72', 'v_readlane_b32 s22, v72, 63']
    a1, f1 = zpow(Z1, 1, 6, 7)
    a2, f2 = zpow(Z16, 16, 4, 5)
    a3, f3 = zpow(ZB, 256, 8, 9)
    zs = a1 + a2 + f1 + a3 + f2 + ['v_mov_b32 v%d, 0x43800000' % US] + f3 + ['v_mov_b32 v%d, 0' % (US + 1)]
    E(b, spread(mx, zs, 2))
    b('s_sub_i32 s23, 13, s22')
    b('s_sub_i32 s24, s22, 21')
    I1, I16, IZ1, IZ2, IZ3, IU8 = 4, 6, 8, 10, 12, 14
    b(pk('mul', US + 2, [('p', Z1), ('b', US)]))
    b('v_ldexp_f32 v%d, v14, s23' % VA)
    b('v_ldexp_f32 v%d, v15, s23' % (VA + 1))
    b('v_mov_b32 v%d, v%d' % (I16, Z16 + 1))
    b('v_mov_b32 v%d, v%d' % (I1, Z1 + 1))
    b('v_mov_b32 v%d, v%d' % (IZ1, ZB + 1))

    def cvt(src, row, neg=False):
        s = ['v_cvt_pk_f16_f32 v%d, v%d, %sv%d' % (72 + (row & 1), src, '-' if neg else '', src + 1)]
        if row & 1:
            s.append('ds_write2_b32 v%d, v72, v73 offset0:%d offset1:%d' % (WB + (row >> 2), 68 * ((row - 1) & 3), 68 * (row & 3)))
        return s

    def read_frags(d):
        return ['ds_read_b128 %s, v%d offset:%d' % (vr(d + 4 * j, 4), RB, 64 * j) for j in range(4)]
    VF, UF, DA, UF1 = 76, 92, 108, 144

    def mf(tile, uf):
        return ['v_mfma_f32_16x16x32_f16 %s, %s, %s, %s' % (vr(DA + 4 * tile, 4), vr(uf + 4 * j, 4), vr(VF + 4 * j, 4),
                                                         vr(DA + 4 * tile, 4) if j else '0') for j in range(4)]
    cv = []
    cur, nxt = VA, VB
    for i in range(16):
        if i < 15:
            cv += cmul(nxt, cur, Z16, I16)
        cv += cvt(cur, i, True)
        cur, nxt = nxt, cur
    cu = []
    for i in range(2, 16):
        cu += cmul(US + 2 * i, US + 2 * (i - 1), Z1, I1)
    cz = []
    for m in range(1, 8):
        cz += cmul(ZB + 2 * m, ZB + 2 * (m - 1), ZB, IZ1)
    cz += ['v_mov_b32 v%d, v%d' % (IZ2, ZB + 3), 'v_mov_b32 v%d, v%d' % (IZ3, ZB + 5), 'v_mov_b32 v%d, v%d' % (IU8, US + 17)]
    E(b, weave(cv, cu + cz))
    E(b, read_frags(VF))
    r0 = []
    for i in range(16):
        r0 += cvt(US + 2 * i, i)
    E(b, r0)
    E(b, read_frags(UF))
    def pair(ma, mb, row):
        return weave(ma, mb) + cvt(VA, row) + cvt(VB, row + 1)
    t1 = []
    for g, (zi, uo) in enumerate(((0, 0), (0, 2), (1, 0), (2, 0))):
        ms = []
        for rho in range(4):
            d = VA if (rho & 1) == 0 else VB
            if rho == 0 and uo == 0:
                ms.append([pk('mul', d, [('p', ZB + 2 * zi), ('b', US)])])
            else:
                ms.append(cmul(d, US + 2 * (4 * rho + uo), ZB + 2 * zi, (IZ1, IZ2, IZ3)[zi]))
        t1 += pair(ms[0], ms[1], 4 * g) + pair(ms[2], ms[3], 4 * g + 2)
    E(b, t1)
    E(b, read_frags(UF1))
    b('s_waitcnt lgkmcnt(12)')
    m0 = mf(0, UF)
    t2 = []
    for rho in (0, 2):
        t2 += pair([pk('mul', VA, [('p', ZB + 2 * (3 + rho)), ('b', US)])], [pk('mul', VB, [('p', ZB + 2 * (4 + rho)), ('b', US)])], rho)
    for rho in (0, 2):
        t2 += pair(cmul(VA, ZB + 2 * (3 + rho), US + 16, IU8), cmul(VB, ZB + 2 * (4 + rho), US + 16, IU8), 4 + rho)
    t2 += [pk('mul', VA, [('p', ZB + 14), ('b', US)]), 'v_cvt_pk_f16_f32 v72, v%d, v%d' % (VA, VA + 1),
           'ds_write_b32 v%d, v72' % (WB + 2)]
    E(b, spread(m0, t2, 3))
    E(b, read_frags(UF))
    b('s_waitcnt lgkmcnt(9)')
    E(b, mf(1, UF1))
    for rho in range(4):
        b('v_ldexp_f32 v%d, v%d, s24' % (DA + rho, DA + rho))
    b('s_waitcnt lgkmcnt(0)')
    E(b, mf(2, UF))
    stamp(b, 3)
    for rho in range(4):
        b('ds_write_b32 v120, v%d offset:%d' % (DA + rho, 4 * rho))
    for rho in range(4):
        b('v_ldexp_f32 v%d, v%d, s24' % (DA + 4 + rho, DA + 4 + rho))
    for rho in range(4):
        b('ds_write_b32 v121, v%d offset:%d' % (DA + 4 + rho, 16 * rho))
    for rho in range(4):
        b('v_ldexp_f32 v%d, v%d, s24' % (DA + 8 + rho, DA + 8 + rho))
    b('s_mov_b32 exec_hi, 1')
    b('ds_write_b32 v122, v%d offset:4352' % (DA + 8))
    b('s_mov_b32 exec_hi, 0')
    for rho in range(1, 4):
        b('ds_write_b32 v122, v%d offset:%d' % (DA + 8 + rho, 4352 + 1088 * rho))
    b('s_mov_b32 exec_hi, -1')
    b('v_add_u32 v3, %d, v2' % (KB + 4224 - 4))
    b('v_mov_b32 v111, 0')
    b('s_waitcnt vmcnt(0)')
    b('global_load_dword v112, v111, s[50:51] sc1')
    b('v_mov_b32 v80, %d' % CNT)
    b('v_mov_b32 v81, 1')
    b('s_waitcnt lgkmcnt(0)')
    b('s_mov_b64 exec, 1')
    b('ds_add_u32 v80, v81 offset:20')
    b('s_mov_b64 exec, -1')
    lds_wait(b, 'T', 80, 20, 4, 81, 0)
    b('s_cmp_ge_u32 s33, 2')
    stamp(b, 4)
    b('s_cbranch_scc1 K0_G1')
    for cc in range(2):
        if cc:
            b.label('K0_G1')
        for j in range(16):
            b('ds_read_b32 v%d, v%d offset:%d' % (36 + j, G + j, (2 * cc + 1) * TW))
            b('ds_read_b32 v%d, v%d offset:%d' % (G + j, G + j, 2 * cc * TW))
        if cc == 0:
            b('s_branch K0_G2')
    b.label('K0_G2')
    for h in range(2):
        b('s_waitcnt lgkmcnt(%d)' % (14 if h == 0 else 0))
        for m in range(4 * h, 4 * h + 4):
            b(pk('add', G + 2 * m, [('p', G + 2 * m), ('p', 36 + 2 * m)]))
        for m in range(4 * h, 4 * h + 4):
            b('v_cvt_pk_bf16_f32 v%d, v%d, v%d' % (56 + m, G + 2 * m, G + 2 * m + 1))
        b('ds_write_b128 v2, %s offset:%d' % (vr(56 + 4 * h, 4), KB + 2048 * h))
        if h:
            b('v_add_u32 v3, 2048, v3')
        b('ds_write2_b32 v3, v%d, v%d offset0:0 offset1:1' % (56 + 4 * h, 57 + 4 * h))
        b('ds_write2_b32 v3, v%d, v%d offset0:2 offset1:3' % (58 + 4 * h, 59 + 4 * h))
    def scan():
        Q = 64
        for h in range(2):
            b('v_mov_b32 v%d, v%d' % (Q + 8 * h, G + 8 * h + 7))
        for k in range(1, 8):
            for h in range(2):
                b('v_add_f32 v%d, v%d, v%d' % (Q + 8 * h + k, Q + 8 * h + k - 1, G + 8 * h + 7 - k))
        b('v_mov_b32 v80, v%d' % (Q + 7))
        b('v_mov_b32 v82, v%d' % (Q + 15))
        for m, rm in (('row_shr:1', '0xf'), ('row_shr:2', '0xf'), ('row_shr:4', '0xf'), ('row_shr:8', '0xf'), ('row_bcast:15', '0xa'), ('row_bcast:31', '0xc')):
            for r in (80, 82):
                b('v_add_f32_dpp v%d, v%d, v%d %s row_mask:%s bank_mask:0xf' % (r, r, r, m, rm))
        b('v_readlane_b32 s40, v80, 63')
        b('v_readlane_b32 s41, v82, 63')
        b('v_lshrrev_b32 v88, 7, v0')
        b('v_lshlrev_b32 v84, 13, v88')
        b('v_lshlrev_b32 v85, 1, v161')
        b('v_sub_u32 v84, v84, v85')
        b('v_add_u32 v84, %d, v84' % (SB + 4 * 1016))
        b('v_sub_f32 v80, s40, v80')
        b('v_sub_f32 v82, s41, v82')
        b('s_and_b32 s42, s33, 1')
        b('s_xor_b32 s42, s42, 1')
        b('s_lshl_b32 s42, s42, 2')
        b('s_add_u32 s42, s42, %d' % (SB + 16384))
        b('v_lshl_add_u32 v85, v88, 4, s42')
        b('v_mov_b32 v86, s41')
        b('v_mov_b32 v87, s40')
        for h in range(2):
            for k in range(0, 8, 2):
                b(pk('add', Q + 8 * h + k, [('p', Q + 8 * h + k), ('b', 80 + 2 * h)]))
            b('ds_write_b128 v84, %s offset:%d' % (vr(Q + 8 * h, 4), 4096 * (1 - h)))
            b('ds_write_b128 v84, %s offset:%d' % (vr(Q + 8 * h + 4, 4), 4096 * (1 - h) + 16))
        b('ds_write2_b32 v85, v86, v87 offset0:0 offset1:2')
    if not SCANL:
        scan()
    if EPOLL:
        b('s_cmp_lg_u32 s33, 0')
        b('s_cbranch_scc1 K1_EP')
        b(add64(22, 4, hex(WS_G1)))
        b('v_and_b32 v113, 31, v1')
        b('v_lshlrev_b32 v113, 7, v113')
        b('global_load_dwordx4 v[116:119], v113, s[22:23] ' + POLL)
        b.label('K1_EP')
    b('s_waitcnt lgkmcnt(0)')
    b('v_lshrrev_b32 v61, 2, v0')
    b('v_and_b32 v3, 3, v0')
    b('v_lshlrev_b32 v2, 14, v61')
    b('v_lshl_add_u32 v2, v3, 4, v2')
    b('v_bfe_u32 v3, v0, 1, 1')
    b('s_lshl_b32 s7, s6, 5')
    b('s_add_u32 s7, s7, %s' % hex(WS_XT))
    b(add64(10, 4, 's7'))
    b(add64(12, 10, '0x100000'))
    srd(b, 24, 4, hex(WS_LST), 16384)
    b('v_and_b32 v63, 1, v0')
    b('v_lshlrev_b32 v61, 4, v61')
    b('v_lshl_add_u32 v61, v63, 3, v61')
    b('v_lshlrev_b32 v40, 4, v1')
    b('s_lshl_b32 s28, s33, 11')
    b('s_mul_i32 s29, s33, 9216')
    b('s_add_u32 s29, s29, %d' % PB)
    b('v_lshrrev_b32 v42, 2, v1')
    b('v_lshlrev_b32 v42, 7, v42')
    b('v_lshl_add_u32 v42, v63, 5, v42')
    b('v_add_u32 v42, s29, v42')
    b('v_mov_b32 v39, %d' % CNT)
    b('v_mov_b32 v48, 1')
    b('s_lshr_b32 s35, s33, 1')
    b('s_and_b32 s36, s33, 1')
    b('s_mul_i32 s34, s33, 4224')
    b('s_add_u32 s34, s34, %d' % KB)
    b('v_min_u32 v51, 34, v0')
    b('v_lshlrev_b32 v51, 4, v51')
    b('v_pk_mov_b32 v[52:53], 0, 0')
    b('v_pk_mov_b32 v[54:55], 0, 0')
    for i in range(4):
        b('ds_write_b128 v51, v[52:55] offset:%d' % (HB + CS_ * i))
    b('v_mul_u32_u24 v51, %d, v3' % (2 * CS_))
    b('ds_write_b16 v51, v52 offset:%d' % (HB + CS_ + 560))
    b('v_and_b32 v46, 15, v1')
    b('v_lshl_add_u32 v46, v46, 3, s34')
    b('ds_write_b64 v46, v[52:53] offset:4096')
    b('v_mul_u32_u24 v46, 8448, v3')
    b('ds_write_b32 v46, v52 offset:%d' % (KB + 4224 + 4092))
    b('v_lshrrev_b32 v60, 5, v61')
    b('v_lshl_add_u32 v54, v61, 1, v51')
    b('v_lshl_add_u32 v54, v60, 4, v54')
    b('v_add_u32 v55, 8, v61')
    b('v_lshrrev_b32 v55, 5, v55')
    b('v_sub_u32 v55, v55, v60')
    b('v_lshl_add_u32 v55, v55, 4, v54')
    b('v_and_b32 v58, 1, v1')
    b('v_bfe_u32 v59, v1, 1, 3')
    b('v_lshrrev_b32 v50, 4, v1')
    b('s_mul_i32 s37, s35, 8448')
    b('s_lshl_b32 s38, s36, 8')
    b('s_sub_u32 s37, s37, s38')
    b('s_add_u32 s37, s37, %d' % (KB + 2 * 2044 - 7 * 512 - 3 * 64))
    b('v_xor_b32 v38, 1, v58')
    b('v_mul_u32_u24 v56, 4224, v38')
    b('v_sub_u32 v37, v50, v59')
    b('v_lshl_add_u32 v56, v37, 3, v56')
    b('v_add_u32 v56, s37, v56')
    b('s_mul_i32 s37, s35, %d' % (2 * CS_))
    b('s_mul_i32 s38, s36, 320')
    b('s_sub_u32 s37, s37, s38')
    b('s_add_u32 s37, s37, %d' % (HB + 4 * 80))
    b('v_mul_u32_u24 v57, %d, v58' % CS_)
    b('v_lshl_add_u32 v57, v50, 3, v57')
    b('v_mul_u32_u24 v37, 80, v59')
    b('v_add3_u32 v57, v57, v37, s37')
    b('s_waitcnt lgkmcnt(0)')
    b('s_mov_b64 exec, 1')
    b('ds_add_u32 v39, v48 offset:32')
    b('s_mov_b64 exec, -1')
    b('s_cmp_lg_u32 s33, 0')
    b('s_cbranch_scc1 K1_GW')
    b('s_mov_b32 s46, %d' % SPIN)
    b('s_waitcnt vmcnt(0)')
    b.label('K1_P1')
    b('v_readfirstlane_b32 s47, v112')
    b('s_cmp_lg_u32 s47, 0')
    b('s_cbranch_scc1 K1_P1X')
    b('global_load_dword v112, v111, s[50:51] sc1')
    b('s_sub_u32 s46, s46, 1')
    b('s_cmp_lg_u32 s46, 0')
    b('s_waitcnt vmcnt(0)')
    b('s_cbranch_scc1 K1_P1')
    b.label('K1_P1X')
    b('ds_write_b32 v39, v112 offset:52')
    b(add64(22, 4, hex(WS_G1)))
    b('v_lshlrev_b32 v113, 7, v1')
    if FPL == 4:
        b('s_mov_b32 exec_hi, 0')
    b('s_mov_b32 s46, %d' % SPIN)
    if opt('S1', 0):
        b('s_sleep %d' % opt('S1', 0))
    if EPOLL:
        b('s_branch K1_P4')
    b.label('K1_P3')
    if FPL == 4:
        b('global_load_dwordx4 v[116:119], v113, s[22:23] ' + POLL)
        b('s_waitcnt vmcnt(0)')
        b.label('K1_P4')
        for i in range(4):
            b('v_xor_b32 v%d, v%d, v112' % (116 + i, 116 + i))
        b('v_or3_b32 v116, v116, v117, v118')
        b('v_or_b32 v116, v116, v119')
    else:
        b('global_load_dwordx2 v[116:117], v113, s[22:23] ' + POLL)
        b('s_waitcnt vmcnt(0)')
        for i in range(2):
            b('v_xor_b32 v%d, v%d, v112' % (116 + i, 116 + i))
        b('v_or_b32 v116, v116, v117')
    b('v_cmp_ne_u32 vcc, 0, v116')
    b('s_cmp_eq_u64 vcc, 0')
    b('s_cbranch_scc1 K1_GO')
    b('s_mov_b64 exec, vcc')
    if opt('PSL', 4):
        b('s_sleep %d' % opt('PSL', 4))
    b('s_sub_u32 s46, s46, 1')
    b('s_cmp_lg_u32 s46, 0')
    b('s_cbranch_scc1 K1_P3')
    b.label('K1_GO')
    b('s_mov_b64 exec, 1')
    b('ds_add_u32 v39, v48 offset:32')
    b('s_mov_b64 exec, -1')
    b.label('K1_GW')
    stamp(b, 5)
    lds_wait(b, 'A', 39, 32, 5, 49, opt('GSL', 1))
    stamp(b, 6)
    vm = VM(b)
    b(vm.op('global_load_dwordx4 v[4:7], v2, s[10:11] sc1', 'ln'))
    b(vm.op('global_load_dwordx4 v[8:11], v2, s[12:13] sc1', 'ln'))
    b('s_mov_b32 m0, s29')
    for i in range(2):
        b(vm.op('buffer_load_dwordx4 v40, s[24:27], s28 offen offset:%d sc1 lds' % (1024 * i), 'st'))
    b('s_add_u32 m0, s29, 2048')
    b('s_add_u32 s28, s28, 8192')
    for i in range(2):
        b(vm.op('buffer_load_dwordx4 v40, s[24:27], s28 offen offset:%d sc1 lds' % (1024 * i), 'st'))
    b('s_mov_b64 exec, 1')
    b('ds_add_u32 v39, v48 offset:44')
    b('s_mov_b64 exec, -1')
    if SCANL:
        scan()
    RS, CC_ = 96, 112
    b(vm.wait('st'))
    for i in range(2):
        for a in range(2):
            for k in range(2):
                b('ds_read_b128 %s, v42 offset:%d' % (vr(RS + 16 * a + 8 * i + 4 * k, 4), 2048 * i + 64 * a + 16 * k))
    stamp(b, 7)
    HF_, XF_ = 160, 176
    for i in range(2):
        for k in range(4):
            E(b, unpack(XF_ + 8 * i + 2 * k, 4 + 4 * i + k))
        if i == 0:
            b('s_waitcnt lgkmcnt(0)')
        for k in range(4):
            o_ = 8 * i + 2 * k
            b(pk('fma', HF_ + o_, [('p', XF_ + o_), ('p', RS + o_), ('p', CC_ + o_)]))
        h = 40 + 4 * i
        for k in range(4):
            b('v_cvt_pk_bf16_f32 v%d, v%d, v%d' % (h + k, HF_ + 8 * i + 2 * k, HF_ + 8 * i + 2 * k + 1))
        o = HB + 560 + 2560 * i
        b('ds_write_b128 v54, %s offset:%d' % (vr(h, 4), o))
        for k in range(3):
            b('v_cvt_pk_bf16_f32 v%d, v%d, v%d' % (5 + 4 * i + k, HF_ + 8 * i + 2 * k + 1, HF_ + 8 * i + 2 * k + 2))
        b('ds_write_b16 v54, v%d offset:%d' % (h, o + CS_ + 2))
        b('ds_write_b16_d16_hi v55, v%d offset:%d' % (h + 3, o + CS_ + 16))
        b('ds_write_b32 v54, v%d offset:%d' % (5 + 4 * i, o + CS_ + 4))
        b('ds_write_b64 v54, %s offset:%d' % (vr(6 + 4 * i, 2), o + CS_ + 8))
    b('s_waitcnt lgkmcnt(0)')
    b('s_mov_b64 exec, 1')
    b('ds_add_u32 v39, v48 offset:8')
    b('s_mov_b64 exec, -1')
    lds_wait(b, 'H', 39, 8, 4, 48, 0)
    stamp(b, 8)

    def reads(rho):
        f = 96 if rho & 1 == 0 else 192
        r = []
        for n in range(8):
            for e in range(2):
                r.append('ds_read_b64 %s, v57 offset:%d' % (vr(f + 32 + 4 * n + 2 * e, 2), (3 - rho) * 80 + 640 * n + 32 * e))
            for e in range(2):
                r.append('ds_read_b64 %s, v56 offset:%d' % (vr(f + 4 * n + 2 * e, 2), (3 - rho) * 64 + (7 - n) * 512 + 32 * e))
        return r
    E(b, reads(0))
    fill = []
    fill += ['s_mul_i32 s37, s33, 9216', 's_add_u32 s37, s37, %d' % PB,
             'v_mul_u32_u24 v62, 144, v59', 'v_lshl_add_u32 v62, v50, 5, v62',
             'v_lshl_add_u32 v62, v38, 2, v62', 'v_add_u32 v62, s37, v62',
             'v_lshl_add_u32 v63, v60, 2, v61', 'v_mul_u32_u24 v58, %d, v3' % (2 * 9216), 'v_lshl_add_u32 v63, v63, 2, v58',
             'v_add_u32 v63, %d, v63' % PB,
             'v_add_u32 v37, s6, v3', 'v_lshrrev_b32 v2, 7, v61', 'v_lshlrev_b32 v2, 17, v2', 'v_lshl_add_u32 v2, v37, 8, v2',
             'v_and_b32 v58, 127, v61', 'v_and_b32 v59, 3, v37', 'v_lshlrev_b32 v59, 5, v59', 'v_xor_b32 v58, v58, v59',
             'v_bfe_u32 v59, v37, 3, 1', 'v_lshlrev_b32 v59, 4, v59', 'v_xor_b32 v58, v58, v59', 'v_lshl_add_u32 v2, v58, 1, v2',
             'v_lshlrev_b32 v36, 13, v3', 'v_lshl_add_u32 v36, v61, 2, v36', 'v_add_u32 v36, %d, v36' % SB,
             'v_lshlrev_b32 v38, 4, v3', 'v_add_u32 v38, %d, v38' % MC] + add64(10, 4, hex(WS_X1T)).split('\n') + add64(12, 4, hex(WS_X1T + 0x100000)).split('\n')
    order = sorted([(p, m) for p in range(8) for m in range(8 - p)], key=lambda pm: (max(pm) > 3, max(pm), (pm[0] + pm[1]) & 1, pm))
    seq = []
    for grp in ([x for x in order if max(x) <= 3], [x for x in order if max(x) > 3]):
        grp = list(grp)
        while grp:
            pick = next((x for x in grp if not seq or sum(x) != sum(seq[-1])), grp[0])
            grp.remove(pick)
            seq.append(pick)
    touched = set()
    for rho in range(4):
        f = 96 if rho & 1 == 0 else 192
        nxt = reads(rho + 1) if rho < 3 else \
            ['ds_read_b128 %s, v36 offset:%d' % (vr(96 + 8 * i + 4 * k, 4), 4096 * i + 16 * k) for i in range(2) for k in range(2)] + \
            ['ds_read_b128 v[112:115], v38 offset:%d' % (SB + 16384 - MC)]
        b('s_waitcnt lgkmcnt(%d)' % (14 if rho == 0 else 0))
        for n, (p, m) in enumerate(seq):
            if rho == 0 and n == 16:
                b('s_waitcnt lgkmcnt(14)')
            a = vr(64 + 4 * (p + m), 4)
            b('v_mfma_f32_16x16x32_bf16 %s, %s, %s, %s' % (a, vr(f + 4 * p, 4), vr(f + 32 + 4 * m, 4), a if p + m in touched else '0'))
            touched.add(p + m)
            if nxt and not (rho == 0 and n in (14, 15)):
                b(nxt.pop(0))
            if fill:
                b(fill.pop(0))
        E(b, nxt)
    assert not fill
    stamp(b, 9)
    for j in range(8):
        if j:
            b('v_add_u32 v62, 1152, v62')
        b('ds_write2_b32 v62, v%d, v%d offset0:0 offset1:2' % (64 + 4 * j, 65 + 4 * j))
        b('ds_write2_b32 v62, v%d, v%d offset0:4 offset1:6' % (66 + 4 * j, 67 + 4 * j))
    b('v_mov_b32 v48, 1')
    b('s_waitcnt lgkmcnt(0)')
    b('s_mov_b64 exec, 1')
    b('ds_add_u32 v39, v48 offset:36')
    b('s_mov_b64 exec, -1')
    lds_wait(b, 'M', 39, 12, 1, 48, 1)
    b('ds_read_b128 v[20:23], v38')
    b('s_cmp_ge_u32 s33, 2')
    b('s_cselect_b32 s40, 1.0, 0')
    b('v_mul_f32 v24, s40, v112')
    b('v_add_f32 v26, v112, v113')
    b('v_fma_f32 v26, s40, v114, v26')
    b('s_waitcnt lgkmcnt(0)')
    b('v_fma_f32 v24, v24, v22, v23')
    b('v_fma_f32 v26, v26, v22, v23')
    for k in range(8):
        b(pk('fma', HF_ + 2 * k, [('p', HF_ + 2 * k), ('b', 21), ('p', XF_ + 2 * k)]))
        b(pk('fma', 96 + 2 * k, [('p', 96 + 2 * k), ('b', 22), ('b', 24 + 2 * (k >> 2))]))
    for k in range(8):
        b(pk('add', HF_ + 2 * k, [('p', HF_ + 2 * k), ('p', 96 + 2 * k)]))
    lds_wait(b, 'P', 39, 36, 4, 48, 0)
    stamp(b, 10)
    for i in range(2):
        for part in range(2):
            for k in range(2):
                b('ds_read_b128 %s, v63 offset:%d' % (vr(64 + 16 * i + 8 * part + 4 * k, 4), 4608 * i + 9216 * part + 16 * k))
    for i in range(2):
        b('s_waitcnt lgkmcnt(%d)' % (4 - 4 * i))
        Y = 64 + 16 * i
        for k in range(4):
            b(pk('add', Y + 2 * k, [('p', Y + 2 * k), ('p', Y + 2 * k + 8)]))
        for k in range(4):
            b(pk('fma', Y + 2 * k, [('p', Y + 2 * k), ('b', 20), ('p', HF_ + 8 * i + 2 * k)]))
        for k in range(4):
            b('v_cvt_pk_bf16_f32 v%d, v%d, v%d' % (116 + 4 * i + k, Y + 2 * k, Y + 2 * k + 1))
        b('global_store_dwordx4 v2, %s, s[%d:%d] %s' % (vr(116 + 4 * i, 4), 10 + 2 * i, 11 + 2 * i, ST_X1))
    if ONE:
        stamp_end(b, 0, more=True)
        b('s_branch K2_ENTRY')
    else:
        stamp_end(b, 0)
        b('s_endpgm')

    b.label('K1_B')
    if BFIRST:
        b('s_setprio 3')
    b('s_load_dwordx2 s[8:9], s[0:1], %d' % KA['u'])
    b('s_load_dwordx4 s[40:43], s[0:1], %d' % KA['c'])
    b('s_load_dwordx4 s[44:47], s[0:1], %d' % KA['wg'])
    b('s_load_dwordx2 s[48:49], s[0:1], %d' % KA['wd'])
    b('s_load_dwordx2 s[50:51], s[0:1], %d' % KA['dbg'])
    b('s_load_dwordx2 s[54:55], s[0:1], %d' % KA['dsk'])
    b('s_memrealtime s[52:53]')
    b('v_and_b32 v0, 255, v0')
    b('v_lshrrev_b32 v3, 6, v0')
    b('v_mov_b32 v110, %d' % CNT)
    b('v_mov_b32 v111, 0')
    for i in range(0, 14, 2):
        b('ds_write2_b32 v110, v111, v111 offset0:%d offset1:%d' % (i, i + 1))
    b('s_cmp_ge_u32 s2, %d' % N_XT)
    b('s_cbranch_scc1 K1_NOTXT')
    b('s_lshl_b32 s6, s2, 14')
    b('v_lshrrev_b32 v60, 4, v1')
    b('v_lshlrev_b32 v61, 2, v60')
    b('v_xor_b32 v61, v61, v1')
    b('v_and_b32 v61, 15, v61')
    b('v_lshlrev_b32 v61, 4, v61')
    b('v_lshl_add_u32 v61, v60, 10, v61')
    b('s_sub_u32 s30, s33, 4')
    b('s_lshl_b32 s28, s30, 12')
    b('s_add_u32 s28, s28, %d' % BB)
    b('s_lshl_b32 s29, s30, 8')
    b('s_lshl_b32 s7, s2, 3')
    b('s_add_u32 s7, s7, s33')
    b('s_cmp_lg_u32 s7, 4')
    b('s_waitcnt lgkmcnt(0)')
    if not SWAP:
        b('s_barrier')
    b('s_cbranch_scc1 K1_NOTAG')
    b('s_or_b32 s52, s52, 1')
    b('v_mov_b32 v114, s52')
    b('global_store_dword v111, v114, s[50:51] sc1')
    b.label('K1_NOTAG')
    srd(b, 24, 8, 's6', 16384)
    for i in range(4):
        b('s_add_u32 m0, s28, %d' % (1024 * i))
        b('buffer_load_dwordx4 v61, s[24:27], s29 offen%s lds' % ntf(2))
        b('s_add_u32 s29, s29, 4096')
    if ORD2:
        b('s_barrier')
    if SWAP and not ORD2:
        b('s_barrier')
    b('v_bfe_u32 v62, v1, 2, 2')
    b('v_and_b32 v63, 1, v60')
    b('v_lshl_add_u32 v64, v63, 3, v62')
    b('v_lshlrev_b32 v64, 8, v64')
    b('v_lshrrev_b32 v65, 5, v1')
    b('v_bfe_u32 v66, v1, 1, 1')
    b('v_lshl_add_u32 v66, v65, 1, v66')
    b('v_lshl_add_u32 v66, v62, 2, v66')
    b('v_lshl_add_u32 v64, v66, 4, v64')
    b('v_and_b32 v66, 1, v1')
    b('v_lshl_add_u32 v64, v66, 3, v64')
    b('v_add_u32 v64, s28, v64')
    for i in range(1, 4):
        b('v_xor_b32 v%d, %d, v64' % (88 + i, 64 * i))
    b('v_mov_b32 v88, v64')
    b('v_and_b32 v66, 15, v1')
    b('v_lshl_add_u32 v66, v65, 4, v66')
    b('v_lshlrev_b32 v66, 5, v66')
    b('v_lshl_add_u32 v65, v63, 4, v66')
    b('s_lshl_b32 s7, s30, 12')
    b('s_add_u32 s7, s7, s6')
    b('s_add_u32 s7, s7, %s' % hex(WS_XT))
    b(add64(10, 4, 's7'))
    b('s_lshl_b32 s7, s2, 7')
    b('s_add_u32 s7, s7, %s' % hex(WS_LST))
    b(add64(16, 4, 's7'))
    b('v_and_b32 v67, 15, v1')
    b('v_and_b32 v68, 3, v1')
    b('v_lshl_add_u32 v68, v68, 2, v60')
    b('v_lshlrev_b32 v68, 4, v68')
    b('v_lshl_add_u32 v68, v67, 8, v68')
    b('v_add_u32 v68, s28, v68')
    for j in range(1, 4):
        b('v_xor_b32 v%d, %d, v68' % (68 + j, 64 * j))
    for i in range(4):
        b('v_mov_b32 v%d, 0x3f803f80' % (20 + i))
    b('v_cmp_eq_u32 s[20:21], v60, v62')
    b('v_and_b32 v72, 3, v1')
    b('v_cmp_eq_u32 s[12:13], 1, v72')
    b('v_cmp_eq_u32 s[14:15], 2, v72')
    b('v_cmp_eq_u32 s[18:19], 3, v72')
    b('v_lshlrev_b32 v72, 3, v67')
    b('v_add_u32 v73, %d, v72' % XS)
    b('v_lshl_add_u32 v72, v3, 7, v73')
    b('v_lshlrev_b32 v67, 2, v67')
    b('s_setprio %d' % opt('XPRIO', 3))
    stamp(b, 1)
    b('s_waitcnt vmcnt(0)')
    stamp(b, 2)
    for i in range(4):
        for e in range(2):
            b('ds_read_b64_tr_b16 %s, v%d offset:%d' % (vr(92 + 4 * i + 2 * e, 2), 88 + i, 1024 * e))
    for j in range(4):
        b('ds_read_b128 %s, v%d' % (vr(4 + 4 * j, 4), 68 + j))
    for i in range(4):
        b('s_waitcnt lgkmcnt(%d)' % (10 - 2 * i))
        b('global_store_dwordx4 v65, %s, s[10:11] offset:%d sc1' % (vr(92 + 4 * i, 4), 1024 * i))
    for j in range(4):
        b('s_waitcnt lgkmcnt(%d)' % (3 - j))
        f = vr(4 + 4 * j, 4)
        b('v_mfma_f32_16x16x32_bf16 v[28:31], %s, %s, %s' % (f, f, 'v[28:31]' if j else '0'))
        b('v_mfma_f32_16x16x32_bf16 v[24:27], v[20:23], %s, %s' % (f, 'v[24:27]' if j else '0'))
    b('v_mov_b32 v113, 1')
    b('v_cndmask_b32 v25, v28, v29, s[12:13]')
    b('v_cndmask_b32 v25, v25, v30, s[14:15]')
    b('v_cndmask_b32 v25, v25, v31, s[18:19]')
    b('s_mov_b64 exec, s[20:21]')
    b('ds_write_b64 v72, v[24:25]')
    b('s_mov_b64 exec, 1')
    b('ds_add_rtn_u32 v114, v110, v113 offset:24')
    b('s_mov_b64 exec, -1')
    b('s_waitcnt lgkmcnt(0)')
    b('v_readfirstlane_b32 s35, v114')
    b('s_cmp_lg_u32 s35, 3')
    b('s_cbranch_scc1 K1_PUB')
    for w in range(4):
        b('ds_read_b64 %s, v73 offset:%d' % (vr(52 + 2 * w, 2), 128 * w))
    b('s_mov_b32 s12, %s' % fhex(1.0 / 512))
    b('s_waitcnt lgkmcnt(0)')
    b(pk('add', 52, [('p', 52), ('p', 54)]))
    b(pk('add', 56, [('p', 56), ('p', 58)]))
    b(pk('add', 52, [('p', 52), ('p', 56)]))
    b(pk('mul', 52, [('p', 52), ('sl', 12)]))
    E(b, ['v_fma_f32 v56, -v52, v52, v53', 'v_max_f32 v56, 0, v56', 'v_cvt_pk_bf16_f32 v53, v56, v52',
          'v_lshlrev_b32 v56, 16, v53', 'v_and_b32 v52, 0xffff0000, v53',
          'v_add_f32 v56, %s, v56' % fhex(1e-5)] + rnd_bf16(56) + ['v_sqrt_f32 v56, v56'] + rnd_bf16(56) +
         ['v_rcp_f32 v56, v56', 'v_cmp_gt_u32 vcc, 16, v1', 'v_lshlrev_b32 v67, 2, v1', 'v_mul_f32 v52, -v52, v56', 'v_cndmask_b32 v56, v52, v56, vcc'])
    b('s_mov_b32 exec_hi, 0')
    b('global_store_dword v67, v56, s[16:17] sc1')
    b('s_mov_b64 exec, -1')
    stamp(b, 3)
    b('s_branch K1_PUB')
    b.label('K1_NOTXT')
    b('s_cmp_ge_u32 s2, %d' % (N_XT + N_MOD))
    b('s_cbranch_scc1 K1_IDLE')
    b('s_sub_u32 s6, s2, %d' % N_XT)
    b('s_and_b32 s7, s6, 1')
    b('s_lshr_b32 s6, s6, 1')
    b('v_lshrrev_b32 v2, 3, v0')
    b('v_mul_u32_u24 v4, 6144, v2')
    b('v_and_b32 v5, 7, v0')
    b('v_lshl_add_u32 v60, v5, 4, v4')
    b('v_lshlrev_b32 v2, 1, v2')
    b('s_mul_i32 s12, s7, %d' % (256 * 6144))
    b('s_lshl_b32 s13, s6, 7')
    b('s_add_u32 s12, s12, s13')
    b('s_lshl_b32 s13, s7, 9')
    b('s_waitcnt lgkmcnt(0)')
    b('s_barrier')
    b(add64(42, 42, 's12'))
    b(add64(40, 40, 's13'))
    for i in range(8):
        b('global_load_ushort v%d, v2, s[40:41] offset:%d' % (4 + i, 64 * i))
    b('s_setprio 0')
    if MOD_LATE:
        lds_wait(b, 'Q', 110, 28, 1, 113, 2, 36, 35)
    for i in range(8):
        b('global_load_dwordx4 %s, v60, s[42:43]%s' % (vr(64 + 4 * i, 4), ntf(4)))
        if i < 7:
            b(add64(42, 42, str(32 * 6144)))
    b('v_lshlrev_b32 v2, 5, v0')
    b('v_add_u32 v2, %d, v2' % BB)
    stamp(b, 1)
    b('s_waitcnt vmcnt(8)')
    for i in range(8):
        b('v_lshlrev_b32 v%d, 16, v%d' % (4 + i, 4 + i))
    for i in range(8):
        b('v_mul_f32 v%d, %s, v%d' % (24 + i, fhex(-LOG2E), 4 + i))
    for i in range(8):
        b('v_exp_f32 v%d, v%d' % (24 + i, 24 + i))
    for i in range(0, 8, 2):
        b(pk('add', 24 + i, [('p', 24 + i), ('k', '1.0')]))
    for i in range(8):
        b('v_rcp_f32 v%d, v%d' % (24 + i, 24 + i))
    for i in range(0, 8, 2):
        b(pk('mul', 4 + i, [('p', 4 + i), ('p', 24 + i)]))
    for i in range(0, 8, 2):
        E(b, rnd_pair(4 + i, 24))
    for i in range(8):
        b('s_waitcnt vmcnt(%d)' % (7 - i))
        for k in range(4):
            E(b, unpack(24 + 2 * k, 64 + 4 * i + k))
        for k in range(4):
            if i == 0:
                b(pk('mul', 32 + 2 * k, [('p', 24 + 2 * k), ('b', 4 + i)]))
            else:
                b(pk('fma', 32 + 2 * k, [('p', 24 + 2 * k), ('b', 4 + i), ('p', 32 + 2 * k)]))
    stamp(b, 2)
    b('ds_write_b128 v2, v[32:35]')
    b('ds_write_b128 v2, v[36:39] offset:16')
    b('v_mov_b32 v113, 1')
    b('s_cmp_lg_u32 s33, 4')
    b('s_waitcnt lgkmcnt(0)')
    stamp(b, 3)
    b('s_cbranch_scc0 K1_M4')
    b('s_mov_b64 exec, 1')
    b('ds_add_u32 v110, v113 offset:24')
    b('s_mov_b64 exec, -1')
    b('s_mov_b32 s36, %d' % SPIN)
    b.label('K1_MW')
    b('ds_read_b32 v113, v110 offset:4')
    b('s_sub_u32 s36, s36, 1')
    b('s_waitcnt lgkmcnt(0)')
    b('v_readfirstlane_b32 s35, v113')
    b('s_cmp_lg_u32 s35, 0')
    b('s_cbranch_scc1 K1_PUB')
    b('s_sleep 1')
    b('s_cmp_lg_u32 s36, 0')
    b('s_cbranch_scc1 K1_MW')
    b('s_branch K1_PUB')
    b.label('K1_M4')
    lds_wait(b, 'R', 110, 24, 3, 113, 0, 36, 35)
    b('v_lshlrev_b32 v2, 2, v0')
    b('v_add_u32 v2, %d, v2' % BB)
    for k in range(16):
        b('ds_read2st64_b32 %s, v2 offset0:%d offset1:%d' % (vr(4 + 2 * k, 2), 2 * k, 2 * k + 1))
    b('s_lshl_b32 s6, s6, 8')
    b('s_mul_i32 s7, s7, 12288')
    b('s_add_u32 s6, s6, s7')
    b('v_lshl_add_u32 v2, v0, 2, s6')
    b('s_waitcnt lgkmcnt(0)')
    for w in (16, 8, 4, 2):
        for k in range(0, w, 2):
            b(pk('add', 4 + k, [('p', 4 + k), ('p', 4 + w + k)]))
    b('v_add_f32 v4, v4, v5')
    b('global_store_dword v2, v4, s[4:5] sc1')
    b('global_load_dword v115, v111, s[50:51] sc1')
    b('ds_write_b32 v110, v110 offset:4')
    b('s_branch K1_PUB2')
    b.label('K1_IDLE')
    if CODE_PF:
        code_prefetch(b, 'a', KNAME, 0, 150, 22, back=True)
    b('s_waitcnt lgkmcnt(0)')
    b('s_barrier')
    b.label('K1_PUB')
    WR = 120

    def wprep():
        b('s_and_b32 s12, s2, 3')
        b('s_bfe_u32 s13, s2, 0x10002')
        b('s_lshr_b32 s14, s2, 3')
        b('v_bfe_u32 v52, v0, 2, 1')
        b('v_and_b32 v53, 3, v0')
        b('v_lshl_add_u32 v52, v52, 3, v53')
        b('v_lshl_add_u32 v2, v3, 5, v52')
        b('v_mul_u32_u24 v2, 3584, v2')
        b('v_lshrrev_b32 v54, 4, v1')
        b('v_lshl_add_u32 v2, v54, 4, v2')
        b('v_bfe_u32 v52, v0, 3, 1')
        b('v_lshl_add_u32 v2, v52, 6, v2')
        b('s_mul_i32 s15, s12, %d' % (128 * 3584))
        b('s_lshl_b32 s16, s14, 7')
        b('s_add_u32 s15, s15, s16')
        b('s_cmp_eq_u32 s13, 0')
        b('s_cselect_b32 s8, s44, s46')
        b('s_cselect_b32 s9, s45, s47')
        b(add64(8, 8, 's15'))
        b('s_sub_u32 s30, s33, 4')
        b('s_lshl_b32 s28, s2, 13')
        srd(b, 24, 48, 's28', 8192)
        b('v_lshrrev_b32 v58, 3, v1')
        b('v_lshlrev_b32 v58, 10, v58')
        b('v_and_b32 v59, 7, v1')
        b('v_lshl_add_u32 v58, v59, 4, v58')
        b('s_lshl_b32 s29, s30, 8')
        b('s_lshl_b32 s28, s30, 11')
        b('s_add_u32 s28, s28, %d' % (FB_ + 4096))
        b('v_and_b32 v60, 1, v1')
        b('v_lshlrev_b32 v60, 4, v60')
        b('v_lshlrev_b32 v60, v60, 0x3f80' if False else 'v_mov_b32 v61, 0x3f80')
        b('v_lshlrev_b32 v60, v60, v61')
        b('v_bfe_u32 v61, v1, 1, 3')
        b('v_lshlrev_b32 v62, 2, v54')
        b('v_sub_u32 v61, v62, v61')
        for s_ in range(2):
            for p in range(4):
                b('v_cmp_eq_u32 vcc, %d, v61' % (8 * s_ - p))
                b('v_cndmask_b32 v%d, 0, v60, vcc' % (32 + 4 * s_ + p))
        for i in range(4):
            b('v_mov_b32 v%d, 0x3f803f80' % (48 + i))
        b('v_lshlrev_b32 v45, 2, v0')
        b('v_add_u32 v45, %d, v45' % FB_)
        b('v_lshlrev_b32 v63, 8, v3')
        b('v_lshl_add_u32 v63, v54, 5, v63')
        b('v_add_u32 v63, %d, v63' % FB_)
        b('v_lshlrev_b32 v44, 11, v3')
        b('v_lshl_add_u32 v44, v1, 4, v44')
        b('s_lshl_b32 s15, s14, 17')
        b('s_lshl_b32 s16, s12, 13')
        b('s_add_u32 s15, s15, s16')
        b('s_lshl_b32 s16, s13, 10')
        b('s_add_u32 s15, s15, s16')
        b('s_add_u32 s15, s15, %s' % hex(WS_WF))
        b(add64(56, 4, 's15'))
        b('v_bfe_u32 v47, v1, 2, 2')
        b('v_lshlrev_b32 v46, 5, v54')
        b('v_lshl_add_u32 v46, v47, 7, v46')
        b('v_lshl_add_u32 v46, v53, 3, v46')
        b('v_add_u32 v46, s28, v46')
        b('v_lshrrev_b32 v47, 5, v1')
        b('v_mul_u32_u24 v47, 114688, v47')
        b('v_and_b32 v60, 31, v1')
        b('v_lshl_add_u32 v47, v60, 4, v47')
        b('s_mul_i32 s38, s30, %d' % (4 * 114688))
        b('s_lshl_b32 s39, s2, 9')
        b('s_add_u32 s38, s38, s39')
        b('s_add_u32 s38, s38, %s' % hex(WS_WD))
        b(add64(40, 4, 's38'))
        b(add64(42, 40, str(2 * 114688)))

    def wreq():
        for hi in range(2):
            for ab in range(2):
                b('global_load_dwordx4 %s, v2, s[8:9]%s' % (vr(WR + 8 * hi + 4 * ab, 4), ntf(8)))
                if hi + ab < 2:
                    b(add64(8, 8, str((12 if ab else 4) * 3584)))
        b('s_mov_b32 m0, s28')
        b('buffer_load_dwordx4 v58, s[24:27], s29 offen%s lds' % ntf(8))
        b('s_add_u32 m0, s28, 1024')
        b('s_add_u32 s29, s29, 128')
        b('buffer_load_dwordx4 v58, s[24:27], s29 offen%s lds' % ntf(8))
    b('global_load_dword v115, v111, s[50:51] sc1')
    b.label('K1_PUB2')
    b.label('K1_NOW')
    b('v_mov_b32 v112, 1')
    if FPL == 4:
        b('s_lshr_b32 s34, s2, 2')
        b('s_lshl_b32 s34, s34, 7')
        b('s_and_b32 s35, s2, 3')
        b('s_lshl_b32 s35, s35, 2')
        b('s_add_u32 s34, s34, s35')
    else:
        b('s_lshr_b32 s34, s2, 1')
        b('s_lshl_b32 s34, s34, 7')
        b('s_and_b32 s35, s2, 1')
        b('s_lshl_b32 s35, s35, 2')
        b('s_add_u32 s34, s34, s35')
    b('v_mov_b32 v113, s34')
    b(add64(22, 4, hex(WS_G1)))
    b('s_waitcnt vmcnt(0)')
    stamp(b, 4)
    b('s_mov_b64 exec, 1')
    b('ds_add_rtn_u32 v114, v110, v112')
    b('s_mov_b32 s36, %d' % SPIN)
    b('s_waitcnt lgkmcnt(0)')
    b('v_readfirstlane_b32 s35, v114')
    b('s_cmp_lg_u32 s35, 3')
    b('s_cbranch_scc1 K1_NL')
    b.label('K1_T0')
    b('v_readfirstlane_b32 s35, v115')
    b('s_cmp_lg_u32 s35, 0')
    b('s_cbranch_scc1 K1_T1')
    b('global_load_dword v115, v111, s[50:51] sc1')
    b('s_sub_u32 s36, s36, 1')
    b('s_cmp_lg_u32 s36, 0')
    b('s_waitcnt vmcnt(0)')
    b('s_cbranch_scc1 K1_T0')
    b.label('K1_T1')
    b('global_store_dword v113, v115, s[22:23] sc1')
    b.label('K1_NL')
    b('s_mov_b64 exec, -1')
    b('s_and_b32 s6, s2, 7\ns_lshl_b32 s6, s6, 5\ns_lshr_b32 s7, s2, 3\ns_add_u32 s6, s6, s7\ns_lshl_b32 s6, s6, 1')
    b('v_and_b32 v42, 1, v1')
    b('v_add_u32 v40, s6, v42')
    b('v_lshlrev_b32 v41, 1, v40')
    b('v_lshlrev_b32 v40, 2, v40')
    stamp(b, 5)
    b('s_setprio 0')
    wprep()
    if FW_GO:
        if opt('FW_XT', False):
            b('s_cmp_ge_u32 s2, %d' % N_XT)
            b('s_cbranch_scc1 K1_XB')
        lds_wait(b, 'B', 110, 44, 4, 113, 2, 36, 35)
    b('s_cmp_ge_u32 s2, %d' % N_FOLD)
    b('s_cbranch_scc1 K1_NOW2')
    if G2_FIRST:
        b('s_cmp_eq_u32 s33, 7')
        b('s_cbranch_scc1 K1_NOW2')
    wreq()
    b.label('K1_NOW2')
    if opt('BP3', True):
        b('s_setprio 3')
    stamp(b, 10)
    b('s_cmp_lg_u32 s33, 7')
    stamp(b, 6)
    b('s_cbranch_scc1 K1_N7')
    b('v_min_u32 v113, %d, v1' % (23 if FPL == 4 else 47))
    b('v_lshlrev_b32 v113, 7, v113')
    b('v_add_u32 v113, %d, v113' % (4096 if FPL == 4 else 8192))
    b('global_load_ushort v43, v41, s[54:55]')
    b(add64(18, 4, '2048'))
    b(add64(20, 18, '12288'))
    b('s_mov_b32 s36, %d' % SPIN)
    if FPL == 4:
        b('s_mov_b64 exec, 0xffffff')
    else:
        b('s_mov_b32 exec_hi, 0xffff')
    if opt('S2', 0):
        b('s_sleep %d' % opt('S2', 0))
    b.label('K1_G2')
    b('global_load_dword v115, v111, s[50:51] sc1')
    if FPL == 4:
        b('global_load_dwordx4 v[116:119], v113, s[22:23] ' + POLL)
    else:
        b('global_load_dwordx2 v[116:117], v113, s[22:23] ' + POLL)
    b('s_waitcnt vmcnt(0)')
    if FPL != 4:
        b('v_mov_b32 v118, v115')
        b('v_mov_b32 v119, v115')
    for i in range(4):
        b('v_xor_b32 v%d, v%d, v115' % (116 + i, 116 + i))
    b('v_not_b32 v117, v115' if False else 'v_or3_b32 v116, v116, v117, v118')
    b('v_and_b32 v117, 1, v115')
    b('v_xor_b32 v117, 1, v117')
    b('v_or3_b32 v116, v116, v119, v117')
    b('v_cmp_ne_u32 vcc, 0, v116')
    b('s_cmp_eq_u64 vcc, 0')
    b('s_cbranch_scc1 K1_G2X')
    b('s_mov_b64 exec, vcc')
    b('s_sleep %d' % opt('S2L', 4))
    b('s_sub_u32 s36, s36, 1')
    b('s_cmp_lg_u32 s36, 0')
    b('s_cbranch_scc1 K1_G2')
    b.label('K1_G2X')
    b('s_mov_b64 exec, -1')
    b('ds_write_b32 v110, v112 offset:16')
    for p_ in range(2):
        for s_, (v_, o_) in enumerate(((40, -2048), (40, 0), (40, 2048))):
            b('global_load_dword v%d, v%d, s[%d:%d] offset:%d sc1' % (24 + 4 * p_ + s_, v_, 18 + 2 * p_, 19 + 2 * p_, o_))
    b('s_branch K1_N7X')
    b.label('K1_N7')
    b('s_cmp_lg_u32 s33, 6')
    b('s_cbranch_scc1 K1_N6')
    b('s_lshl_b32 s20, s2, 7')
    b('v_lshrrev_b32 v31, 5, v1')
    b('v_and_b32 v28, 31, v1')
    b('v_lshlrev_b32 v29, 2, v28')
    b('v_mul_u32_u24 v30, %d, v31' % (WS_FLG - WS_SST))
    b('v_add3_u32 v29, v29, v30, s20')
    b('v_and_b32 v28, 33, v1')
    b('v_cmp_eq_u32 vcc, 1, v28')
    b('v_mov_b32 v31, 0xbf800000')
    b(add64(20, 4, hex(WS_SST)))
    b('v_cndmask_b32 v28, 0, v31, vcc')
    b('global_store_dword v29, v28, s[20:21] sc1')
    b.label('K1_N6')
    lds_wait(b, 'G', 110, 16, 1, 113, 2)
    b.label('K1_N7X')
    stamp(b, 11)
    b('s_cmp_ge_u32 s2, %d' % N_FOLD)
    b('s_cbranch_scc1 K1_NF0')
    b('s_lshl_b32 s16, s12, 9')
    b('s_lshl_b32 s17, s30, 7')
    b('s_add_u32 s16, s16, s17')
    b('s_add_u32 s16, s16, %d' % (3 * 2048))
    b('v_and_b32 v55, 31, v1')
    b('v_lshlrev_b32 v56, 2, v55')
    b('v_lshrrev_b32 v57, 5, v1')
    b('v_lshl_add_u32 v56, v57, 11, v56')
    b(add64(18, 4, 's16'))
    b('global_load_dword v20, v56, s[18:19] sc1')
    b(add64(18, 18, '12288'))
    b('global_load_dword v21, v56, s[18:19] sc1')
    b.label('K1_NF0')
    b('s_cmp_lg_u32 s33, 7')
    b('s_cbranch_scc1 K1_NC')
    b('v_lshlrev_b32 v42, 4, v42')
    b('s_waitcnt vmcnt(0)')
    b(pk('add', 24, [('p', 24), ('p', 28)]))
    b(pk('add', 26, [('p', 26), ('p', 30)]))
    E(b, rnd_pair(24, 28) + rnd_pair(26, 29))
    b('v_add_f32 v25, 1.0, v25')
    E(b, rnd_bf16(25))
    b('v_lshlrev_b32 v43, 16, v43')
    b('v_mul_f32 v28, v26, v25')
    b('v_mul_f32 v30, v26, v24')
    b('v_mul_f32 v29, v28, v43')
    b('v_mul_f32 v31, v30, v43')
    b('v_add_u32 v42, %d, v42' % MC)
    b('ds_write_b128 v42, v[28:31]')
    b('ds_write_b32 v110, v112 offset:12')
    b.label('K1_NC')
    b('s_cmp_lt_u32 s2, %d' % N_FOLD)
    b('s_cbranch_scc1 K1_FOLD')
    b('s_branch K1_FIN')
    b.label('K1_FOLD')
    b('s_setprio %d' % FOLD_PRIO)
    b('v_cvt_f32_u32 v57, v57')
    stamp(b, 12)
    b('s_waitcnt vmcnt(0)')
    stamp(b, 13)
    b('v_add_f32 v20, v20, v21')
    E(b, rnd_bf16(20))
    b('v_add_f32 v20, v20, v57')
    E(b, rnd_bf16(20))
    b('ds_write_b32 v45, v20')
    SBR, OCR, D = 64, 72, 80
    b('ds_read_b128 %s, v63' % vr(SBR, 4))
    b('ds_read_b128 %s, v63 offset:16' % vr(SBR + 4, 4))
    b('ds_read_b128 %s, v63 offset:128' % vr(OCR, 4))
    b('ds_read_b128 %s, v63 offset:144' % vr(OCR + 4, 4))
    stamp(b, 7)
    b('s_waitcnt vmcnt(0)')
    stamp(b, 8)
    for i in range(4):
        b('ds_read_b64_tr_b16 %s, v46 offset:%d' % (vr(24 + 2 * i, 2), 512 * i))
    for nt in range(4):
        for ab in range(2):
            b('v_mfma_f32_16x16x32_bf16 %s, %s, %s, 0' % (vr(D + 8 * nt + 4 * ab, 4), vr(WR + 8 * (nt >> 1) + 4 * ab, 4), vr(32 + 4 * (nt & 1), 4)))
    b('s_waitcnt lgkmcnt(0)')
    b('global_store_dwordx4 v47, v[24:27], s[40:41] %s' % ST_WF)
    b('global_store_dwordx4 v47, v[28:31], s[42:43] %s' % ST_WF)
    for k in range(16):
        b('v_permlane32_swap_b32 v%d, v%d' % (D + k, D + 16 + k))
    for nt in range(4):
        d = D + 8 * nt
        o = 4 + 4 * nt
        b(pk('mul', 128 + 2 * nt, [('p', d), ('p', SBR)]))
        for k in range(1, 4):
            b(pk('fma', 128 + 2 * nt, [('p', d + 2 * k), ('p', SBR + 2 * k), ('p', 128 + 2 * nt)]))
        for k in range(4):
            b(pk('mul', d + 2 * k, [('p', d + 2 * k), ('p', OCR + 2 * k)]))
        for k in range(4):
            b('v_cvt_pk_bf16_f32 v%d, v%d, v%d' % (o + k, d + 2 * k, d + 2 * k + 1))
        b('global_store_dwordx4 v44, %s, s[56:57] %s' % (vr(o, 4), ST_WF))
        if nt < 3:
            b(add64(56, 56, '32768'))
        b('v_mfma_f32_16x16x32_bf16 %s, v[48:51], %s, 0' % (vr(136 + 4 * nt, 4), vr(o, 4)))
    for nt in range(4):
        b('v_add_f32 v%d, v%d, v%d' % (128 + nt, 128 + 2 * nt, 129 + 2 * nt))
    b('v_permlane32_swap_b32 v128, v129')
    b('v_permlane32_swap_b32 v130, v131')
    b('v_cmp_eq_u32 s[26:27], 1, v54')
    b('v_cmp_eq_u32 s[28:29], 2, v54')
    b('v_cmp_eq_u32 s[30:31], 3, v54')
    b('v_add_f32 v128, v128, v129')
    b('v_add_f32 v130, v130, v131')
    b('v_cndmask_b32 v136, v136, v144, s[26:27]')
    b('v_permlane16_swap_b32 v128, v130')
    b('v_cndmask_b32 v136, v136, v140, s[28:29]')
    b('v_add_f32 v137, v128, v130')
    b('v_cndmask_b32 v136, v136, v148, s[30:31]')
    b('v_lshlrev_b32 v56, 3, v0')
    b('v_add_u32 v56, %d, v56' % FB_)
    b('ds_write_b64 v56, v[136:137] offset:1024')
    stamp(b, 9)
    b('v_mov_b32 v110, %d' % CNT)
    b('s_waitcnt lgkmcnt(0)')
    b('s_mov_b64 exec, 1')
    b('ds_add_rtn_u32 v114, v110, v112 offset:40')
    b('s_mov_b64 exec, -1')
    b('s_waitcnt lgkmcnt(0)')
    b('v_readfirstlane_b32 s22, v114')
    b('s_cmp_lg_u32 s22, 3')
    b('s_cbranch_scc1 K1_FIN')
    b('v_lshlrev_b32 v56, 3, v1')
    b('v_add_u32 v56, %d, v56' % FB_)
    for w in range(4):
        b('ds_read_b64 %s, v56 offset:%d' % (vr(64 + 2 * w, 2), 1024 + 512 * w))
    b('v_and_b32 v2, 1, v54')
    b('v_lshlrev_b32 v2, 1, v2')
    b('v_lshrrev_b32 v3, 1, v54')
    b('v_add_u32 v2, v2, v3')
    b('v_lshlrev_b32 v2, 4, v2')
    b('v_and_b32 v3, 15, v1')
    b('v_add_lshl_u32 v2, v2, v3, 2')
    b('s_lshl_b32 s15, s2, 9')
    b('s_add_u32 s15, s15, %s' % hex(WS_CB))
    b(add64(20, 4, 's15'))
    b('s_waitcnt lgkmcnt(0)')
    b(pk('add', 64, [('p', 64), ('p', 66)]))
    b(pk('add', 68, [('p', 68), ('p', 70)]))
    b(pk('add', 64, [('p', 64), ('p', 68)]))
    b('global_store_dword v2, v64, s[20:21] sc1')
    b('global_store_dword v2, v65, s[20:21] offset:256 sc1')
    b.label('K1_FIN')
    if ONE:
        assert CNT == CNT_ADDR
        stamp_end(b, 0, more=True)
        return b
    stamp_end(b, 0)
    b.label('K1_END')
    b('s_endpgm')
    return b.text(), 256, NSG
```

```python
from common import *

K2_WGS = 256
ST = 131072
CBL = ST + 4096
FLAG = CBL + 7 * 32 * 8
SCR = FLAG + 256
K2_LDS = SCR + 8192
PLANS = [
    ({-2: ['x0'], -1: ['x1', 'x2'], 0: ['x3'], 1: ['x4'], 2: ['x5'], 3: ['x6'], 4: ['x7']},
     {0: ['x0'], 1: ['x1'], 2: ['x2'], 3: ['x3'], 4: ['x4'], 5: ['x5'], 6: ['x6', 'x7']}),
    ({-2: ['x0'], -1: ['x1', 'x2'], 0: ['x3'], 1: ['x4'], 2: ['x5', 'x6'], 3: ['x7']},
     {0: ['x0'], 1: ['x1'], 2: ['x2'], 3: ['x3'], 4: ['x4'], 5: ['x5', 'x6', 'x7']}),
    ({-2: ['x0'], -1: ['x1', 'x2'], 0: ['x3', 'x4'], 1: ['x5', 'x6'], 2: ['x7']},
     {0: ['x0'], 1: ['x1'], 2: ['x2'], 3: ['x3'], 4: ['x4', 'x5', 'x6', 'x7']}),
    ({-2: ['x0'], -1: ['x1', 'x2'], 0: ['x3'], 1: ['x4'], 2: ['x5'], 3: ['x6'], 4: ['x7']},
     {0: ['x0'], 1: ['x1'], 2: ['x2'], 3: ['x3'], 4: ['x4'], 5: ['x5'], 6: ['x6'], 7: ['x7']}),
    ({-2: ['x0'], -1: ['x1', 'x2', 'x3'], 0: ['x4'], 1: ['x5'], 2: ['x6', 'x7']},
     {0: ['x0'], 1: ['x1'], 2: ['x2'], 3: ['x3'], 4: ['x4'], 5: ['x5', 'x6', 'x7']}),
    ({-2: ['x0'], -1: ['x1', 'x2'], 0: ['x3'], 1: ['x4'], 2: ['x5'], 3: ['x6', 'x7']},
     {0: ['x0'], 1: ['x1'], 2: ['x2'], 3: ['x3'], 4: ['x4'], 5: ['x5', 'x6', 'x7']}),
    ({-2: ['x0'], -1: ['x1', 'x2'], 0: ['x3', 'x4'], 1: [], 2: ['x5', 'x6'], 3: ['x7']},
     {0: ['x0'], 1: ['x1'], 2: ['x2'], 3: ['x3'], 4: ['x4'], 5: ['x5', 'x6', 'x7']}),
    ({-2: ['x0'], -1: ['x1', 'x2'], 0: ['x3'], 1: ['x4', 'x5'], 2: [], 3: ['x6', 'x7']},
     {0: ['x0'], 1: ['x1'], 2: ['x2'], 3: ['x3'], 4: ['x4'], 5: ['x5', 'x6', 'x7']}),
]
PLAN, BARS = PLANS[opt('PLAN', 1)]
GATHER = max(BARS) - 1
WD0 = opt('WD0', 18)
AUXX = True
W0 = opt('W0', 2)
WP = opt('WP', 6)
_n, _u = WP, 0
WPAT = opt('WPAT', '1')
while _n < 32:
    _n += int(WPAT[_u % len(WPAT)])
    _u += 1
YB = max(4 * GATHER + 2, _u + (_u & 1), opt('YB', 0))
YN = min(YB, 28)
EPI = opt('EPI', 12)
NB = opt('NB', 2)
HD = 6
SIGW = opt('SIGW', 3)
INL = opt('INL', 14)
INP = opt('INP', 2)
LPRIO = opt('LPRIO', 2)
CORR = 4 * GATHER + 2
NL = opt('NL', 4)
ILV = opt('ILV', False)
RESTF = opt('RESTF', True)
ROT = opt('ROT', 0)
ROT2 = opt('ROT2', 0)
OLDPRIO = opt('OLDPRIO', False)
SPIN = 0x20000
ST_OUT = opt('ST_OUT', '')
W, XB, ACC = 128, 16, 64
SC1 = ' sc1' if ONE and opt('SC1', True) else ''


def k23(b=None):
    if b is None:
        b = Builder()
        b('s_cmp_ge_u32 s2, %d' % K2_WGS)
        b('s_cbranch_scc1 K2_END')
        b('s_load_dwordx2 s[4:5], s[0:1], %d' % KA['ws'])
        b('s_load_dwordx2 s[50:51], s[0:1], %d' % KA['out'])
        stamp_init(b)
        b('v_lshrrev_b32 v2, 6, v0')
        b('v_and_b32 v1, 63, v0')
        b('v_readfirstlane_b32 s33, v2')
    else:
        b.label('K2_ENTRY')
        b('s_setprio 0')
        if opt('SWAP', True):
            b('s_xor_b32 s33, s33, 4')
        b('s_load_dwordx2 s[50:51], s[0:1], %d' % KA['out'])
    b('s_and_b32 s6, s2, 7')
    b('s_lshr_b32 s7, s2, 3')
    b('s_lshr_b32 s8, s6, 1')
    b('s_lshl_b32 s8, s8, 2')
    b('s_lshr_b32 s9, s7, 3')
    b('s_add_u32 s8, s8, s9')
    b('s_and_b32 s30, s6, 1')
    b('s_lshl_b32 s30, s30, 3')
    b('s_and_b32 s10, s7, 7')
    b('s_add_u32 s30, s30, s10')
    if opt('MAP2', False):
        b('s_lshl_b32 s8, s6, 1')
        b('s_lshr_b32 s9, s7, 4')
        b('s_add_u32 s8, s8, s9')
        b('s_and_b32 s30, s7, 15')
    b('s_mul_i32 s9, s30, 7')
    b('v_lshlrev_b32 v2, 4, v1')
    b('s_lshl_b32 s10, s8, 17')
    b('s_add_u32 s10, s10, %s' % hex(WS_X1T))
    b('s_add_u32 s11, s9, s33')
    b('s_lshl_b32 s12, s11, 15')
    b('s_add_u32 s12, s12, %s' % hex(WS_WF))
    b('s_lshl_b32 s34, s33, 11')
    b('s_and_b32 s48, s8, 3')
    b('s_lshl_b32 s48, s48, 1')
    b('s_add_u32 s48, s48, s30')
    b('s_and_b32 s48, s48, %d' % ROT)
    if ONE:
        b('v_mov_b32 v4, %d' % CNT_ADDR)
        b('v_mov_b32 v5, 1')
        b('s_lshr_b32 s35, s2, 2')
        b('s_lshl_b32 s35, s35, 7')
        b('s_and_b32 s36, s2, 3')
        b('s_lshl_b32 s36, s36, 2')
        b('s_add_u32 s35, s35, s36')
        b('v_mov_b32 v7, s35')
        b(add64(14, 4, hex(WS_G3)))
        b('ds_read_b32 v6, v4 offset:52')
        b('v_lshlrev_b32 v12, 7, v1')
        b('s_waitcnt vmcnt(0) lgkmcnt(0)')
        b('s_mov_b64 exec, 1')
        b('ds_add_rtn_u32 v5, v4, v5 offset:48')
        b('s_mov_b64 exec, -1')
        b('s_mov_b32 s36, %d' % SPIN)
        b('s_waitcnt lgkmcnt(0)')
        b('v_readfirstlane_b32 s35, v5')
        b('s_cmp_lg_u32 s35, 7')
        b('s_cbranch_scc1 K2_G3X')
        b('ds_read_b32 v6, v4 offset:52')
        b('s_waitcnt lgkmcnt(0)')
        b('global_store_dword v7, v6, s[14:15] sc1')
        b.label('K2_G3')
        b('global_load_dwordx4 v[8:11], v12, s[14:15] ' + POLL)
        b('s_waitcnt vmcnt(0)')
        for i in range(4):
            b('v_xor_b32 v%d, v%d, v6' % (8 + i, 8 + i))
        b('v_or3_b32 v8, v8, v9, v10')
        b('v_or_b32 v8, v8, v11')
        b('v_cmp_ne_u32 vcc, 0, v8')
        b('s_cmp_eq_u64 vcc, 0')
        b('s_cbranch_scc1 K2_G3X')
        b('s_mov_b64 exec, vcc')
        b('s_sleep %d' % opt('SL3', 4))
        b('s_sub_u32 s36, s36, 1')
        b('s_cmp_lg_u32 s36, 0')
        b('s_cbranch_scc1 K2_G3')
        b.label('K2_G3X')
        b('s_mov_b64 exec, -1')
        b('s_barrier')
        stamp(b, 0)
    b('s_cmp_eq_u32 s33, 7')
    b('s_waitcnt lgkmcnt(0)')
    b('s_cbranch_scc1 K2_AUX')
    srd(b, 16, 4, 's10', 131072)
    srd(b, 20, 4, 's12', 32768)

    def make_issue(vm, with_w):
        def issue(tag):
            c = int(tag[1])
            if tag[0] == 'x' and AUXX and c > 0:
                if with_w:
                    return []
                r = ['s_add_u32 s35, s48, %d' % c, 's_and_b32 s35, s35, 7', 's_lshl_b32 s35, s35, 14']
                for i in range(4):
                    r += ['s_mov_b32 m0, %d' % (16384 * c + 4096 * i)] + (['s_add_u32 s35, s35, 4096'] if i else [])
                    r += [vm.op('buffer_load_dwordx4 v2, s[16:19], s35 offen offset:%d%s lds' % (1024 * k, SC1), tag) for k in range(4)]
                return r
            if tag[0] == 'x':
                return ['s_lshl_b32 s35, s48, 14', 's_add_u32 s35, s35, s34', 's_mov_b32 m0, s34',
                        vm.op('buffer_load_dwordx4 v2, s[16:19], s35 offen%s lds' % SC1, tag),
                        vm.op('buffer_load_dwordx4 v2, s[16:19], s35 offen offset:1024%s lds' % SC1, tag)]
            if not with_w:
                return []
            return ['s_movk_i32 s36, %d' % (4096 * c)] + \
                   [vm.op('buffer_load_dwordx4 %s, v2, s[20:23], s36 offen offset:%d' % (vr(W + 16 * c + 4 * k, 4), 1024 * k), tag) for k in range(4)]
        return issue

    def xreads(u):
        kk, hh = u >> 1, u & 1
        f = XB + 16 * (u % 3)
        o = (kk & 7) * 8192
        r = []
        if u in (16, 17):
            r += ['v_add_u32 v%d, 0x10000, v%d' % (4 + 4 * hh + j, 4 + 4 * hh + j) for j in range(4)]
        for j in range(4):
            r.append('ds_read_b64_tr_b16 %s, v%d offset:%d' % (vr(f + 4 * j, 2), 4 + 4 * hh + j, o))
            r.append('ds_read_b64_tr_b16 %s, v%d offset:%d' % (vr(f + 4 * j + 2, 2), 4 + 4 * hh + j, o + 1024))
        return r

    def phase2_setup():
        b('s_lshr_b32 s37, s30, 3')
        b('s_lshl_b32 s37, s37, 2')
        b('s_and_b32 s38, s30, 3')
        b('s_add_u32 s37, s37, s38')
        b('s_bfe_u32 s38, s30, 0x10002')
        b('s_and_b32 s39, s33, 1')
        b('s_bfe_u32 s42, s33, 0x10001')
        b('s_lshr_b32 s43, s33, 2')
        b('s_and_b32 s49, s30, 3')
        b('s_mul_i32 s49, s49, %d' % (ROT2 * 1024))
        b('s_mul_i32 s12, s37, %d' % (2 * 114688))
        b('s_mul_i32 s13, s33, %d' % (14 * 1024))
        b('s_add_u32 s12, s12, s13')
        b('s_add_u32 s12, s12, %s' % hex(WS_WD))
        srd(b, 24, 4, 's12', 114688 + 14 * 1024)
        b('s_lshl_b32 s12, s43, 8')
        b('v_xor_b32 v12, s12, v2')
        b('s_mul_i32 s12, s39, 114688')
        b('v_add_u32 v3, s12, v12')
        b('s_sub_u32 s12, 114688, s12')
        b('v_add_u32 v12, s12, v12')

    def wdload(vm, i):
        j = i >> 1
        r = []
        if i & 1 == 0:
            r += ['s_add_u32 s44, s49, %d' % (1024 * j), 's_sub_u32 s47, s44, 14336', 's_cselect_b32 s44, s44, s47']
        t_ = 'buffer_load_dwordx4 %s, v%d, s[24:27], s44 offen%s' % (vr(W + 4 * i, 4), 12 if i & 1 else 3, SC1)
        r.append(vm.op(t_, 'wd') if vm else t_)
        return r

    vm = VM(b)
    issue = make_issue(vm, True)

    def wl(i):
        r = []
        if i & 3 == 0:
            r += ['s_add_u32 s36, s48, %d' % (i >> 2), 's_and_b32 s36, s36, 7', 's_lshl_b32 s36, s36, 12']
        r.append(vm.op('buffer_load_dwordx4 %s, v2, s[20:23], s36 offen offset:%d%s' % (vr(W + 4 * i, 4), 1024 * (i & 3), SC1), 'w%d' % (i >> 1)))
        return r
    E(b, issue('x0'))
    for i in range(W0):
        E(b, wl(i))
    if opt('FB1', True):
        b('s_barrier')
    b('v_lshrrev_b32 v12, 4, v1')
    b('v_bfe_u32 v13, v1, 2, 2')
    b('v_and_b32 v14, 3, v1')
    b('v_lshl_add_u32 v15, v12, 3, v13')
    b('v_lshlrev_b32 v15, 8, v15')
    b('v_lshl_add_u32 v15, v14, 3, v15')
    b('v_and_b32 v14, 1, v12')
    b('v_lshl_add_u32 v14, v13, 1, v14')
    b('v_lshl_add_u32 v4, v14, 5, v15')
    for tt in range(1, 8):
        b('v_xor_b32 v%d, %d, v4' % (4 + tt, 32 * tt))
    for i in range(W0, WP):
        E(b, wl(i))
    b('v_and_b32 v13, 15, v1')
    b('s_lshl_b32 s35, s33, 8')
    b('s_add_u32 s35, s35, %d' % CBL)
    b('v_lshl_add_u32 v14, v13, 3, s35')
    b('s_mov_b32 s35, %d' % ST)
    b('v_lshl_add_u32 v13, v13, 5, s35')
    b('v_cmp_gt_u32 s[40:41], 16, v1')
    b('s_mul_i32 s12, s8, 448')
    b('s_add_u32 s12, s12, s11')
    b('s_lshl_b32 s12, s12, 10')
    b('s_add_u32 s12, s12, %s' % hex(WS_HF))
    b(add64(14, 4, 's12'))
    phase2_setup()
    stamp(b, 1)
    b(vm.wait('x0', 'w0'))
    b('s_barrier')
    stamp(b, 2)
    if OLDPRIO:
        b('s_cmp_ge_u32 s33, 4')
        b('s_cbranch_scc1 K2_NP')
        b('s_setprio 1')
        b.label('K2_NP')
    if LPRIO:
        b('s_setprio %d' % LPRIO)
    E(b, xreads(0) + xreads(1))
    nw = WP
    nin = 0
    done_ = set()
    INORD = [5, 6, 7, 0, 1, 2, 3, 4, 8, 9, 10, 11, 12, 13]
    for u in range(32):
        c = u >> 2
        if u & 1 == 0 and u:
            b(vm.wait('w%d' % (u >> 1)))
        if u & 3 == 2:
            if c + 1 in BARS:
                b('s_barrier')
            stamp(b, 3 + c)
        if u == CORR:
            A0, B0 = W + 32, W
            b('ds_read_b64 %s, v14' % vr(A0, 2))
            b('ds_read_b64 %s, v14 offset:128' % vr(A0 + 4, 2))
            for tt in range(8):
                b('ds_read_b128 %s, v13 offset:%d' % (vr(B0 + 4 * tt, 4), 512 * tt))
            b('v_pk_mov_b32 %s, 0, 0' % vr(A0 + 2, 2))
            b('v_pk_mov_b32 %s, 0, 0' % vr(A0 + 6, 2))
            b('s_waitcnt lgkmcnt(8)')
            for r in (0, 1, 4, 5):
                b('v_cndmask_b32 v%d, 0, v%d, s[40:41]' % (A0 + r, A0 + r))
            b('s_waitcnt lgkmcnt(0)')
            for tt in range(8):
                for m in range(2):
                    a = vr(ACC + 8 * tt + 4 * m, 4)
                    b('v_mfma_f32_16x16x32_bf16 %s, %s, %s, %s' % (a, vr(A0 + 4 * m, 4), vr(B0 + 4 * tt, 4), a))
        if u == YB and not INL:
            assert nw == 32
            b('s_cmp_lt_u32 s33, 4')
            b('s_cbranch_scc1 K2_NY')
            for i in range(YN):
                E(b, wdload(None, i))
            b.label('K2_NY')
        pend = []
        for _ in range(int(WPAT[u % len(WPAT)])):
            if nw < 32:
                pend += wl(nw)
                nw += 1
        if INL and u >= INL and nin < 28 - NL:
            k_ = 2 if (u - INL) % INP == 0 else 0
            if k_ and nin + 1 < 2 * (u >> 1) and (u > CORR or nin >= 10 or nin + 1 < 0 or True):
                order_ = INORD
                i_ = order_[nin // 2]
                if 2 * i_ + 1 < 2 * (u >> 1) and (u > CORR or i_ >= 5):
                    pend += wdload(vm, 2 * i_) + wdload(vm, 2 * i_ + 1)
                    done_.add(i_)
                    nin += 2
        if u == 31:
            pend += ['ds_read_b128 %s, v13 offset:%d' % (vr(48 + 4 * tt, 4), 512 * tt + 16) for tt in range(4)]
        fill = (xreads(u + 2) if u < 30 else []) + pend
        b('s_waitcnt lgkmcnt(%d)' % (8 if u < 31 else 0))
        f = XB + 16 * (u % 3)
        mm = []
        for j, m in ([(j, m) for m in range(2) for j in range(4)] if opt('MORD', 0) == 1 else
                     [(j, m ^ (j & 1)) for j in range(4) for m in range(2)] if opt('MORD', 0) == 2 else
                     [(j, m) for j in range(4) for m in range(2)]):
            if True:
                a = vr(ACC + 8 * (4 * (u & 1) + j) + 4 * m, 4)
                mm.append('v_mfma_f32_16x16x32_bf16 %s, %s, %s, %s' % (a, vr(W + 8 * (u >> 1) + 4 * m, 4), vr(f + 4 * j, 4), a if u > 1 else '0'))
        E(b, spread(mm, fill, 2))
    stamp(b, 11)
    if LPRIO:
        b('s_setprio 0')
    wdq = []
    if ILV:
        for i in range(0, YN, 2):
            wdq.append(['s_cmp_ge_u32 s33, 4', 's_cbranch_scc1 K2_S%d' % i] + wdload(None, i) + wdload(None, i + 1) + ['K2_S%d:' % i])
        rest = [wdload(None, i) + wdload(None, i + 1) for i in range(YN, 28 - NL, 2)]
        wdq = (rest + wdq) if RESTF else (wdq + rest)
    elif INL:
        for i in range(14 - NL // 2):
            if i not in done_:
                E(b, wdload(None, 2 * i) + wdload(None, 2 * i + 1))
    else:
        b('s_cmp_ge_u32 s33, 4')
        b('s_cbranch_scc1 K2_NO')
        for i in range(YN):
            E(b, wdload(None, i))
        b.label('K2_NO')
        for i in range(YN, 28 - NL):
            E(b, wdload(None, i))
    CO = lambda tt: 48 + 4 * tt if tt < 4 else 240 + 4 * (tt - 4)
    for tt in range(4, 8):
        b('ds_read_b128 %s, v13 offset:%d' % (vr(CO(tt), 4), 512 * tt + 16))
    b('s_waitcnt lgkmcnt(4)')
    cnt = [0]

    def ep(t):
        b(t)
        cnt[0] += 1
        if cnt[0] % EPI == 0 and wdq:
            E(b, wdq.pop(0))
    for p in range(4):
        T = 16 + 16 * (p & 1)
        if p == 2:
            b('s_waitcnt lgkmcnt(0)')
        tl = [(ACC + 8 * (2 * p + e) + 2 * k, T + 4 * e + 2 * k, CO(2 * p + e)) for e in range(2) for k in range(2)]
        for g, t, c in tl:
            ep(pk('mul', t, [('p', g), ('p', g)]))
        for g, t, c in tl:
            ep(pk('fma', t, [('p', t), ('b', c + 1), ('b', c)]))
        for g, t, c in tl:
            ep(pk('mul', t, [('p', t), ('p', g)]))
        for g, t, c in tl:
            ep('v_exp_f32 v%d, v%d' % (t, t))
            ep('v_exp_f32 v%d, v%d' % (t + 1, t + 1))
            ep(pk('mul', g, [('p', g), ('p', g + 4)]))
        for g, t, c in tl:
            ep(pk('fma', t, [('p', t), ('b', c + 2), ('b', c + 2)]))
        for k in range(8):
            ep('v_rcp_f32 v%d, v%d' % (T + k, T + k))
        for g, t, c in tl:
            ep(pk('mul', g, [('p', g), ('p', t)]))
        for n, (g, t, c) in enumerate(tl):
            ep('v_cvt_pk_bf16_f32 v%d, v%d, v%d' % (T + 8 + n, g, g + 1))
        ep('v_permlane16_swap_b32 v%d, v%d' % (T + 8, T + 10))
        ep('v_permlane16_swap_b32 v%d, v%d' % (T + 9, T + 11))
        ep('global_store_dwordx4 v2, %s, s[14:15] sc1' % vr(T + 8, 4))
        if p < 3:
            ep(add64(14, 14, '114688'))
    assert not wdq
    stamp(b, 12)
    for i in range(28 - NL, 28):
        E(b, wdload(None, i))
    NLATE = NL

    b.label('K2_P2')
    RS, GBR = 240, 248
    b('s_lshl_b32 s45, s37, 6')
    b('s_lshl_b32 s12, s39, 5')
    b('s_add_u32 s45, s45, s12')
    b('s_lshl_b32 s12, s43, 4')
    b('s_add_u32 s45, s45, s12')
    b('s_lshl_b32 s46, s38, 6')
    b('s_lshl_b32 s12, s42, 5')
    b('s_add_u32 s46, s46, s12')
    b('v_lshrrev_b32 v6, 5, v1')
    b('v_and_b32 v7, 31, v1')
    b('s_lshl_b32 s12, s45, 2')
    b('s_add_u32 s12, s12, %d' % (WS_MODP + 5 * 2048))
    b(add64(14, 4, 's12'))
    b(add64(28, 14, '12288'))
    b('v_lshlrev_b32 v8, 4, v6')
    for p_, (base, reg) in enumerate(((14, GBR), (28, 56))):
        b('global_load_dwordx4 %s, v8, s[%d:%d]%s' % (vr(reg, 4), base, base + 1, SC1))
        b('global_load_dwordx4 %s, v8, s[%d:%d] offset:32%s' % (vr(reg + 4, 4), base, base + 1, SC1))
    b('v_add_lshl_u32 v9, v7, s46, 1')
    b('v_lshl_add_u32 v9, v6, 10, v9')
    b('s_sub_u32 s12, s37, s48')
    b('s_and_b32 s12, s12, 7')
    b('s_lshl_b32 s12, s12, 6')
    b('s_and_b32 s13, s45, 63')
    b('s_add_u32 s12, s12, s13')
    b('s_lshl_b32 s12, s12, 8')
    b('v_add_u32 v9, s12, v9')
    for q in range(2):
        for i in range(4):
            b('v_xor_b32 v%d, %d, v9' % (10 + (i & 1), 64 * i + 32 * q))
            b('ds_read_u16 v%d, v%d offset:%d' % (RS + 4 * q + i, 10 + (i & 1), 2048 * q + 256 * i))
    b('s_lshl_b32 s12, s8, 7')
    b('s_add_u32 s12, s12, s46')
    b('s_lshl_b32 s12, s12, 10')
    b('s_lshl_b32 s13, s45, 1')
    b('s_add_u32 s12, s12, s13')
    b(add64(50, 50, 's12'))
    b('v_lshl_add_u32 v15, v7, 10, v8')
    b('s_lshl_b32 s12, s8, 1')
    b('s_add_u32 s12, s12, s38')
    b('s_mul_i32 s12, s12, %d' % (2 * 114688))
    b('s_mul_i32 s13, s33, %d' % (14 * 1024))
    b('s_add_u32 s12, s12, s13')
    b('s_add_u32 s12, s12, %s' % hex(WS_HF))
    srd(b, 20, 4, 's12', 114688 + 14 * 1024)
    b('s_mul_i32 s12, s42, 114688')
    b('v_add_u32 v13, s12, v2')
    b('s_sub_u32 s12, 114688, s12')
    b('v_add_u32 v14, s12, v2')
    b('s_waitcnt vmcnt(%d) lgkmcnt(0)' % (NLATE + 4))
    stamp(b, 9)
    b('s_lshl_b32 s12, s8, 11')
    b('s_add_u32 s12, s12, %s' % hex(WS_FLG))
    b(add64(28, 4, 's12'))
    b('s_lshl_b32 s12, s30, 7')
    b('v_mov_b32 v4, s12')
    b('v_mov_b32 v5, 1')
    b('s_cmp_lg_u32 s33, %d' % SIGW)
    b('s_barrier')
    stamp(b, 10)
    b('s_cbranch_scc1 K2_NS')
    b('global_store_dword v4, v5, s[28:29] sc1')
    b.label('K2_NS')
    b('s_cmp_lg_u32 s33, 7')
    b('s_cbranch_scc1 K2_GO2')
    if opt('SL0', 13):
        b('s_sleep %d' % opt('SL0', 13))
    b('v_and_b32 v4, 15, v1')
    b('v_lshlrev_b32 v4, 7, v4')
    b('s_mov_b32 s36, %d' % SPIN)
    b.label('K2_POLL2')
    b('global_load_dword v16, v4, s[28:29] ' + POLL)
    b('s_waitcnt vmcnt(0)')
    b('v_cmp_ne_u32 vcc, 1, v16')
    b('s_cmp_eq_u64 vcc, 0')
    b('s_cbranch_scc1 K2_GO2')
    b('s_sleep %d' % opt('SLP', 1))
    b('s_sub_u32 s36, s36, 1')
    b('s_cmp_lg_u32 s36, 0')
    b('s_cbranch_scc1 K2_POLL2')
    b.label('K2_GO2')
    b('s_barrier')
    stamp(b, 13)
    vm = VM(b)

    def hload(j):
        f = XB + 8 * (j % HD)
        r = []
        r += ['s_add_u32 s44, s49, %d' % (1024 * j), 's_sub_u32 s47, s44, 14336', 's_cselect_b32 s44, s44, s47']
        for h in range(2):
            r.append(vm.op('buffer_load_dwordx4 %s, v%d, s[20:23], s44 offen sc1' % (vr(f + 4 * h, 4), 13 + h), 'h%d' % j))
        return r
    for j in range(HD - 1):
        E(b, hload(j))
    b('s_waitcnt vmcnt(%d)' % (2 * (HD - 1)))
    for k in range(0, 8, 2):
        b(pk('add', GBR + k, [('p', GBR + k), ('p', 56 + k)]))
    E(b, hload(HD - 1))
    for k in range(0, 8, 2):
        E(b, rnd_pair(GBR + k, 4))
    for x in range(1, 8):
        b('s_xor_b32 s12, s33, %d' % x)
        b('s_mul_i32 s12, s12, %d' % (7 * 2048))
        b('s_add_u32 s12, s12, %d' % (2048 * (x - 1)))
        b('v_add_u32 v%d, s12, v2' % (3 + x))
    b('s_mul_i32 s12, s33, %d' % (7 * 2048))
    b('v_add_u32 v3, s12, v2')
    for k in range(8):
        b('v_lshlrev_b32 v%d, 16, v%d' % (RS + k, RS + k))
    for j in range(14):
        f = XB + 8 * (j % HD)
        b(vm.wait('h%d' % j))
        for sl in ((0, 1, 3, 2) if opt('MORD2', 0) else range(4)):
            a = vr(ACC + 16 * sl, 16)
            b('v_mfma_f32_32x32x16_bf16 %s, %s, %s, %s' % (a, vr(W + 8 * j + 4 * (sl & 1), 4), vr(f + 4 * (sl >> 1), 4), a if j else '0'))
        if j + HD < 14:
            E(b, hload(j + HD))
    stamp(b, 14)
    for x in (1, 2, 3, 5, 6, 7, 4):
        r = ACC + 16 * (x & 3) + 8 * (x >> 2)
        b('ds_write_b128 v%d, %s' % (3 + x, vr(r, 4)))
        b('ds_write_b128 v%d, %s offset:1024' % (3 + x, vr(r + 4, 4)))
    for k in range(0, 8, 2):
        b(pk('fma', RS + k, [('p', ACC + k), ('p', GBR + k), ('p', RS + k)]))
    b('s_waitcnt lgkmcnt(0)')
    b('s_barrier')
    for x in range(7):
        for h in range(2):
            b('ds_read_b128 %s, v3 offset:%d' % (vr(ACC + 8 * x + 4 * h, 4), 2048 * x + 1024 * h))
    b('s_waitcnt lgkmcnt(6)')
    for k in range(0, 8, 2):
        b(pk('add', ACC + k, [('p', ACC + k), ('p', ACC + 8 + k)]))
        b(pk('add', ACC + 16 + k, [('p', ACC + 16 + k), ('p', ACC + 24 + k)]))
    b('s_waitcnt lgkmcnt(2)')
    for k in range(0, 8, 2):
        b(pk('add', ACC + k, [('p', ACC + k), ('p', ACC + 16 + k)]))
        b(pk('add', ACC + 32 + k, [('p', ACC + 32 + k), ('p', ACC + 40 + k)]))
    b('s_waitcnt lgkmcnt(0)')
    for k in range(0, 8, 2):
        b(pk('add', ACC + k, [('p', ACC + k), ('p', ACC + 48 + k)]))
    for k in range(0, 8, 2):
        b(pk('add', ACC + k, [('p', ACC + k), ('p', ACC + 32 + k)]))
    for k in range(0, 8, 2):
        b(pk('fma', RS + k, [('p', ACC + k), ('p', GBR + k), ('p', RS + k)]))
    for k in range(4):
        b('v_cvt_pk_bf16_f32 v%d, v%d, v%d' % (ACC + k, RS + 2 * k, RS + 2 * k + 1))
    b('v_permlane32_swap_b32 v%d, v%d' % (ACC, ACC + 2))
    b('v_permlane32_swap_b32 v%d, v%d' % (ACC + 1, ACC + 3))
    b('global_store_dwordx4 v15, %s, s[50:51] %s' % (vr(ACC, 4), ST_OUT))
    stamp_end(b, 2)
    b('s_endpgm')

    b.label('K2_AUX')
    srd(b, 16, 4, 's10', 131072)
    vm = VM(b)
    issue = make_issue(vm, False)
    for t in PLAN[-2]:
        E(b, issue(t))
    if opt('FB1', True):
        b('s_barrier')
    b('s_setprio 3')
    for t in PLAN[-1]:
        E(b, issue(t))
    b('s_lshr_b32 s12, s30, 1')
    b('s_lshl_b32 s12, s12, 5')
    b('v_lshrrev_b32 v20, 1, v1')
    b('v_and_b32 v21, 3, v20')
    b('v_lshlrev_b32 v21, 6, v21')
    b('v_bfe_u32 v22, v20, 3, 1')
    b('v_lshl_add_u32 v21, v22, 5, v21')
    b('v_xor_b32 v21, s12, v21')
    b('v_lshl_add_u32 v21, v20, 8, v21')
    b('v_and_b32 v22, 1, v1')
    b('v_lshl_add_u32 v21, v22, 4, v21')
    b('s_and_b32 s13, s30, 1')
    b('s_lshl_b32 s31, s13, 16')
    b(add64(14, 4, hex(WS_CB)))
    b('v_min_u32 v23, 55, v1')
    b('v_lshrrev_b32 v27, 3, v23')
    b('v_add_u32 v27, s9, v27')
    b('v_lshrrev_b32 v29, 2, v27')
    b('v_lshlrev_b32 v29, 12, v29')
    b('v_and_b32 v27, 3, v27')
    b('v_lshl_add_u32 v27, v27, 6, v29')
    b('v_bfe_u32 v29, v23, 2, 1')
    b('v_lshl_add_u32 v27, v29, 11, v27')
    b('v_and_b32 v29, 3, v23')
    b('v_lshl_add_u32 v27, v29, 4, v27')
    b('v_lshlrev_b32 v104, 5, v23')
    b('v_add_u32 v104, %d, v104' % CBL)
    b('v_lshlrev_b32 v105, 5, v1')
    b('v_add_u32 v105, %d, v105' % ST)
    b('v_mov_b32 v28, v21')
    b('v_lshrrev_b32 v20, 4, v1')
    b('v_bfe_u32 v21, v1, 2, 2')
    b('v_and_b32 v22, 3, v1')
    b('v_cmp_eq_u32 s[46:47], v20, v21')
    b('v_cmp_eq_u32 s[40:41], 1, v22')
    b('v_cmp_eq_u32 s[42:43], 2, v22')
    b('v_cmp_eq_u32 s[44:45], 3, v22')
    b('v_lshl_add_u32 v24, v20, 3, v21')
    b('v_lshlrev_b32 v24, 5, v24')
    b('v_lshl_add_u32 v24, v22, 3, v24')
    b('v_add_u32 v24, %d, v24' % SCR)
    for i in range(4):
        b('v_mov_b32 v%d, 0x3f803f80' % (112 + i))
    b('s_lshl_b32 s12, s8, 11')
    b('s_add_u32 s12, s12, %s' % hex(WS_SST))
    b(add64(28, 4, 's12'))
    b('s_lshl_b32 s13, s13, 10')
    b('s_lshr_b32 s12, s30, 1')
    b('s_lshl_b32 s12, s12, 7')
    b('s_add_u32 s12, s12, s13')
    b('v_and_b32 v25, 15, v1')
    b('v_lshl_add_u32 v25, v25, 3, s12')
    b('v_lshlrev_b32 v26, 3, v1')
    stamp(b, 1)
    b(vm.wait('x0') + ' lgkmcnt(0)')
    b('s_barrier')

    def shreq():
        for i in range(8):
            b('s_mov_b32 m0, %d' % (SCR + 1024 * i))
            b(vm.op('buffer_load_dwordx4 v28, s[16:19], s31 offen%s lds' % SC1, 'sh'))
            b('s_add_u32 s31, s31, 8192')

    def cbreq():
        for q in range(4):
            for w in range(2):
                b(vm.op('global_load_dwordx4 %s, v27, s[14:15] offset:%d%s' % (vr(64 + 16 * w + 4 * q, 4), 512 * q + 256 * w, SC1), 'cb'))
    SH, CBQ = opt('SH', 0), opt('CBQ', 2)
    if SH < 0:
        shreq()
    if CBQ < 0:
        cbreq()

    def share():
        b(vm.wait('sh'))
        for kk in range(8):
            for e in range(2):
                b('ds_read_b64_tr_b16 %s, v24 offset:%d' % (vr(32 + 4 * kk + 2 * e, 2), 1024 * kk + 128 * e))
        for kk in range(8):
            b('s_waitcnt lgkmcnt(%d)' % (14 - 2 * kk))
            f = vr(32 + 4 * kk, 4)
            b('v_mfma_f32_16x16x32_bf16 v[120:123], %s, %s, %s' % (f, f, 'v[120:123]' if kk else '0'))
            b('v_mfma_f32_16x16x32_bf16 v[116:119], v[112:115], %s, %s' % (f, 'v[116:119]' if kk else '0'))
        b('v_cndmask_b32 v117, v120, v121, s[40:41]')
        b('v_cndmask_b32 v117, v117, v122, s[42:43]')
        b('v_cndmask_b32 v117, v117, v123, s[44:45]')
        b('v_and_b32 v117, 0x7fffffff, v117')
        b('s_mov_b64 exec, s[46:47]')
        b(vm.op('global_store_dwordx2 v25, v[116:117], s[28:29] sc1', 'pub'))
        b('s_mov_b64 exec, -1')
        stamp(b, 2)

    def cbprep():
        b(vm.wait('cb'))
        for w in range(2):
            p = 64 + 16 * w
            for k in (0, 2):
                b(pk('add', p + k, [('p', p + k), ('p', p + 4 + k)]))
                b(pk('add', p + 8 + k, [('p', p + 8 + k), ('p', p + 12 + k)]))
            for k in (0, 2):
                b(pk('add', p + k, [('p', p + k), ('p', p + 8 + k)]))
        for j in range(4):
            for w in range(2):
                x = 64 + 16 * w + j
                t = 96 + 2 * j + w
                E(b, ['v_cvt_pk_bf16_f32 v%d, v%d, v%d' % (t, x, x), 'v_and_b32 v%d, 0xffff0000, v%d' % (x + 4, t),
                      'v_sub_f32 v%d, v%d, v%d' % (x, x, x + 4), 'v_cvt_pk_bf16_f32 v%d, v%d, v%d' % (t, x + 4, x)])
        b('ds_write_b128 v104, v[96:99]')
        b('ds_write_b128 v104, v[100:103] offset:16')
        phase2_setup()

    def gather():
        K0c = -2.0 * math.sqrt(2.0 / math.pi) * LOG2E
        b('s_mov_b32 s36, %d' % SPIN)
        b('s_mov_b32 s12, %s' % fhex(1.0 / 512))
        b('s_mov_b32 s14, %s' % fhex(1e-5))
        b.label('K2_POLLS')
        for i in range(4):
            b('global_load_dwordx2 %s, v26, s[28:29] offset:%d sc1' % (vr(64 + 2 * i, 2), 512 * i))
        b('s_waitcnt vmcnt(0)')
        b('v_or_b32 v72, v65, v67')
        b('v_or3_b32 v72, v72, v69, v71')
        b('v_cmp_gt_i32 vcc, 0, v72')
        b('s_cmp_eq_u64 vcc, 0')
        b('s_cbranch_scc1 K2_GOS')
        b('s_sleep 2')
        b('s_sub_u32 s36, s36, 1')
        b('s_cmp_lg_u32 s36, 0')
        b('s_cbranch_scc1 K2_POLLS')
        b.label('K2_GOS')
        b('v_add_f32 v82, v64, v68')
        b('v_add_f32 v83, v66, v70')
        b('v_add_f32 v80, v65, v69')
        b('v_add_f32 v81, v67, v71')
        b(pk('mul', 82, [('p', 82), ('sl', 12)]))
        b(pk('mul', 80, [('p', 80), ('sl', 12)]))
        b(pk('fma', 80, [('p', 82), ('p', 82), ('p', 80)], neg_lo=[1, 0, 0], neg_hi=[1, 0, 0]))
        B0, B1 = 88, 96
        b('v_cvt_pk_bf16_f32 v%d, -v82, -v82' % B0)
        b('v_cvt_pk_bf16_f32 v%d, -v83, -v83' % B1)
        b('v_max_f32 v80, 0, v80')
        b('v_max_f32 v81, 0, v81')
        E(b, rnd_pair(80, 84))
        b(pk('add', 80, [('p', 80), ('sl', 14)]))
        E(b, rnd_pair(80, 84))
        b('v_sqrt_f32 v80, v80')
        b('v_sqrt_f32 v81, v81')
        b('v_pk_mov_b32 %s, 0, 0' % vr(B0 + 2, 2))
        b('v_pk_mov_b32 %s, 0, 0' % vr(B1 + 2, 2))
        b('v_cvt_pk_bf16_f32 v%d, v80, v80' % (B0 + 1))
        b('v_cvt_pk_bf16_f32 v%d, v81, v81' % (B1 + 1))
        b('v_lshlrev_b32 v80, 16, v%d' % (B0 + 1))
        b('v_lshlrev_b32 v81, 16, v%d' % (B1 + 1))
        b('v_rcp_f32 v82, v80')
        b('v_rcp_f32 v83, v81')
        b('ds_write_b128 v105, %s' % vr(B0, 4))
        b('ds_write_b128 v105, %s offset:2048' % vr(B1, 4))
        b('v_mul_f32 v%d, v80, v80' % (B0 + 6))
        b('v_mul_f32 v%d, v81, v81' % (B1 + 6))
        b('v_mul_f32 v%d, %s, v82' % (B0 + 4, fhex(K0c)))
        b('v_mul_f32 v%d, %s, v83' % (B1 + 4, fhex(K0c)))
        b(pk('mul', 82, [('p', 82), ('p', 82)]))
        b('v_mul_f32 v82, %s, v82' % fhex(0.044715))
        b('v_mul_f32 v83, %s, v83' % fhex(0.044715))
        b('v_mul_f32 v%d, v82, v%d' % (B0 + 5, B0 + 4))
        b('v_mul_f32 v%d, v83, v%d' % (B1 + 5, B1 + 4))
        b('ds_write_b128 v105, %s offset:16' % vr(B0 + 4, 4))
        b('ds_write_b128 v105, %s offset:2064' % vr(B1 + 4, 4))
        stamp(b, 11)
    for c in range(8):
        for t in PLAN.get(c, []):
            E(b, issue(t))
        if c == SH:
            shreq()
        if c == CBQ:
            cbreq()
        if c == opt('SHP', 1):
            share()
        if c == opt('CBP', 3):
            cbprep()
        if c + 1 in BARS:
            if c == GATHER:
                gather()
                b('s_waitcnt lgkmcnt(0)')
            else:
                b(vm.wait(*BARS[c + 1]))
            stamp(b, 3 + c)
            b('s_barrier')
    if GATHER + 1 not in BARS:
        gather()
    for i in range(28):
        E(b, wdload(vm, i))
    b('s_setprio 0')
    stamp(b, 12)
    b('s_waitcnt vmcnt(0)')
    b('s_branch K2_P2')
    b.label('K2_END')
    b('s_endpgm')
    return b.text(), 256, NSG
```
